```python
import torch

def _softmax(x, axis=-1):
    return torch.softmax(x, dim=axis)
def _gelu(x):
    return torch.nn.functional.gelu(x, approximate="tanh")
def _silu(x):
    return torch.nn.functional.silu(x)
def _sigmoid(x):
    return torch.sigmoid(x)
def _layernorm(x, axis=-1, eps=1e-5):
    m = x.mean(dim=axis, keepdim=True)
    v = x.var(dim=axis, keepdim=True, unbiased=False)
    return (x - m) / torch.sqrt(v + eps)
def _scatter_add(tgt, idx, src, axis=0):
    return tgt.clone().index_add_(axis, idx, src)
def _segment_sum(src, seg, n):
    out = torch.zeros((n,) + src.shape[1:], dtype=src.dtype)
    return out.index_add_(0, seg, src)
def _pad(x, pw):
    flat = tuple(v for pair in reversed(pw) for v in pair)
    return torch.nn.functional.pad(x, flat)

kernel_name = 'concat_heads__ssm_conv_s4d__linear_attn_block__prompt'

def setup_inputs():

    _w = (lambda a: (lambda t: t.to(torch.bfloat16) if t.is_floating_point() else t)(torch.as_tensor(a)))
    def _A_setup():
        Bsz, L, D, N = 1, 2048, 448, 256
        return {
            "u": _w((lambda *s: torch.randn(*s, dtype=torch.bfloat16) * 0.05)(Bsz, L, D)),
            "log_A_real": _w((lambda *s: torch.randn(*s, dtype=torch.bfloat16) * 6.4)(D, N) * 0.5),
            "A_imag": _w((lambda *s: torch.randn(*s, dtype=torch.bfloat16) * 0.05)(D, N) * 3.14),
            "C_real": _w((lambda *s: torch.randn(*s, dtype=torch.bfloat16) * 0.2)(D, N) / N ** 0.5),
            "C_imag": _w((lambda *s: torch.randn(*s, dtype=torch.bfloat16) * 0.2)(D, N) / N ** 0.5),
            "log_dt": _w((lambda *s: torch.randn(*s, dtype=torch.bfloat16) * 0.05)(D) * 0.5 - 4.0),
            "D_skip": _w((lambda *s: torch.randn(*s, dtype=torch.bfloat16) * 0.05)(D)),
        }
    _A_in = _A_setup()

    def _B_setup():
        B, S, D = 1, 2048, 448
        return {
            "x": _w((lambda *s: torch.randn(*s, dtype=torch.bfloat16) * 0.05)(B, S, D)),
            "wqkv": _w((lambda *s: torch.randn(*s, dtype=torch.bfloat16) * 0.8)(D, 3 * D)),
            "wo": _w((lambda *s: torch.randn(*s, dtype=torch.bfloat16) * 0.05)(D, D)),
        }
    _B_in = _B_setup()

    return {
        "A_u": _A_in["u"],
        "A_log_A_real": _A_in["log_A_real"],
        "A_A_imag": _A_in["A_imag"],
        "A_C_real": _A_in["C_real"],
        "A_C_imag": _A_in["C_imag"],
        "A_log_dt": _A_in["log_dt"],
        "A_D_skip": _A_in["D_skip"],
        "B_x": _B_in["x"],
        "B_wqkv": _B_in["wqkv"],
        "B_wo": _B_in["wo"],
    }

def reference(A_u, A_log_A_real, A_A_imag, A_C_real, A_C_imag, A_log_dt, A_D_skip, B_x, B_wqkv, B_wo):
    def _A_ref(u, log_A_real, A_imag, C_real, C_imag, log_dt, D_skip):
        L = u.shape[1]
        dt = torch.exp(log_dt)
        A = -torch.exp(log_A_real) + 1j * A_imag
        C = (C_real + 1j * C_imag) * dt[:, None]
        pos = (lambda x, dt: x.to(dt))(torch.arange(L), log_dt.dtype)
        P = torch.exp((A * dt[:, None])[:, :, None] * pos[None, None, :])
        K = 2.0 * torch.einsum("dn,dnl->dl", C, P).real
        L2 = 2 * L
        u_t = (lambda x, *d: x.permute(*d))(u, 0, 2, 1)
        Kf = (lambda x, *a, **k: torch.fft.rfft(x.float(), *a, **k))(K, L2)
        Uf = (lambda x, *a, **k: torch.fft.rfft(x.float(), *a, **k))(u_t, L2)
        y = (lambda x, *a, **k: torch.fft.irfft(x, *a, **k).to(torch.bfloat16))(Uf * Kf[None, :, :], L2)[:, :, :L]
        y = (lambda x, *d: x.permute(*d))(y, 0, 2, 1)
        return y + u * D_skip[None, None, :]

    def _B_ref(x, wqkv, wo):
        B, S, D = x.shape
        H = 16; Dh = D // H
        qkv = (lambda x, *d: x.permute(*d))((x @ wqkv).reshape(B, S, 3, H, Dh), 2, 0, 3, 1, 4)
        q, k, v = qkv[0], qkv[1], qkv[2]
        phi = lambda t: torch.where(t > 0, t + 1, torch.exp(t)) + 1e-6
        pq, pk = phi(q), phi(k)
        kv = torch.einsum("bhsd,bhse->bhde", pk, v)
        z = torch.einsum("bhsd->bhd", pk)
        num = torch.einsum("bhqd,bhde->bhqe", pq, kv)
        den = torch.einsum("bhqd,bhd->bhq", pq, z)[..., None] + 1e-6
        o = num / den
        return (lambda x, *d: x.permute(*d))(o, 0, 2, 1, 3).reshape(B, S, D) @ wo

    a = _A_ref(A_u, A_log_A_real, A_A_imag, A_C_real, A_C_imag, A_log_dt, A_D_skip)
    b = _B_ref(B_x, B_wqkv, B_wo)
    return torch.concatenate([a, b], axis=-1)
```

```python
import re

TRANS = ("v_exp_f32", "v_log_f32", "v_rcp_f32", "v_rsq_f32", "v_sqrt_f32", "v_sin_f32", "v_cos_f32", "v_rcp_iflag_f32")

_reg_re = re.compile(r"^(-|\|)?(abs\()?([vsa])(\d+)\)?\|?$")
_rng_re = re.compile(r"^(-)?([vsa])\[(\d+):(\d+)\]$")


def _split_ops(s):
    out, depth, cur = [], 0, ""
    for ch in s:
        if ch in "[(":
            depth += 1
        if ch in "])":
            depth -= 1
        if ch == "," and depth == 0:
            out.append(cur.strip())
            cur = ""
        else:
            cur += ch
    if cur.strip():
        out.append(cur.strip())
    return out


def _regs(op):
    tok = op.split()[0] if op.split() else ""
    m = _reg_re.match(tok)
    if m:
        return {(m.group(3), int(m.group(4)))}
    m = _rng_re.match(tok)
    if m:
        return {(m.group(2), i) for i in range(int(m.group(3)), int(m.group(4)) + 1)}
    if tok == "vcc":
        return {("vcc", 0)}
    if tok in ("vcc_lo", "vcc_hi"):
        return {("vcc", 0)}
    if tok in ("exec", "exec_lo", "exec_hi"):
        return {("exec", 0)}
    if tok == "m0":
        return {("m0", 0)}
    return set()


class Ins:
    __slots__ = ("text", "mn", "ops", "dst", "src", "srcA", "srcB", "srcC", "kind", "passes", "label", "target", "states",
                 "dpp", "trans", "permlane", "wide_store_data", "uses_m0", "sgpr_src", "is_branch", "uncond", "end")

    def __init__(self, text):
        self.text = text
        t = text.split(";")[0].strip()
        self.label = None
        self.target = None
        self.dst, self.src = set(), set()
        self.srcA = self.srcB = self.srcC = set()
        self.kind = "other"
        self.passes = 0
        self.states = 1
        self.dpp = self.trans = self.permlane = False
        self.wide_store_data = set()
        self.uses_m0 = False
        self.is_branch = self.uncond = self.end = False
        if t.endswith(":"):
            self.label = t[:-1]
            self.kind = "label"
            self.states = 0
            self.mn = ""
            return
        if t.startswith(".") or t == "":
            self.kind = "directive"
            self.states = 0
            self.mn = ""
            return
        parts = t.split(None, 1)
        mn = parts[0]
        self.mn = mn
        ops = _split_ops(parts[1]) if len(parts) > 1 else []
        self.ops = ops
        R = [_regs(o) for o in ops]
        base = mn.replace("_e32", "").replace("_e64", "").replace("_dpp", "").replace("_sdwa", "")
        if mn.startswith("v_mfma"):
            self.kind = "mfma"
            self.passes = 8 if "32x32x16" in mn else 4
            assert ("32x32x16" in mn) or ("16x16x32" in mn), mn
            self.dst = R[0]
            self.srcA, self.srcB, self.srcC = R[1], R[2], R[3]
            self.src = R[1] | R[2] | R[3]
        elif mn.startswith("v_"):
            self.kind = "valu"
            self.trans = base in TRANS
            self.dpp = ("_dpp" in mn) or ("quad_perm" in t) or ("row_" in t) or ("wave_sh" in t)
            if base.startswith("v_permlane"):
                self.permlane = True
                self.dst = R[0] | R[1]
                self.src = R[0] | R[1]
            elif base.startswith("v_cmp"):
                self.dst = R[0]
                for r in R[1:]:
                    self.src |= r
            elif base in ("v_add_co_u32", "v_sub_co_u32", "v_addc_co_u32", "v_subb_co_u32"):
                self.dst = R[0] | R[1]
                for r in R[2:]:
                    self.src |= r
            else:
                self.dst = R[0]
                for r in R[1:]:
                    self.src |= r
                if base in ("v_fmac_f32", "v_dot2c_f32_bf16", "v_writelane_b32") or self.dpp:
                    self.src |= R[0]
                if base == "v_cndmask_b32" and len(ops) == 3:
                    self.src |= {("vcc", 0)}
        elif mn.startswith("ds_"):
            self.kind = "ds"
            if mn.startswith("ds_read") or "_rtn" in mn or mn.startswith("ds_bpermute") or mn.startswith("ds_permute") or mn.startswith("ds_swizzle"):
                self.dst = R[0]
                for r in R[1:]:
                    self.src |= r
                if "d16" in mn:
                    self.src |= R[0]
            else:
                for r in R:
                    self.src |= r
        elif mn.startswith("global_") or mn.startswith("buffer_"):
            self.kind = "vmem"
            is_lds = ("load_lds" in mn) or bool(re.search(r"\blds\b", t))
            if is_lds:
                self.uses_m0 = True
                for r in R:
                    self.src |= r
            elif "load" in mn:
                self.dst = R[0]
                for r in R[1:]:
                    self.src |= r
            elif "atomic" in mn and "sc0" in t:
                self.dst = R[0]
                for r in R[1:]:
                    self.src |= r
            else:
                for r in R:
                    self.src |= r
                if "dwordx3" in mn or "dwordx4" in mn:
                    self.wide_store_data = R[1] if mn.startswith("global_") else R[0]
        elif mn.startswith("s_"):
            self.kind = "salu"
            if mn == "s_nop":
                self.states = int(ops[0], 0) + 1
            elif mn.startswith("s_cbranch") or mn == "s_branch":
                self.is_branch = True
                self.uncond = mn == "s_branch"
                self.target = ops[0]
                if "vcc" in mn:
                    self.src = {("vcc", 0)}
            elif mn == "s_endpgm":
                self.end = True
            elif mn.startswith("s_cmp") or mn.startswith("s_waitcnt") or mn in ("s_barrier", "s_sleep", "s_setprio", "s_bitcmp1_b32", "s_bitcmp0_b32"):
                for r in R:
                    self.src |= r
            else:
                if R:
                    self.dst = set(R[0])
                for r in R[1:]:
                    self.src |= r
                if "saveexec" in mn:
                    self.dst |= {("exec", 0)}
        else:
            raise ValueError("unknown instruction: " + text)


def _vg(s):
    return {r for r in s if r[0] in ("v", "a")}


def _sg(s):
    return {r for r in s if r[0] in ("s", "vcc")}


def required(p, c):
    need = 0
    if p.kind == "valu":
        pv, ps = _vg(p.dst), _sg(p.dst)
        if c.kind == "mfma" and pv & c.src:
            need = max(need, 2)
        if c.kind == "valu":
            if p.trans and not c.trans and pv & c.src:
                need = max(need, 1)
            if p.trans and c.trans and pv & c.src:
                need = max(need, 1)
            if c.dpp and pv & c.src:
                need = max(need, 2)
            if c.permlane and pv & c.src:
                need = max(need, 2)
            if c.mn.startswith("v_readfirstlane") or c.mn.startswith("v_readlane"):
                if pv & c.src:
                    need = max(need, 1)
                if ps & c.src:
                    need = max(need, 4)
            if ps & c.src:
                need = max(need, 2)
        if p.mn.startswith("v_dot") and c.kind in ("valu", "ds", "vmem", "mfma") and pv & (c.src | c.dst):
            if not (c.mn == p.mn and len(c.ops) == 4 and _regs(c.ops[3]) & pv and not (pv & (_regs(c.ops[1]) | _regs(c.ops[2])))):
                need = max(need, 3)
        if p.trans and c.kind in ("ds", "vmem") and pv & c.src:
            need = max(need, 1)
        if c.kind == "vmem" and ps & c.src:
            need = max(need, 5)
        if c.kind == "salu" and ps & c.src:
            need = max(need, 1)
    if p.kind == "mfma":
        n_ab = 12 if p.passes == 8 else 8
        if c.kind == "mfma":
            if p.dst & (c.srcA | c.srcB):
                need = max(need, n_ab)
            if p.dst & c.srcC:
                if not (p.dst == c.srcC and p.passes == c.passes):
                    need = max(need, 10 if p.passes == 8 else 6)
            elif p.dst & c.dst:
                need = max(need, n_ab)
        elif c.kind in ("valu", "ds", "vmem"):
            if p.dst & (c.src | c.dst):
                need = max(need, n_ab)
            if c.kind == "valu" and p.srcC & c.dst:
                need = max(need, 7 if p.passes == 8 else 3)
            if c.kind in ("ds", "vmem") and p.srcC & c.dst:
                need = max(need, 7 if p.passes == 8 else 3)
    if p.kind == "salu" and ("m0", 0) in p.dst and c.uses_m0:
        need = max(need, 1)
    if p.wide_store_data and (p.wide_store_data & c.dst):
        need = max(need, 2)
    if p.kind == "ds" and "write_b128" in p.mn or (p.kind == "ds" and "write_b96" in p.mn):
        pass
    return need


class Asm:
    def __init__(self):
        self.lines = []
        self._uid = 0

    def __call__(self, text):
        for ln in text.split("\n"):
            ln = ln.strip()
            if ln:
                self.lines.append(ln)

    def uid(self, base="L"):
        self._uid += 1
        return f"{base}_{self._uid}"

    def label(self, name):
        self.lines.append(name + ":")

    def comment(self, s):
        self.lines.append("; " + s)

    def finalize(self, verbose=False):
        ins = []
        for ln in self.lines:
            if ln.startswith(";"):
                i = Ins("")
                i.text = ln
                ins.append(i)
            else:
                ins.append(Ins(ln))
        MAXW = 13
        total_added = 0
        labels = {i.label: k for k, i in enumerate(ins) if i.label}
        preds = [[] for _ in ins]
        for k, i in enumerate(ins):
            if k + 1 < len(ins) and not (i.uncond or i.end):
                preds[k + 1].append(k)
            if i.is_branch:
                assert i.target in labels, i.text
                preds[labels[i.target]].append(k)
        pad = [0] * len(ins)
        for k, c in enumerate(ins):
            if c.kind in ("valu", "mfma", "ds", "vmem", "salu") and c.mn != "s_nop":
                worst = 0
                stack = [(p, 0) for p in preds[k]]
                seen = {}
                while stack:
                    p, dist = stack.pop()
                    if dist >= MAXW:
                        continue
                    if p in seen and seen[p] <= dist:
                        continue
                    seen[p] = dist
                    pi = ins[p]
                    if pi.kind in ("valu", "mfma", "salu", "vmem", "ds"):
                        need = required(pi, c)
                        if need > dist:
                            worst = max(worst, need - dist)
                    for q in preds[p]:
                        stack.append((q, dist + pi.states + pad[p]))
                pad[k] = worst
                total_added += worst
        new = []
        for k, c in enumerate(ins):
            if pad[k]:
                new.append(Ins(f"s_nop {pad[k] - 1}"))
            new.append(c)
        ins = new
        if verbose:
            print("hazard pass: added wait states:", total_added)
        return "\n".join(("    " + i.text) if not (i.label or i.text.startswith(".")) else i.text for i in ins)
```

```python
import sys, os, struct
sys.path.insert(0, os.path.dirname(os.path.abspath(__file__)))
from asmdsl import Asm
import numpy as np

KNAME = "concat_heads__ssm_conv_s4d__linear_attn_block__prompt_kernel"

WS_PART = 0x000000
WS_KV = 0x080000
WS_PQ = 0x100000
WS_UT = 0x300000
WS_YT = 0x600000
WS_DBG = 0x1000000

SCR_PITCH = 544
SCR_SZ = 16 * SCR_PITCH
L_SCR = 0
KC_PITCH = 4160
L_U = 34816
U_PITCH = 4576
L_T = L_U + 4 * U_PITCH
L_FLAG = L_T + 4096
L_WKV = 57344
L_XR = L_WKV + 57344
LDS_TOTAL = L_XR + 49152
assert LDS_TOTAL == 163840 and L_FLAG + 128 == L_WKV

F_W, F_WQ, F_RED, F_WO0, F_WO0R, F_WO1, F_OX, F_NONCE = 0, 1, 2, 3, 4, 5, 6, 7
F_AX0, F_AT0, F_AK0, F_ACV, F_AF = 8, 10, 12, 14, 15

LOG2E = 1.4426950408889634
INV2PI = 0.15915494309189535


def f32(x):
    return "0x%08x" % struct.unpack("<I", struct.pack("<f", x))[0]


ROWS = list(range(8)) + [256, 258, 260, 262, 512, 516, 768, 772, 1024, 1280, 1536, 1792, 2048]


def bf16_round_int(x):
    if x < 256:
        return x
    e = x.bit_length() - 8
    step = 1 << e
    lo = (x >> e) << e
    rem = x - lo
    if rem * 2 < step:
        return lo
    if rem * 2 > step:
        return lo + step
    return lo if ((lo >> e) & 1) == 0 else lo + step


def t_index(p):
    for c, r in enumerate(ROWS):
        if p >= r and (p - r) % 8 == 0 and (p - r) // 8 < 32:
            if p < 256 and c < 8:
                return c, (p - r) // 8
            if 256 <= p < 512 and 8 <= c < 12:
                return c, (p - r) // 8
            if 512 <= p < 1024 and 12 <= c < 16:
                return c, (p - r) // 8
            if 1024 <= p < 2048 and 16 <= c < 20:
                return c, (p - r) // 8
            if p == 2048 and c == 20:
                return c, 0
    raise ValueError(p)


def gather_table():
    tab = np.zeros((4, 3, 64, 8), np.uint16)
    for a in range(4):
        tb = L_T + 2048 * (a >> 1)
        zero_addr = tb + 0 * 64 + 31 * 2
        for r in range(2):
            rho = 2 * (a & 1) + r
            for l in range(64):
                y0 = 512 * rho + 8 * l
                for m in range(12):
                    idx = 2047 - y0 - m
                    if idx < 0:
                        ad = zero_addr
                    else:
                        c, j = t_index(bf16_round_int(idx))
                        ad = tb + j * 64 + c * 2
                    k = r * 12 + m
                    tab[a, k // 8, l, k % 8] = ad
    return tab


class Gen:
    def __init__(self, opts):
        self.A = Asm()
        self.o = opts

    def signal(self, flag, vtmp_addr, vtmp_one):
        A = self.A
        A(f"v_mov_b32 v{vtmp_addr}, {L_FLAG + 4 * flag}" if isinstance(flag, int) else f"v_mov_b32 v{vtmp_addr}, {flag}")
        A(f"v_mov_b32 v{vtmp_one}, 1")
        A("s_mov_b64 exec, 1")
        A(f"ds_add_u32 v{vtmp_addr}, v{vtmp_one}")
        A("s_mov_b64 exec, -1")

    def wait_flag(self, flag, count, vtmp_addr, vtmp, stmp=90):
        A = self.A
        L = A.uid("Lw")
        Ld = A.uid("Lwd")
        A(f"v_mov_b32 v{vtmp_addr}, {L_FLAG + 4 * flag}" if isinstance(flag, int) else f"v_mov_b32 v{vtmp_addr}, {flag}")
        A(f"s_mov_b32 s{stmp + 1}, 0")
        A.label(L)
        A(f"ds_read_b32 v{vtmp}, v{vtmp_addr}")
        A(f"s_add_u32 s{stmp + 1}, s{stmp + 1}, 1")
        A(f"s_cmp_gt_u32 s{stmp + 1}, 0x40000")
        A(f"s_cbranch_scc1 {Ld}")
        A("s_waitcnt lgkmcnt(0)")
        A(f"v_readfirstlane_b32 s{stmp}, v{vtmp}")
        A(f"s_cmp_lt_u32 s{stmp}, {count}")
        A(f"s_cbranch_scc1 {L}")
        A.label(Ld)
        A("s_waitcnt lgkmcnt(0)")

    def srd(self, sd, sptr, nbytes):
        A = self.A
        A(f"s_mov_b32 s{sd}, s{sptr}")
        A(f"s_and_b32 s{sd + 1}, s{sptr + 1}, 0xffff")
        A(f"s_mov_b32 s{sd + 2}, {nbytes}")
        A(f"s_mov_b32 s{sd + 3}, 0x00020000")

    def stamp(self, i):
        if self.o.get("stamps"):
            self.A(f"s_memtime s[{64 + 2 * i}:{65 + 2 * i}]")

    def dump_stamps(self, n):
        if not self.o.get("stamps"):
            return
        A = self.A
        A("s_waitcnt lgkmcnt(0)")
        A("s_lshl_b32 s90, s2, 3")
        A("s_add_u32 s90, s90, s30")
        A("s_lshl_b32 s90, s90, 7")
        A(f"s_add_u32 s90, s90, {WS_DBG}")
        A("v_mov_b32 v2, s90")
        A("s_mov_b64 exec, 1")
        for i in range(n):
            A(f"s_sub_u32 s91, s{64 + 2 * i}, s62")
            A("v_mov_b32 v3, s91")
            A(f"global_store_dword v2, v3, s[28:29] offset:{4 * i}")
        A("v_mov_b32 v3, s60")
        A(f"global_store_dword v2, v3, s[28:29] offset:{4 * 15}")
        A("s_mov_b64 exec, -1")

    def cmul(self, d, z, w, t):
        A = self.A
        A(f"v_pk_mul_f32 v[{t}:{t + 1}], v[{z}:{z + 1}], v[{w}:{w + 1}] op_sel:[0,0] op_sel_hi:[0,1]")
        return f"v_pk_fma_f32 v[{d}:{d + 1}], v[{z}:{z + 1}], v[{w}:{w + 1}], v[{t}:{t + 1}] op_sel:[1,1,0] op_sel_hi:[1,0,1] neg_lo:[0,1,0]"

    def prologue(self):
        A = self.A
        A("s_cmp_ge_u32 s2, 256")
        A("s_cbranch_scc1 L_end")
        if self.o.get("stamps"):
            A("s_memtime s[62:63]")
            A("s_memrealtime s[60:61]")
        A("s_load_dwordx16 s[4:19], s[0:1], 0")
        A("s_load_dwordx8 s[20:27], s[0:1], 64")
        A("s_load_dwordx2 s[28:29], s[0:1], 96")
        A("v_and_b32 v1, 63, v0")
        A("v_lshrrev_b32 v2, 6, v0")
        A("s_and_b32 s31, s2, 7")
        A("v_readfirstlane_b32 s30, v2")
        A("s_lshr_b32 s32, s2, 3")
        A("s_getpc_b64 s[34:35]")
        A.label("L_pc0")
        A("s_cmp_lt_u32 s30, 4")
        A("s_cbranch_scc0 L_teamA")

    def teamB(self):
        A = self.A
        o = self.o
        VL = 1
        vW, vX, vXR, vTR = 2, 3, 7, 11
        XF, AK, AV, AQ, WF = 16, 128, 144, 160, 176
        T = 192
        sX, sW, sWO = 36, 40, 44
        s_rb, s_h, s_rot, s_xo, s_wo_, s_par = 48, 49, 50, 51, 52, 53
        s_t0, s_t1, s_t2, s_slot = 54, 55, 56, 57
        A("s_cmp_eq_u32 s30, 0")
        A("s_cbranch_scc0 L_b_noz")
        A(f"v_lshlrev_b32 v2, 2, v{VL}")
        A("v_and_b32 v2, 127, v2")
        A("v_mov_b32 v3, 0")
        A(f"ds_write_b32 v2, v3 offset:{L_FLAG}")
        A.label("L_b_noz")
        A(f"s_lshr_b32 s{s_rb}, s31, 1")
        A(f"s_lshl_b32 s{s_rb}, s{s_rb}, 2")
        A(f"s_and_b32 s{s_t0}, s32, 3")
        A(f"s_add_u32 s{s_rb}, s{s_rb}, s{s_t0}")
        A(f"s_and_b32 s{s_h}, s31, 1")
        A(f"s_lshl_b32 s{s_h}, s{s_h}, 3")
        A(f"s_lshr_b32 s{s_t1}, s32, 2")
        A(f"s_add_u32 s{s_h}, s{s_h}, s{s_t1}")
        A(f"s_lshl_b32 s{s_t0}, s{s_t0}, 1")
        A(f"s_add_u32 s{s_rot}, s{s_t0}, s{s_t1}")
        A(f"s_cmp_ge_u32 s{s_rot}, 7")
        A(f"s_cselect_b32 s{s_t0}, 7, 0")
        A(f"s_sub_u32 s{s_rot}, s{s_rot}, s{s_t0}")
        A(f"v_lshrrev_b32 v{vW}, 2, v{VL}")
        A(f"v_mul_u32_u24 v{vW}, 2688, v{vW}")
        A(f"v_and_b32 v{T}, 3, v{VL}")
        A(f"v_lshl_add_u32 v{vW}, v{T}, 4, v{vW}")
        A(f"s_and_b32 s{s_par}, s{s_h}, 1")
        A(f"s_lshl_b32 s{s_par}, s{s_par}, 3")
        A(f"s_mul_i32 s{s_wo_}, s{s_h}, 56")
        A(f"s_sub_u32 s{s_wo_}, s{s_wo_}, s{s_par}")
        A(f"s_mul_i32 s{s_t0}, s30, 7")
        A(f"s_lshl_b32 s{s_t1}, s{s_rot}, 2")
        A(f"s_add_u32 s{s_t0}, s{s_t0}, s{s_t1}")
        A(f"s_cmp_ge_u32 s{s_t0}, 28")
        A(f"s_cselect_b32 s{s_t1}, 28, 0")
        A(f"s_sub_u32 s{s_t0}, s{s_t0}, s{s_t1}")
        A(f"s_mul_i32 s58, s{s_t0}, 43008")
        A(f"s_mul_i32 s{s_t2}, s30, 7168")
        A(f"s_add_u32 s{s_t2}, s{s_t2}, {L_WKV}")
        A("s_waitcnt lgkmcnt(0)")
        self.srd(sW, 20, 448 * 2688)
        self.srd(sX, 18, 2048 * 896)
        self.srd(4, 28, 0x10000000)
        self.srd(8, 24, 2048 * 1792)
        A(f"s_mov_b32 s{s_t0}, s58")
        for i in range(7):
            A(f"s_add_u32 s{s_t1}, s{s_t0}, s{s_wo_}")
            A(f"s_add_u32 s{s_t1}, s{s_t1}, 896")
            A(f"s_add_u32 m0, s{s_t2}, {i * 1024}")
            A(f"s_add_u32 s59, s{s_t1}, 896")
            A(f"buffer_load_dwordx4 v{vW}, s[{sW}:{sW + 3}], s{s_t1} offen lds")
            A(f"s_add_u32 m0, s{s_t2}, {i * 1024 + 28672}")
            A(f"s_add_u32 s{s_t0}, s{s_t0}, 43008")
            A(f"buffer_load_dwordx4 v{vW}, s[{sW}:{sW + 3}], s59 offen lds")
            if i < 6:
                A(f"s_cmp_ge_u32 s{s_t0}, {28 * 43008}")
                A(f"s_cselect_b32 s{s_t0}, 0, s{s_t0}")
        A(f"v_lshrrev_b32 v{T}, 3, v{VL}")
        A(f"v_mul_u32_u24 v{T}, 896, v{T}")
        A(f"v_lshrrev_b32 v{T + 1}, 4, v{VL}")
        A(f"v_and_b32 v{T + 2}, 7, v{VL}")
        A(f"v_xor_b32 v{T + 1}, v{T + 1}, v{T + 2}")
        A(f"v_lshl_add_u32 v{vX}, v{T + 1}, 4, v{T}")
        A(f"v_xor_b32 v{T + 1}, 4, v{T + 1}")
        A(f"v_lshl_add_u32 v{vX + 1}, v{T + 1}, 4, v{T}")
        A(f"v_add_u32 v{vX + 1}, {8 * 896}, v{vX + 1}")
        A(f"v_add_u32 v{vX + 2}, {16 * 896}, v{vX}")
        A(f"v_add_u32 v{vX + 3}, {16 * 896}, v{vX + 1}")
        A(f"s_lshl_b32 s{s_t0}, s{s_rb}, 2")
        A(f"s_add_u32 s{s_t0}, s{s_t0}, s30")
        A(f"s_mul_i32 s61, s{s_t0}, {32 * 896}" if not o.get("stamps") else f"s_mul_i32 s96, s{s_t0}, {32 * 896}")
        s_xb = 61 if not o.get("stamps") else 96
        A(f"s_lshl_b32 s{s_xo}, s{s_rot}, 7")
        A(f"s_mul_i32 s{s_slot}, s30, 12288")
        A(f"s_add_u32 s{s_slot}, s{s_slot}, {L_XR}")

        def issue_x(slot):
            A(f"s_add_u32 s{s_t1}, s{s_xb}, s{s_xo}")
            for i in range(4):
                A(f"s_add_u32 m0, s{s_slot}, {slot * 4096 + i * 1024}")
                if i == 0:
                    A(f"s_add_u32 s{s_xo}, s{s_xo}, 128")
                elif i == 1:
                    A(f"s_cmp_ge_u32 s{s_xo}, 896")
                elif i == 2:
                    pass
                A(f"buffer_load_dwordx4 v{vX + i}, s[{sX}:{sX + 3}], s{s_t1} offen lds")
                if i == 1:
                    A(f"s_cselect_b32 s{s_xo}, 0, s{s_xo}")
        def issue_x(slot):
            A(f"s_add_u32 s{s_t1}, s{s_xb}, s{s_xo}")
            A(f"s_add_u32 s{s_xo}, s{s_xo}, 128")
            A(f"s_cmp_ge_u32 s{s_xo}, 896")
            A(f"s_cselect_b32 s{s_xo}, 0, s{s_xo}")
            for i in range(4):
                A(f"s_add_u32 m0, s{s_slot}, {slot * 4096 + i * 1024}")
                A(f"buffer_load_dwordx4 v{vX + i}, s[{sX}:{sX + 3}], s{s_t1} offen lds")
        for p in range(3):
            issue_x(p)
        self.stamp(0)
        A(f"v_and_b32 v{T}, 31, v{VL}")
        A(f"v_lshrrev_b32 v{T + 1}, 3, v{T}")
        A(f"v_lshlrev_b32 v{T + 1}, 10, v{T + 1}")
        A(f"v_and_b32 v{T + 2}, 7, v{T}")
        A(f"v_lshl_add_u32 v{T + 1}, v{T + 2}, 7, v{T + 1}")
        A(f"v_add_u32 v{T + 1}, s{s_slot}, v{T + 1}")
        A(f"v_bfe_u32 v{T + 2}, v{T}, 1, 3")
        A(f"v_lshrrev_b32 v{T + 3}, 5, v{VL}")
        A(f"v_xor_b32 v{T + 2}, v{T + 2}, v{T + 3}")
        for t in range(4):
            A(f"v_xor_b32 v{T + 3}, {2 * t}, v{T + 2}")
            A(f"v_lshl_add_u32 v{vXR + t}, v{T + 3}, 4, v{T + 1}")
        A(f"v_lshrrev_b32 v{T}, 5, v{VL}")
        A(f"v_lshlrev_b32 v{T}, 3, v{T}")
        A(f"v_bfe_u32 v{T + 1}, v{VL}, 2, 2")
        A(f"v_add_lshl_u32 v{T}, v{T}, v{T + 1}, 6")
        A(f"v_bfe_u32 v{T + 1}, v{VL}, 4, 1")
        A(f"v_lshl_add_u32 v{T}, v{T + 1}, 5, v{T}")
        A(f"v_and_b32 v{T + 1}, 3, v{VL}")
        A(f"v_lshl_add_u32 v{T}, v{T + 1}, 3, v{T}")
        A(f"v_add_u32 v{T}, s{s_par}, v{T}")
        A(f"v_add_u32 v{vTR}, {L_WKV}, v{T}")
        A(f"v_add_u32 v12, {L_XR + 4096}, v{T}")
        A(f"s_mov_b32 s{s_t0}, {f32(1e-6)}")
        for i in range(16):
            A(f"v_mov_b32 v{AK + i}, s{s_t0}")
            A(f"v_mov_b32 v{AQ + i}, s{s_t0}")
        A("s_waitcnt lgkmcnt(0)")
        A("s_barrier")
        A("s_waitcnt vmcnt(12)")
        self.signal(F_W, T, T + 1)
        self.stamp(1)

        def tr_kv(ks, buf):
            b = WF + 8 * buf
            off = ks * 1024
            A(f"ds_read_b64_tr_b16 v[{b}:{b + 1}], v{vTR} offset:{off}")
            A(f"ds_read_b64_tr_b16 v[{b + 2}:{b + 3}], v{vTR} offset:{off + 256}")
            A(f"ds_read_b64_tr_b16 v[{b + 4}:{b + 5}], v{vTR} offset:{off + 28672}")
            A(f"ds_read_b64_tr_b16 v[{b + 6}:{b + 7}], v{vTR} offset:{off + 28672 + 256}")

        def issue_wq(lo, hi):
            for i in range(lo, hi):
                A(f"s_add_u32 s{s_t1}, s58, s{s_wo_}")
                A(f"s_add_u32 s58, s58, 43008")
                A(f"s_cmp_ge_u32 s58, {28 * 43008}")
                A(f"s_cselect_b32 s58, 0, s58")
                A(f"s_add_u32 m0, s{s_slot}, {4096 + i * 1024}")
                A(f"buffer_load_dwordx4 v{vW}, s[{sW}:{sW + 3}], s{s_t1} offen lds")

        for p in range(7):
            A(f"s_waitcnt vmcnt({7 if p == 6 else 8})")
            for t in range(4):
                r = XF + 4 * (4 * p + t)
                A(f"ds_read_b128 v[{r}:{r + 3}], v{vXR + t} offset:{(p % 3) * 4096}")
            if p == 0:
                self.wait_flag(F_W, 4, T, T + 1)
                self.stamp(2)
            tr_kv(4 * p, 0)
            A("s_waitcnt lgkmcnt(4)")
            if p + 3 <= 6:
                issue_x(p % 3)
            elif p == 4:
                issue_wq(0, 4)
            elif p == 5:
                issue_wq(4, 7)
            for t in range(4):
                ks = 4 * p + t
                if t < 3:
                    tr_kv(ks + 1, (t + 1) & 1)
                    A("s_waitcnt lgkmcnt(4)")
                else:
                    A("s_waitcnt lgkmcnt(0)")
                b = WF + 8 * (t & 1)
                x = XF + 4 * ks
                A(f"v_mfma_f32_32x32x16_bf16 v[{AK}:{AK + 15}], v[{x}:{x + 3}], v[{b}:{b + 3}], v[{AK}:{AK + 15}]")
                cv = "0" if ks == 0 else f"v[{AV}:{AV + 15}]"
                A(f"v_mfma_f32_32x32x16_bf16 v[{AV}:{AV + 15}], v[{x}:{x + 3}], v[{b + 4}:{b + 7}], {cv}")
        self.stamp(3)
        PK, PV = T, T + 8
        E = T + 16
        A(f"s_mov_b32 s{s_t0}, {f32(LOG2E)}")
        A(f"s_mov_b32 s{s_t1}, {f32(1e-6)}")

        def phi(acc, dst):
            for i in range(16):
                A(f"v_mul_f32 v{E + i}, s{s_t0}, v{acc + i}")
            for i in range(16):
                A(f"v_exp_f32 v{E + i}, v{E + i} clamp")
                A(f"v_max_f32 v{acc + i}, s{s_t1}, v{acc + i}")
            for i in range(8):
                A(f"v_pk_add_f32 v[{acc + 2 * i}:{acc + 2 * i + 1}], v[{acc + 2 * i}:{acc + 2 * i + 1}], v[{E + 2 * i}:{E + 2 * i + 1}]")
            for i in range(8):
                A(f"v_cvt_pk_bf16_f32 v{dst + i}, v{acc + 2 * i}, v{acc + 2 * i + 1}")
        A(f"v_and_b32 v{E}, 31, v{VL}")
        A(f"v_cmp_eq_u32 vcc, 28, v{E}")
        phi(AK, PK)
        A(f"v_mov_b32 v{E}, 0x3f803f80")
        for i in range(8):
            A(f"v_cvt_pk_bf16_f32 v{PV + i}, v{AV + 2 * i}, v{AV + 2 * i + 1}")
        for i in range(8):
            A(f"v_cndmask_b32 v{PV + i}, v{PV + i}, v{E}, vcc")
        A(f"v_mfma_f32_32x32x16_bf16 v[{AK}:{AK + 15}], v[{PK}:{PK + 3}], v[{PV}:{PV + 3}], 0")
        A(f"v_mfma_f32_32x32x16_bf16 v[{AK}:{AK + 15}], v[{PK + 4}:{PK + 7}], v[{PV + 4}:{PV + 7}], v[{AK}:{AK + 15}]")
        A(f"v_lshlrev_b32 v{E}, 4, v{VL}")
        A(f"v_add_u32 v{E}, s{s_slot}, v{E}")
        A(f"v_lshrrev_b32 v{E + 1}, 3, v{VL}")
        A(f"s_lshl_b32 s{s_t2}, s30, 3")
        A(f"v_add_u32 v{E + 1}, s{s_t2}, v{E + 1}")
        A(f"v_bfe_u32 v{E + 2}, v{VL}, 2, 1")
        A(f"v_lshl_add_u32 v{E + 2}, v{E + 2}, 5, v{E + 1}")
        A(f"v_lshlrev_b32 v{E + 2}, 4, v{E + 2}")
        A(f"v_and_b32 v{E + 3}, 3, v{VL}")
        A(f"v_lshl_add_u32 v{E + 2}, v{E + 3}, 10, v{E + 2}")
        A(f"v_add_u32 v{E + 2}, {L_XR}, v{E + 2}")
        for g in range(4):
            A(f"ds_write_b128 v{E}, v[{AK + 4 * g}:{AK + 4 * g + 3}] offset:{g * 1024}")
        A("s_waitcnt vmcnt(0)")
        self.signal(F_RED, E + 4, E + 5)
        self.wait_flag(F_NONCE, 1, E + 4, E + 5)
        A("s_mov_b32 s33, s90")
        self.wait_flag(F_RED, 4, E + 4, E + 5)
        for w in range(4):
            A(f"ds_read_b128 v[{AV + 4 * w}:{AV + 4 * w + 3}], v{E + 2} offset:{w * 12288}")
        vWO = 13
        self.srd(sWO, 22, 448 * 896)
        A(f"v_lshrrev_b32 v{E + 4}, 4, v{VL}")
        A(f"v_bfe_u32 v{E + 5}, v{VL}, 2, 2")
        A(f"v_xor_b32 v{E + 5}, v{E + 5}, v{E + 4}")
        A(f"v_mul_u32_u24 v{vWO}, 896, v{E + 4}")
        A(f"v_lshl_add_u32 v{vWO}, v{E + 5}, 6, v{vWO}")
        A(f"v_and_b32 v{E + 5}, 3, v{VL}")
        A(f"v_lshl_add_u32 v{vWO}, v{E + 5}, 4, v{vWO}")
        s_q4, s_rb2, s_wog = 92, 93, 94
        A(f"s_and_b32 s{s_q4}, s32, 3")
        A(f"s_lshl_b32 s{s_rb2}, s31, 3")
        A(f"s_lshr_b32 s{s_t2}, s32, 2")
        A(f"s_add_u32 s{s_rb2}, s{s_rb2}, s{s_t2}")
        A(f"s_mul_i32 s{s_wog}, s30, {56 * 896}")
        A(f"s_lshl_b32 s{s_t2}, s{s_q4}, 8")
        A(f"s_add_u32 s{s_wog}, s{s_wog}, s{s_t2}")
        A(f"s_mul_i32 s95, s30, 14336")
        A(f"s_add_u32 s95, s95, {L_WKV}")

        def issue_wo(half):
            for i in range(14):
                A(f"s_add_u32 s{s_t2}, s{s_wog}, {half * 224 * 896 + i * 4 * 896}")
                A(f"s_add_u32 m0, s95, {i * 1024}")
                A(f"buffer_load_dwordx4 v{vWO}, s[{sWO}:{sWO + 3}], s{s_t2} offen lds")
        A("s_waitcnt lgkmcnt(0)")
        for k in range(2):
            A(f"v_pk_add_f32 v[{AV + 2 * k}:{AV + 2 * k + 1}], v[{AV + 2 * k}:{AV + 2 * k + 1}], v[{AV + 4 + 2 * k}:{AV + 5 + 2 * k}]")
            A(f"v_pk_add_f32 v[{AV + 8 + 2 * k}:{AV + 9 + 2 * k}], v[{AV + 8 + 2 * k}:{AV + 9 + 2 * k}], v[{AV + 12 + 2 * k}:{AV + 13 + 2 * k}]")
        for k in range(2):
            A(f"v_pk_add_f32 v[{AV + 2 * k}:{AV + 2 * k + 1}], v[{AV + 2 * k}:{AV + 2 * k + 1}], v[{AV + 8 + 2 * k}:{AV + 9 + 2 * k}]")
        A(f"v_and_b32 v{E + 4}, 7, v{VL}")
        A(f"v_cmp_eq_u32 vcc, 7, v{E + 4}")
        A(f"v_cvt_pk_bf16_f32 v{E + 6}, v{AV}, v{AV + 1}")
        A(f"v_cvt_pk_bf16_f32 v{E + 7}, v{AV + 2}, v{AV + 3}")
        A(f"v_cndmask_b32 v{E + 6}, v{E + 6}, 0, vcc")
        A(f"v_cndmask_b32 v{E + 7}, v{E + 7}, 0, vcc")
        A(f"v_xor_b32 v{E + 4}, v{E + 6}, v{E + 7}")
        A(f"v_xor_b32_dpp v{E + 4}, v{E + 4}, v{E + 4} quad_perm:[1,0,3,2] row_mask:0xf bank_mask:0xf")
        A(f"v_xor_b32_dpp v{E + 4}, v{E + 4}, v{E + 4} quad_perm:[2,3,0,1] row_mask:0xf bank_mask:0xf")
        A(f"v_xor_b32_dpp v{E + 4}, v{E + 4}, v{E + 4} row_half_mirror row_mask:0xf bank_mask:0xf")
        A(f"v_xor_b32 v{E + 4}, s33, v{E + 4}")
        A(f"v_cndmask_b32 v{E + 6}, v{E + 6}, v{E + 4}, vcc")
        A(f"s_lshl_b32 s{s_t2}, s{s_h}, 4")
        A(f"s_add_u32 s{s_t2}, s{s_t2}, s{s_rb}")
        A(f"s_lshl_b32 s{s_t2}, s{s_t2}, 2")
        A(f"s_add_u32 s{s_t2}, s{s_t2}, s30")
        A(f"s_lshl_b32 s{s_t2}, s{s_t2}, 9")
        A(f"v_lshlrev_b32 v{E + 5}, 3, v{VL}")
        A(f"v_add_u32 v{E + 5}, s{s_t2}, v{E + 5}")
        A(f"buffer_store_dwordx2 v[{E + 6}:{E + 7}], v{E + 5}, s[4:7], 0 offen sc1")
        self.stamp(4)
        issue_wo(0)
        def tr_q(ks, buf):
            b = WF + 4 * buf
            off = (ks // 7) * 12288 + (ks % 7) * 1024
            A(f"ds_read_b64_tr_b16 v[{b}:{b + 1}], v12 offset:{off}")
            A(f"ds_read_b64_tr_b16 v[{b + 2}:{b + 3}], v12 offset:{off + 256}")
        tr_q(0, 0)
        tr_q(1, 1)
        tr_q(2, 2)
        for ks in range(28):
            if ks + 3 < 28:
                tr_q(ks + 3, (ks + 3) & 3)
                A("s_waitcnt lgkmcnt(6)")
            else:
                A(f"s_waitcnt lgkmcnt({2 * (27 - ks)})")
            b = WF + 4 * (ks & 3)
            x = XF + 4 * ks
            A(f"v_mfma_f32_32x32x16_bf16 v[{AQ}:{AQ + 15}], v[{b}:{b + 3}], v[{x}:{x + 3}], v[{AQ}:{AQ + 15}]")
        phi(AQ, PK)
        A(f"v_cmp_lt_u32 s[98:99], 31, v{VL}")
        A(f"v_cndmask_b32 v{PK + 6}, v{PK + 6}, 0, s[98:99]")
        A(f"v_cndmask_b32 v{PK + 7}, v{PK + 7}, 0, s[98:99]")

        def xor8(dst, src):
            A(f"v_bitop3_b32 v{dst}, v{src}, v{src + 1}, v{src + 2} bitop3:0x96")
            A(f"v_bitop3_b32 v{dst}, v{dst}, v{src + 3}, v{src + 4} bitop3:0x96")
            A(f"v_bitop3_b32 v{dst}, v{dst}, v{src + 5}, v{src + 6} bitop3:0x96")
            A(f"v_xor_b32 v{dst}, v{dst}, v{src + 7}")
        xor8(E, PK)
        A(f"v_mov_b32 v{E + 1}, v{E}")
        A(f"v_permlane32_swap_b32 v{E}, v{E + 1}")
        A(f"v_bitop3_b32 v{E}, v{E}, v{E + 1}, s33 bitop3:0x96")
        A(f"v_cndmask_b32 v{PK + 6}, v{PK + 6}, v{E}, s[98:99]")
        A(f"s_lshl_b32 s{s_t2}, s{s_rb}, 2")
        A(f"s_add_u32 s{s_t2}, s{s_t2}, s30")
        A(f"s_lshl_b32 s{s_t2}, s{s_t2}, 4")
        A(f"s_add_u32 s{s_t2}, s{s_t2}, s{s_h}")
        A(f"s_lshl_b32 s{s_t2}, s{s_t2}, 11")
        A(f"s_add_u32 s{s_t2}, s{s_t2}, {WS_PQ}")
        A(f"v_lshlrev_b32 v14, 4, v{VL}")
        A(f"v_add_u32 v{E + 2}, s{s_t2}, v14")
        A(f"buffer_store_dwordx4 v[{PK}:{PK + 3}], v{E + 2}, s[4:7], 0 offen sc1")
        A(f"buffer_store_dwordx4 v[{PK + 4}:{PK + 7}], v{E + 2}, s[4:7], 0 offen offset:1024 sc1")
        self.stamp(5)
        vE_, vO_, vM_ = 2, 3, 4
        A(f"v_bfe_u32 v{E}, v{VL}, 2, 2")
        A(f"v_xor_b32 v{E + 1}, s30, v{E}")
        A(f"v_lshlrev_b32 v{E + 1}, 6, v{E + 1}")
        A(f"v_lshl_add_u32 v{E + 1}, v{E}, 8, v{E + 1}")
        A(f"v_bfe_u32 v{E}, v{VL}, 4, 1")
        A(f"v_lshl_add_u32 v{E + 1}, v{E}, 5, v{E + 1}")
        A(f"v_and_b32 v{E}, 3, v{VL}")
        A(f"v_lshl_add_u32 v{E + 1}, v{E}, 3, v{E + 1}")
        A(f"v_add_u32 v{E + 1}, {L_WKV}, v{E + 1}")
        A(f"v_lshrrev_b32 v{E}, 5, v{VL}")
        A(f"v_lshl_add_u32 v{vE_}, v{E}, 10, v{E + 1}")
        A(f"v_xor_b32 v{E + 3}, 1, v{E}")
        A(f"v_lshl_add_u32 v{vO_}, v{E + 3}, 10, v{E + 1}")
        A(f"v_mul_u32_u24 v{E + 3}, {28 * 256}, v{E}")
        A(f"v_add_u32 v{vM_}, v{E + 3}, v{E + 1}")

        def wo_frags(half):
            for pp in range(4):
                fb = 56 * pp
                seq = [(vE_, fb + 0), (vE_, fb + 8), (vE_, fb + 16), (vM_, fb + 24), (vO_, fb + 28), (vO_, fb + 36), (vO_, fb + 44)]
                for i, (va, row) in enumerate(seq):
                    r = XF + 2 * (28 * half + 7 * pp + i)
                    A(f"ds_read_b64_tr_b16 v[{r}:{r + 1}], v{va} offset:{row * 256}")
                    if i % 7 == 6:
                        A("s_waitcnt lgkmcnt(7)")
        A("s_waitcnt vmcnt(2)")
        self.signal(F_WO0, E, E + 1)
        self.wait_flag(F_WO0, 4, E, E + 1)
        wo_frags(0)
        A("s_waitcnt lgkmcnt(0)")
        self.signal(F_WO0R, E, E + 1)
        self.wait_flag(F_WO0R, 4, E, E + 1)
        issue_wo(1)
        self.stamp(6)
        A("s_cmp_eq_u32 s30, 0")
        A("s_cbranch_scc0 L_b_nored")
        R0 = 128
        A(f"v_lshrrev_b32 v{E}, 3, v{VL}")
        A(f"v_lshlrev_b32 v{E}, 11, v{E}")
        A(f"v_and_b32 v{E + 1}, 7, v{VL}")
        A(f"v_lshl_add_u32 v{E}, v{E + 1}, 4, v{E}")
        A(f"s_lshl_b32 s{s_t2}, s{s_h}, 15")
        A(f"s_lshl_b32 s{s_t1}, s{s_rb}, 7")
        A(f"s_add_u32 s{s_t2}, s{s_t2}, s{s_t1}")
        A(f"v_add_u32 v{E}, s{s_t2}, v{E}")
        A(f"v_add_u32 v{E + 2}, 0x4000, v{E}")
        A("s_mov_b32 s91, 0")
        A.label("L_b_rpoll")
        A(f"buffer_load_dwordx4 v[{R0}:{R0 + 3}], v{E}, s[4:7], 0 offen sc1")
        A(f"buffer_load_dwordx4 v[{R0 + 4}:{R0 + 7}], v{E + 2}, s[4:7], 0 offen sc1")
        A("s_add_u32 s91, s91, 1")
        A("s_cmp_gt_u32 s91, 0x4000")
        A("s_cbranch_scc1 L_b_rdone")
        A("s_waitcnt vmcnt(0)")
        for k in range(2):
            A(f"v_bitop3_b32 v{E + 3 + k}, v{R0 + 4 * k}, v{R0 + 4 * k + 1}, v{R0 + 4 * k + 2} bitop3:0x96")
            A(f"v_xor_b32 v{E + 3 + k}, v{E + 3 + k}, v{R0 + 4 * k + 3}")
        for k in range(2):
            A(f"v_xor_b32_dpp v{E + 3 + k}, v{E + 3 + k}, v{E + 3 + k} quad_perm:[1,0,3,2] row_mask:0xf bank_mask:0xf")
        for k in range(2):
            A(f"v_xor_b32_dpp v{E + 3 + k}, v{E + 3 + k}, v{E + 3 + k} quad_perm:[2,3,0,1] row_mask:0xf bank_mask:0xf")
        A(f"v_xor_b32 v{E + 3}, s33, v{E + 3}")
        A(f"v_xor_b32 v{E + 4}, s33, v{E + 4}")
        A(f"v_or_b32 v{E + 3}, v{E + 3}, v{E + 4}")
        A(f"v_cmp_ne_u32 vcc, 0, v{E + 3}")
        A("s_cbranch_vccnz L_b_rpoll")
        A.label("L_b_rdone")
        A("s_waitcnt vmcnt(0)")
        self.stamp(7)
        S0 = 144
        A(f"s_mov_b32 s{s_t1}, 0xffff0000")
        for i in range(4):
            A(f"v_lshlrev_b32 v{S0 + 2 * i}, 16, v{R0 + i}")
            A(f"v_and_b32 v{S0 + 2 * i + 1}, s{s_t1}, v{R0 + i}")
            A(f"v_lshlrev_b32 v{S0 + 8 + 2 * i}, 16, v{R0 + 4 + i}")
            A(f"v_and_b32 v{S0 + 8 + 2 * i + 1}, s{s_t1}, v{R0 + 4 + i}")
        for i in range(4):
            A(f"v_pk_add_f32 v[{S0 + 2 * i}:{S0 + 2 * i + 1}], v[{S0 + 2 * i}:{S0 + 2 * i + 1}], v[{S0 + 8 + 2 * i}:{S0 + 9 + 2 * i}]")
        for i in range(4):
            A(f"v_permlane32_swap_b32 v{S0 + i}, v{S0 + 4 + i}")
        for i in range(2):
            A(f"v_pk_add_f32 v[{S0 + 2 * i}:{S0 + 2 * i + 1}], v[{S0 + 2 * i}:{S0 + 2 * i + 1}], v[{S0 + 4 + 2 * i}:{S0 + 5 + 2 * i}]")
        for i in range(2):
            A(f"v_permlane16_swap_b32 v{S0 + i}, v{S0 + 2 + i}")
        A(f"v_pk_add_f32 v[{S0}:{S0 + 1}], v[{S0}:{S0 + 1}], v[{S0 + 2}:{S0 + 3}]")
        A(f"v_add_f32_dpp v{S0}, v{S0}, v{S0} row_ror:8 row_mask:0xf bank_mask:0xf")
        A(f"v_add_f32_dpp v{S0 + 1}, v{S0 + 1}, v{S0 + 1} row_ror:8 row_mask:0xf bank_mask:0xf")
        A(f"v_cvt_pk_bf16_f32 v{S0}, v{S0}, v{S0 + 1}")
        A(f"v_and_b32 v{E + 1}, 0x23, v{VL}")
        A(f"v_cmp_eq_u32 vcc, 0x23, v{E + 1}")
        A(f"v_cndmask_b32 v{S0}, v{S0}, 0, vcc")
        A(f"v_xor_b32_dpp v{S0 + 2}, v{S0}, v{S0} quad_perm:[1,0,3,2] row_mask:0xf bank_mask:0xf")
        A(f"v_xor_b32_dpp v{S0 + 2}, v{S0 + 2}, v{S0 + 2} quad_perm:[2,3,0,1] row_mask:0xf bank_mask:0xf")
        A(f"v_mov_b32 v{S0 + 3}, v{S0 + 2}")
        A(f"v_permlane32_swap_b32 v{S0 + 2}, v{S0 + 3}")
        A(f"v_xor_b32 v{S0 + 2}, v{S0 + 2}, v{S0 + 3}")
        A(f"v_mov_b32 v{S0 + 3}, v{S0 + 2}")
        A(f"v_permlane16_swap_b32 v{S0 + 2}, v{S0 + 3}")
        A(f"v_bitop3_b32 v{S0 + 2}, v{S0 + 2}, v{S0 + 3}, s33 bitop3:0x96")
        A(f"v_and_b32 v{E + 1}, 0x33, v{VL}")
        A(f"v_cmp_eq_u32 vcc, 0x23, v{E + 1}")
        A(f"v_cndmask_b32 v{S0}, v{S0}, v{S0 + 2}, vcc")
        A(f"v_and_b32 v{E + 1}, 1, v{VL}")
        A(f"v_lshlrev_b32 v{E + 1}, 10, v{E + 1}")
        A(f"v_bfe_u32 v{E + 2}, v{VL}, 1, 1")
        A(f"v_lshl_add_u32 v{E + 1}, v{E + 2}, 9, v{E + 1}")
        A(f"v_bfe_u32 v{E + 2}, v{VL}, 2, 1")
        A(f"v_lshl_add_u32 v{E + 1}, v{E + 2}, 4, v{E + 1}")
        A(f"v_lshrrev_b32 v{E + 2}, 4, v{VL}")
        A(f"v_lshl_add_u32 v{E + 1}, v{E + 2}, 2, v{E + 1}")
        A(f"s_lshl_b32 s{s_t2}, s{s_h}, 11")
        A(f"s_lshl_b32 s{s_t1}, s{s_rb}, 5")
        A(f"s_add_u32 s{s_t2}, s{s_t2}, s{s_t1}")
        A(f"s_add_u32 s{s_t2}, s{s_t2}, {WS_KV}")
        A(f"v_add_u32 v{E + 1}, s{s_t2}, v{E + 1}")
        A("s_mov_b32 exec_lo, 0x00ff00ff")
        A("s_mov_b32 exec_hi, 0x00ff00ff")
        A(f"buffer_store_dword v{S0}, v{E + 1}, s[4:7], 0 offen sc1")
        A("s_mov_b64 exec, -1")
        A.label("L_b_nored")
        PQ, KV = 128, 160
        A(f"s_lshl_b32 s{s_t2}, s{s_rb2}, 4")
        A(f"s_lshl_b32 s{s_t1}, s30, 2")
        A(f"s_add_u32 s{s_t2}, s{s_t2}, s{s_t1}")
        A(f"s_lshl_b32 s{s_t2}, s{s_t2}, 11")
        A(f"s_add_u32 s{s_t2}, s{s_t2}, {WS_PQ}")
        A(f"v_add_u32 v5, s{s_t2}, v14")
        A(f"v_add_u32 v6, 4096, v5")

        def poll8(name, base, va0, va1, vb0, vb1):
            A("s_mov_b32 s91, 0")
            A.label(f"L_{name}")
            for hh in range(4):
                v_ = (va0, vb0, va1, vb1)[hh]
                for st in range(2):
                    r = base + 8 * hh + 4 * st
                    A(f"buffer_load_dwordx4 v[{r}:{r + 3}], v{v_}, s[4:7], 0 offen offset:{(hh & 1) * 2048 + st * 1024} sc1")
            A("s_add_u32 s91, s91, 1")
            A("s_cmp_gt_u32 s91, 0x4000")
            A(f"s_cbranch_scc1 L_{name}_d")
            for hh in range(4):
                A(f"s_waitcnt vmcnt({6 - 2 * hh})")
                xor8(E + 2 * hh, base + 8 * hh)
                A(f"v_mov_b32 v{E + 2 * hh + 1}, v{E + 2 * hh}")
            for hh in range(4):
                A(f"v_permlane32_swap_b32 v{E + 2 * hh}, v{E + 2 * hh + 1}")
            for hh in range(4):
                A(f"v_bitop3_b32 v{E + 2 * hh}, v{E + 2 * hh}, v{E + 2 * hh + 1}, s33 bitop3:0x96")
            A(f"v_or3_b32 v{E}, v{E}, v{E + 2}, v{E + 4}")
            A(f"v_or_b32 v{E}, v{E}, v{E + 6}")
            A(f"v_cmp_ne_u32 vcc, 0, v{E}")
            A(f"s_cbranch_vccnz L_{name}")
            A.label(f"L_{name}_d")
            A("s_waitcnt vmcnt(0)")
            for hh in range(4):
                A(f"v_cndmask_b32 v{base + 8 * hh + 6}, v{base + 8 * hh + 6}, 0, s[98:99]")
                A(f"v_cndmask_b32 v{base + 8 * hh + 7}, v{base + 8 * hh + 7}, 0, s[98:99]")
        poll8("b_pq", PQ, 5, 6, 5, 6)
        self.signal(F_WO1, E, E + 1)
        self.wait_flag(F_WO1, 4, E, E + 1)
        wo_frags(1)
        self.stamp(8)
        A(f"s_lshl_b32 s{s_t2}, s30, 13")
        A(f"s_add_u32 s{s_t2}, s{s_t2}, {WS_KV}")
        A(f"v_add_u32 v5, s{s_t2}, v14")
        A(f"v_add_u32 v6, 4096, v5")
        A(f"v_xor_b32 v7, 64, v5")
        A(f"v_xor_b32 v8, 64, v6")
        poll8("b_kv", KV, 5, 6, 7, 8)
        self.stamp(9)
        NE, NO = 192, 208
        OP = 224
        A(f"s_mov_b32 s{s_t1}, {f32(1e-6)}")
        for pp in range(2):
            for (acc, hh) in ((NE, 2 * pp), (NO, 2 * pp + 1)):
                a, b = KV + 8 * hh, PQ + 8 * hh
                A(f"v_mfma_f32_32x32x16_bf16 v[{acc}:{acc + 15}], v[{a}:{a + 3}], v[{b}:{b + 3}], 0")
                A(f"v_mfma_f32_32x32x16_bf16 v[{acc}:{acc + 15}], v[{a + 4}:{a + 7}], v[{b + 4}:{b + 7}], v[{acc}:{acc + 15}]")
            A(f"v_cndmask_b32 v10, v{NO + 12}, v{NE + 12}, s[98:99]")
            A(f"v_add_f32 v10, s{s_t1}, v10")
            A("v_rcp_f32 v10, v10")
            A("v_mov_b32 v8, v10")
            A("v_permlane32_swap_b32 v10, v8")
            for j in range(4):
                A(f"v_cndmask_b32 v{NE + 12 + j}, v{NE + 12 + j}, v{NO + 12 + j}, s[98:99]")
            A("v_cndmask_b32 v6, v8, v10, s[98:99]")
            for i in range(6):
                A(f"v_pk_mul_f32 v[{NE + 2 * i}:{NE + 2 * i + 1}], v[{NE + 2 * i}:{NE + 2 * i + 1}], v[8:9] op_sel_hi:[1,0]")
            for i in range(6, 8):
                A(f"v_pk_mul_f32 v[{NE + 2 * i}:{NE + 2 * i + 1}], v[{NE + 2 * i}:{NE + 2 * i + 1}], v[6:7] op_sel_hi:[1,0]")
            for i in range(6):
                A(f"v_pk_mul_f32 v[{NO + 2 * i}:{NO + 2 * i + 1}], v[{NO + 2 * i}:{NO + 2 * i + 1}], v[10:11] op_sel_hi:[1,0]")
            for i in range(8):
                A(f"v_cvt_pk_bf16_f32 v{OP + 14 * pp + i}, v{NE + 2 * i}, v{NE + 2 * i + 1}")
            for i in range(6):
                A(f"v_cvt_pk_bf16_f32 v{OP + 14 * pp + 8 + i}, v{NO + 2 * i}, v{NO + 2 * i + 1}")
        A(f"s_mul_i32 s{s_t2}, s30, 7168")
        A(f"s_add_u32 s{s_t2}, s{s_t2}, {L_XR}")
        A(f"v_add_u32 v5, s{s_t2}, v14")
        for i in range(7):
            A(f"ds_write_b128 v5, v[{OP + 4 * i}:{OP + 4 * i + 3}] offset:{i * 1024}")
        self.signal(F_OX, 6, 7)
        A(f"v_add_u32 v5, {L_XR}, v14")
        self.wait_flag(F_OX, 4, 6, 7)
        self.stamp(10)
        OB = 128
        AO = 192
        NB = 8
        for ks in range(NB - 1):
            A(f"ds_read_b128 v[{OB + 4 * ks}:{OB + 4 * ks + 3}], v5 offset:{ks * 1024}")
        for ks in range(28):
            n = ks + NB - 1
            if n < 28:
                r = OB + 4 * (n % NB)
                A(f"ds_read_b128 v[{r}:{r + 3}], v5 offset:{n * 1024}")
                A(f"s_waitcnt lgkmcnt({NB - 1})")
            else:
                A(f"s_waitcnt lgkmcnt({27 - ks})")
            r = OB + 4 * (ks % NB)
            a = XF + 4 * ks
            c = "0" if ks == 0 else f"v[{AO}:{AO + 15}]"
            A(f"v_mfma_f32_32x32x16_bf16 v[{AO}:{AO + 15}], v[{a}:{a + 3}], v[{r}:{r + 3}], {c}")
        A(f"s_mul_i32 s{s_t2}, s30, 2560")
        A(f"s_add_u32 s{s_t2}, s{s_t2}, {L_XR + 28672}")
        A(f"v_and_b32 v6, 31, v{VL}")
        A(f"v_mul_u32_u24 v6, 80, v6")
        A(f"v_lshrrev_b32 v7, 5, v{VL}")
        A(f"v_lshl_add_u32 v6, v7, 3, v6")
        A(f"v_add_u32 v6, s{s_t2}, v6")
        A(f"v_lshrrev_b32 v7, 2, v{VL}")
        A(f"v_mul_u32_u24 v8, 80, v7")
        A(f"v_and_b32 v9, 3, v{VL}")
        A(f"v_lshl_add_u32 v8, v9, 4, v8")
        A(f"v_add_u32 v8, s{s_t2}, v8")
        A(f"v_mul_u32_u24 v7, 1792, v7")
        A(f"v_lshl_add_u32 v7, v9, 4, v7")
        A(f"s_mul_i32 s{s_t2}, s{s_rb2}, {32 * 1792}")
        A(f"s_lshl_b32 s{s_t1}, s{s_q4}, 2")
        A(f"s_add_u32 s{s_t1}, s{s_t1}, s30")
        A(f"s_lshl_b32 s{s_t0}, s{s_t1}, 6")
        A(f"s_add_u32 s{s_t2}, s{s_t2}, s{s_t0}")
        A(f"s_add_u32 s{s_t2}, s{s_t2}, 896")
        A(f"v_add_u32 v7, s{s_t2}, v7")
        A(f"v_add_u32 v9, {16 * 1792}, v7")
        for i in range(8):
            A(f"v_cvt_pk_bf16_f32 v{OP + i}, v{AO + 2 * i}, v{AO + 2 * i + 1}")
        for g in range(4):
            A(f"ds_write_b64 v6, v[{OP + 2 * g}:{OP + 2 * g + 1}] offset:{g * 16}")
        A(f"ds_read_b128 v[{OB}:{OB + 3}], v8")
        A(f"ds_read_b128 v[{OB + 4}:{OB + 7}], v8 offset:{16 * 80}")
        A(f"s_cmp_ge_u32 s{s_t1}, 14")
        A("s_cbranch_scc1 L_b_nost")
        A("s_waitcnt lgkmcnt(1)")
        A(f"buffer_store_dwordx4 v[{OB}:{OB + 3}], v7, s[8:11], 0 offen")
        A("s_waitcnt lgkmcnt(0)")
        A(f"buffer_store_dwordx4 v[{OB + 4}:{OB + 7}], v9, s[8:11], 0 offen")
        A.label("L_b_nost")
        self.stamp(11)
        self.dump_stamps(12)
        A("s_endpgm")

    def teamA(self):
        A = self.A
        o = self.o
        VL = 1
        A.label("L_teamA")
        s_a, s_pair, s_nh, s_scr, s_d = 36, 37, 38, 39, 40
        s_t0, s_t1, s_t2 = 41, 42, 43
        sU = 44
        A(f"s_sub_u32 s{s_a}, s30, 4")
        A(f"s_lshr_b32 s{s_pair}, s{s_a}, 1")
        A(f"s_and_b32 s{s_nh}, s{s_a}, 1")
        A(f"s_mul_i32 s{s_scr}, s{s_a}, {SCR_SZ}")
        A(f"v_lshlrev_b32 v2, 4, v{VL}")
        A(f"s_mul_i32 s{s_t0}, s{s_a}, {o['pf_n'] * 1024}")
        A(f"v_add_u32 v3, s{s_t0}, v2")
        A("s_and_b32 s34, s34, 0xffffff00")
        for i in range(o["pf_n"]):
            A(f"global_load_dword v250, v3, s[34:35] offset:{(i % 4) * 1024}")
            if i % 4 == 3:
                A("v_add_u32 v3, 4096, v3")
        A(f"s_add_u32 s46, s34, gather_tab-{KNAME}")
        A(f"s_addc_u32 s47, s35, 0")
        A(f"s_mul_i32 s{s_t0}, s{s_a}, 3072")
        A(f"v_add_u32 v3, s{s_t0}, v2")
        TB = 232
        for i in range(3):
            A(f"global_load_dwordx4 v[{TB + 4 * i}:{TB + 4 * i + 3}], v3, s[46:47] offset:{i * 1024}")
        A("s_waitcnt lgkmcnt(0)")
        A("s_cmp_eq_u32 s2, 0")
        A("s_cbranch_scc0 L_a_nn")
        A("s_cmp_eq_u32 s30, 7")
        A("s_cbranch_scc0 L_a_nn")
        A("s_memrealtime s[48:49]")
        A("v_mov_b32 v4, 0")
        A("s_waitcnt lgkmcnt(0)")
        A("s_or_b32 s48, s48, 1")
        A("v_mov_b32 v5, s48")
        A("s_mov_b64 exec, 1")
        A("global_store_dword v4, v5, s[26:27] sc1")
        A("s_mov_b64 exec, -1")
        A.label("L_a_nn")
        A("s_cmp_eq_u32 s31, 7")
        A("s_cbranch_scc1 L_a_idle")
        A(f"s_lshl_b32 s{s_d}, s31, 5")
        A(f"s_add_u32 s{s_d}, s{s_d}, s32")
        A(f"s_lshl_b32 s{s_t0}, s{s_d}, 2")
        A(f"s_load_dword s50, s[14:15], s{s_t0}")
        A(f"s_load_dword s51, s[16:17], s{s_t0}")
        A(f"s_lshl_b32 s{s_d}, s{s_d}, 1")
        A(f"s_add_u32 s{s_d}, s{s_d}, s{s_pair}")
        self.srd(sU + 8, 4, 2048 * 896)
        sU = 52
        self.srd(20, 28, 0x10000000)
        self.srd(96, 24, 2048 * 1792)
        A(f"v_lshrrev_b32 v3, 3, v{VL}")
        A(f"v_mul_u32_u24 v3, 896, v3")
        A(f"v_and_b32 v4, 7, v{VL}")
        A(f"v_lshl_add_u32 v3, v4, 4, v3")
        A(f"s_lshl_b32 s{s_t0}, s32, 2")
        A(f"s_add_u32 s{s_t0}, s{s_t0}, s{s_a}")
        A(f"s_mul_i32 s{s_t0}, s{s_t0}, {16 * 896}")
        A(f"s_lshl_b32 s{s_t1}, s31, 7")
        A(f"s_add_u32 s{s_t0}, s{s_t0}, s{s_t1}")
        A(f"s_mov_b32 m0, s{s_scr}")
        A(f"s_add_u32 s{s_t1}, s{s_t0}, {8 * 896}")
        A(f"buffer_load_dwordx4 v3, s[{sU}:{sU + 3}], s{s_t0} offen lds")
        A(f"s_add_u32 m0, s{s_scr}, 1024")
        A(f"s_nop 0")
        A(f"buffer_load_dwordx4 v3, s[{sU}:{sU + 3}], s{s_t1} offen lds")
        A(f"s_lshl_b32 s{s_t0}, s{s_d}, 9")
        A(f"s_lshl_b32 s{s_t1}, s{s_nh}, 8")
        A(f"s_add_u32 s{s_t0}, s{s_t0}, s{s_t1}")
        A(f"v_lshlrev_b32 v3, 2, v{VL}")
        A(f"v_add_u32 v3, s{s_t0}, v3")
        A("global_load_dword v8, v3, s[6:7]")
        A("global_load_dword v9, v3, s[8:9]")
        A("global_load_dword v10, v3, s[10:11]")
        A("global_load_dword v11, v3, s[12:13]")
        self.stamp(0)
        A("s_barrier")
        A(f"s_mul_i32 s{s_t0}, s{s_a}, {U_PITCH}")
        A(f"s_add_u32 s{s_t0}, s{s_t0}, {L_U}")
        A(f"v_add_u32 v3, s{s_t0}, v2")
        for i in range(4):
            A(f"v_mov_b32 v{12 + i}, 0")
        A("s_mov_b32 exec_lo, 0x0fffffff")
        A("s_mov_b32 exec_hi, 0")
        A("ds_write_b128 v3, v[12:15]")
        A(f"s_lshl_b32 s{s_t0}, s{s_nh}, 28")
        A(f"s_or_b32 exec_lo, s{s_t0}, 1")
        A("ds_write_b64 v3, v[12:13]")
        A("s_mov_b64 exec, -1")
        A(f"v_bfe_u32 v3, v{VL}, 2, 2")
        A(f"v_lshlrev_b32 v3, 7, v3")
        A(f"v_lshrrev_b32 v4, 4, v{VL}")
        A(f"v_lshl_add_u32 v3, v4, 5, v3")
        A(f"v_and_b32 v4, 3, v{VL}")
        A(f"v_lshl_add_u32 v3, v4, 3, v3")
        A(f"v_add_u32 v3, s{s_scr}, v3")
        A(f"v_lshrrev_b32 v5, 2, v{VL}")
        A(f"v_mul_u32_u24 v5, {32 * 640}, v5")
        A(f"s_lshl_b32 s{s_t0}, s31, 9")
        A(f"s_add_u32 s{s_t0}, s{s_t0}, s32")
        A(f"s_mul_i32 s{s_t0}, s{s_t0}, 640")
        A(f"s_add_u32 s{s_t0}, s{s_t0}, {WS_UT}")
        A(f"v_add_u32 v5, s{s_t0}, v5")
        A(f"s_lshl_b32 s{s_t0}, s{s_a}, 4")
        A(f"v_lshl_add_u32 v6, v4, 2, v5")
        A(f"v_add_u32 v6, s{s_t0}, v6")
        A(f"s_lshl_b32 s{s_t0}, s{s_a}, 7")
        A(f"v_lshl_add_u32 v5, v4, 4, v5")
        A(f"v_add_u32 v5, s{s_t0}, v5")
        A("v_mov_b32 v7, 0")
        A("s_waitcnt vmcnt(0)")
        self.stamp(1)
        A("global_load_dword v24, v7, s[26:27] sc1")
        for k in range(4):
            A(f"ds_read_b64_tr_b16 v[{12 + 2 * k}:{13 + 2 * k}], v3 offset:{k * 512}")
        AL, TH = 26, 28
        CC = 30
        W1, W8, W256 = 34, 38, 42
        tq = 46
        A("s_waitcnt lgkmcnt(0)")
        A(f"s_lshl_b32 s{s_t0}, s{s_pair}, 4")
        A(f"s_lshr_b32 s50, s50, s{s_t0}")
        A(f"s_lshl_b32 s50, s50, 16")
        A(f"s_lshr_b32 s51, s51, s{s_t0}")
        A(f"s_lshl_b32 s51, s51, 16")
        A(f"s_mov_b32 s{s_t1}, {f32(LOG2E)}")
        A(f"s_mov_b32 s{s_t2}, 0xffff0000")
        A(f"v_mov_b32 v{tq}, s50")
        A(f"v_mul_f32 v{tq}, s{s_t1}, v{tq}")
        A(f"v_lshlrev_b32 v{tq + 1}, 16, v8")
        A(f"v_and_b32 v{tq + 2}, s{s_t2}, v8")
        A(f"v_exp_f32 v{tq}, v{tq}")
        A(f"v_mul_f32 v{tq + 1}, s{s_t1}, v{tq + 1}")
        A(f"v_mul_f32 v{tq + 2}, s{s_t1}, v{tq + 2}")
        A(f"v_exp_f32 v{tq + 1}, v{tq + 1}")
        A(f"v_exp_f32 v{tq + 2}, v{tq + 2}")
        A(f"v_cvt_pk_bf16_f32 v{tq}, v{tq}, v{tq}")
        A(f"v_and_b32 v{tq}, s{s_t2}, v{tq}")
        A(f"v_cvt_pk_bf16_f32 v{tq + 1}, v{tq + 1}, v{tq + 2}")
        A(f"v_readfirstlane_b32 s50, v{tq}")
        A(f"v_lshlrev_b32 v{AL}, 16, v{tq + 1}")
        A(f"v_and_b32 v{AL + 1}, s{s_t2}, v{tq + 1}")
        A(f"v_lshlrev_b32 v{TH}, 16, v9")
        A(f"v_and_b32 v{TH + 1}, s{s_t2}, v9")
        for i in range(2):
            A(f"v_mul_f32 v{AL + i}, v{tq}, v{AL + i}")
            A(f"v_mul_f32 v{TH + i}, v{tq}, v{TH + i}")
        for i in range(2):
            A(f"v_mul_f32 v{AL + i}, {f32(-LOG2E)}, v{AL + i}")
            A(f"v_mul_f32 v{TH + i}, {f32(INV2PI)}, v{TH + i}")
        A(f"v_lshlrev_b32 v{CC}, 16, v10")
        A(f"v_and_b32 v{CC + 2}, s{s_t2}, v10")
        A(f"v_xor_b32 v11, 0x80008000, v11")
        A(f"v_lshlrev_b32 v{CC + 1}, 16, v11")
        A(f"v_and_b32 v{CC + 3}, s{s_t2}, v11")
        A("v_bitop3_b32 v20, v12, v13, v14 bitop3:0x96")
        A("v_bitop3_b32 v20, v20, v15, v16 bitop3:0x96")
        A("v_bitop3_b32 v20, v20, v17, v18 bitop3:0x96")
        A("v_xor_b32 v20, v20, v19")
        A("buffer_store_dwordx4 v[12:15], v5, s[20:23], 0 offen sc1")
        A("buffer_store_dwordx4 v[16:19], v5, s[20:23], 0 offen offset:64 sc1")

        def wdirect(dst, m, conj):
            for i in range(2):
                a, t = tq + 4 * i, tq + 4 * i + 1
                if m == 1:
                    A(f"v_exp_f32 v{a}, v{AL + i}")
                    A(f"v_fract_f32 v{t}, v{TH + i}")
                else:
                    A(f"v_mul_f32 v{a}, {f32(float(m))}, v{AL + i}")
                    A(f"v_mul_f32 v{t}, {f32(float(m))}, v{TH + i}")
                    A(f"v_exp_f32 v{a}, v{a}")
                    A(f"v_fract_f32 v{t}, v{t}")
            for i in range(2):
                a, t = tq + 4 * i, tq + 4 * i + 1
                A(f"v_cos_f32 v{tq + 4 * i + 2}, v{t}")
                A(f"v_sin_f32 v{tq + 4 * i + 3}, v{t}")
            for i in range(2):
                a = tq + 4 * i
                neg = " neg_hi:[1,0]" if conj else ""
                A(f"v_pk_mul_f32 v[{dst + 2 * i}:{dst + 2 * i + 1}], v[{a + 2}:{a + 3}], v[{a}:{a + 1}] op_sel_hi:[1,0]{neg}")
        wdirect(W1, 1, True)
        self.get_nonce(24, 7, first_loaded=True, vm=2)
        A("v_xor_b32 v20, s33, v20")
        A("buffer_store_dword v20, v6, s[20:23], 0 offen offset:512 sc1")
        A(f"s_cmp_eq_u32 s{s_a}, 0")
        A("s_cbranch_scc0 L_a_nl")
        A(f"v_mov_b32 v21, {L_FLAG + 4 * F_NONCE}")
        A("v_mov_b32 v22, s33")
        A("ds_write_b32 v21, v22")
        A.label("L_a_nl")
        self.stamp(2)
        wdirect(W256, 256, True)
        wdirect(W8, 8, False)
        vSW, vSR = 2, 3
        A(f"v_lshlrev_b32 v{vSW}, 3, v{VL}")
        A(f"v_add_u32 v{vSW}, s{s_scr}, v{vSW}")
        A(f"v_and_b32 v{vSR}, 15, v{VL}")
        A(f"v_mul_u32_u24 v{vSR}, {SCR_PITCH}, v{vSR}")
        A(f"v_lshrrev_b32 v4, 4, v{VL}")
        A(f"v_lshl_add_u32 v{vSR}, v4, 4, v{vSR}")
        A(f"v_add_u32 v{vSR}, s{s_scr}, v{vSR}")
        XS = 64
        PKB = 8
        tm = 16
        self._pk = 0

        def emit_val(src, row):
            b = PKB + 2 * (self._pk & 3)
            self._pk += 1
            A(f"v_cvt_pk_bf16_f32 v{b}, v{src}, v{src + 1}")
            A(f"v_cvt_pk_bf16_f32 v{b + 1}, v{src + 2}, v{src + 3}")
            A(f"ds_write_b64 v{vSW}, v[{b}:{b + 1}] offset:{row * SCR_PITCH}")

        def cm2(dst, src, w):
            f0 = self.cmul(dst, src, w, tm)
            f1 = self.cmul(dst + 2, src + 2, w + 2, tm + 2)
            A(f0)
            A(f1)
        AF0, AF1, BF = 128, 160, 192
        ACC = 112
        slot = lambda k: XS + 4 * k
        emit_val(CC, 0)
        prev = CC
        for c in range(1, 8):
            cm2(slot(c), prev, W1)
            emit_val(slot(c), c)
            prev = slot(c)
        src_of = {8: CC, 9: slot(2), 10: slot(4), 11: slot(6)}
        loc = {}
        free = [slot(1), slot(3), slot(5), slot(7), slot(0), slot(8), slot(9), slot(10)]
        for c in range(8, 12):
            loc[c] = free.pop(0)
            cm2(loc[c], src_of[c], W256)
            emit_val(loc[c], c)
        for c, s_ in ((12, 8), (13, 10), (14, 12), (15, 13)):
            loc[c] = free.pop(0)
            cm2(loc[c], loc[s_], W256)
            emit_val(loc[c], c)
        for k in range(8):
            A(f"ds_read_b128 v[{AF0 + 4 * k}:{AF0 + 4 * k + 3}], v{vSR} offset:{64 * k}")
        prev = loc[14]
        pp = [slot(2), slot(4)]
        for c in range(16, 21):
            dst = pp[c & 1]
            cm2(dst, prev, W256)
            emit_val(dst, c - 16)
            prev = dst
        for k in range(8):
            A(f"ds_read_b128 v[{AF1 + 4 * k}:{AF1 + 4 * k + 3}], v{vSR} offset:{64 * k}")
        A(f"v_mov_b32 v{PKB}, 0x3f80")
        A(f"v_mov_b32 v{PKB + 1}, 0x3f80")
        A(f"ds_write_b64 v{vSW}, v[{PKB}:{PKB + 1}]")
        self._pk = 1
        emit_val(W8, 1)
        prev = W8
        pp = [slot(6), slot(7)]

        def mf(ct):
            for k in range(8):
                for rt, af in ((0, AF0), (1, AF1)):
                    acc = ACC + 8 * rt + 4 * ct
                    c = "0" if k == 0 else f"v[{acc}:{acc + 3}]"
                    yield f"v_mfma_f32_16x16x32_bf16 v[{acc}:{acc + 3}], v[{af + 4 * k}:{af + 4 * k + 3}], v[{BF + 4 * k}:{BF + 4 * k + 3}], {c}"
        for j in range(2, 16):
            dst = pp[j & 1]
            cm2(dst, prev, W8)
            emit_val(dst, j)
            prev = dst
        for k in range(8):
            A(f"ds_read_b128 v[{BF + 4 * k}:{BF + 4 * k + 3}], v{vSR} offset:{64 * k}")
        g0 = mf(0)
        for j in range(16, 32):
            dst = pp[j & 1]
            cm2(dst, prev, W8)
            emit_val(dst, j - 16)
            prev = dst
            if j == 18:
                A("s_waitcnt lgkmcnt(3)")
            if j >= 18:
                for _ in range(2 if j < 20 else 1):
                    A(next(g0))
        for rest in g0:
            A(rest)
        BF2 = 64 - 0
        for k in range(8):
            A(f"ds_read_b128 v[{BF + 4 * k}:{BF + 4 * k + 3}], v{vSR} offset:{64 * k}")
        A(f"v_lshrrev_b32 v4, 3, v{VL}")
        A(f"v_mul_u32_u24 v4, 640, v4")
        A(f"s_lshl_b32 s{s_t0}, s31, 4")
        A(f"s_lshr_b32 s{s_t1}, s32, 1")
        A(f"s_add_u32 s{s_t0}, s{s_t0}, s{s_t1}")
        A(f"s_lshl_b32 s{s_t0}, s{s_t0}, 2")
        A(f"s_add_u32 s{s_t0}, s{s_t0}, s{s_a}")
        A(f"s_mul_i32 s{s_t0}, s{s_t0}, {8 * 640}")
        A(f"s_add_u32 s{s_t0}, s{s_t0}, {WS_UT}")
        A(f"v_add_u32 v4, s{s_t0}, v4")
        A(f"s_and_b32 s{s_t1}, s32, 1")
        A(f"s_lshl_b32 s{s_t1}, s{s_t1}, 1")
        A(f"v_and_b32 v5, 1, v{VL}")
        A(f"v_add_u32 v5, s{s_t1}, v5")
        A(f"v_bfe_u32 v6, v{VL}, 1, 2")
        A(f"v_lshl_add_u32 v7, v6, 2, v5")
        A(f"v_lshl_add_u32 v7, v7, 2, v4")
        A(f"v_lshl_add_u32 v5, v6, 3, v5")
        A(f"v_lshl_add_u32 v4, v5, 4, v4")
        UD = 20
        A(f"buffer_load_dwordx4 v[{UD}:{UD + 3}], v4, s[20:23], 0 offen sc1")
        A(f"buffer_load_dwordx4 v[{UD + 4}:{UD + 7}], v4, s[20:23], 0 offen offset:64 sc1")
        A(f"buffer_load_dword v{UD + 8}, v7, s[20:23], 0 offen offset:512 sc1")
        A("s_waitcnt lgkmcnt(0)")
        for m_ in mf(1):
            A(m_)
        self.stamp(3)
        A(f"s_cmp_eq_u32 s{s_nh}, 0")
        A("s_cselect_b64 s[56:57], -1, 0")
        KP, GV = 64, 72
        for rt in range(2):
            for r in range(4):
                a0, a1 = ACC + 8 * rt + r, ACC + 8 * rt + 4 + r
                A(f"v_cndmask_b32 v{KP + 4 * rt + r}, v{a1}, v{a0}, s[56:57]")
                A(f"v_cndmask_b32 v{GV + 4 * rt + r}, v{a0}, v{a1}, s[56:57]")
        A(f"v_lshlrev_b32 v8, 4, v{VL}")
        A(f"v_add_u32 v9, s{s_scr}, v8")
        A(f"ds_write_b128 v9, v[{GV}:{GV + 3}]")
        A(f"ds_write_b128 v9, v[{GV + 4}:{GV + 7}] offset:1024")
        A(f"s_lshl_b32 s58, s{s_pair}, 2")
        A(f"s_add_u32 s58, s58, {L_FLAG + 4 * F_AX0}")
        self.signal("s58", 10, 11)
        A(f"s_xor_b32 s{s_t0}, s{s_a}, 1")
        A(f"s_mul_i32 s{s_t0}, s{s_t0}, {SCR_SZ}")
        A(f"v_add_u32 v9, s{s_t0}, v8")
        A(f"v_and_b32 v12, 15, v{VL}")
        A(f"v_lshlrev_b32 v12, 6, v12")
        A(f"v_lshrrev_b32 v13, 4, v{VL}")
        A(f"v_lshl_add_u32 v12, v13, 3, v12")
        A(f"s_lshl_b32 s{s_t0}, s{s_a}, 10")
        A(f"s_add_u32 s{s_t0}, s{s_t0}, {L_T}")
        A(f"v_add_u32 v12, s{s_t0}, v12")
        self.wait_flag("s58", 2, 10, 11)
        A(f"ds_read_b128 v[{GV}:{GV + 3}], v9")
        A(f"ds_read_b128 v[{GV + 4}:{GV + 7}], v9 offset:1024")
        A(f"v_add_f32 v14, s50, s50" if False else "v_mov_b32 v14, s50")
        A("v_add_f32 v14, v14, v14")
        A(f"v_cmp_eq_u32 vcc, 0, v{VL}")
        A("s_and_b64 vcc, vcc, s[56:57]")
        A("v_mov_b32 v16, s51")
        A("v_cndmask_b32 v16, 0, v16, vcc")
        A(f"v_cmp_eq_u32 s[48:49], 48, v{VL}")
        A("s_waitcnt lgkmcnt(0)")
        for i in range(4):
            A(f"v_pk_add_f32 v[{KP + 2 * i}:{KP + 2 * i + 1}], v[{KP + 2 * i}:{KP + 2 * i + 1}], v[{GV + 2 * i}:{GV + 2 * i + 1}]")
        for i in range(4):
            A(f"v_pk_mul_f32 v[{KP + 2 * i}:{KP + 2 * i + 1}], v[{KP + 2 * i}:{KP + 2 * i + 1}], v[14:15] op_sel_hi:[1,0]")
        A(f"v_add_f32 v{KP}, v{KP}, v16")
        A(f"v_cndmask_b32 v{KP + 7}, v{KP + 7}, 0, s[48:49]")
        for i in range(4):
            A(f"v_cvt_pk_bf16_f32 v{GV + i}, v{KP + 2 * i}, v{KP + 2 * i + 1}")
        A(f"ds_write_b64 v12, v[{GV}:{GV + 1}]")
        A(f"ds_write_b64 v12, v[{GV + 2}:{GV + 3}] offset:32")
        A(f"s_add_u32 s58, s58, {4 * (F_AT0 - F_AX0)}")
        self.signal("s58", 10, 11)
        GA = 128
        for i in range(12):
            A(f"v_and_b32 v{GA + 2 * i}, 0xffff, v{TB + i}")
            A(f"v_lshrrev_b32 v{GA + 2 * i + 1}, 16, v{TB + i}")
        A("s_mov_b32 s91, 0")
        A("s_branch L_a_uchk")
        A.label("L_a_upoll")
        A(f"buffer_load_dwordx4 v[{UD}:{UD + 3}], v4, s[20:23], 0 offen sc1")
        A(f"buffer_load_dwordx4 v[{UD + 4}:{UD + 7}], v4, s[20:23], 0 offen offset:64 sc1")
        A(f"buffer_load_dword v{UD + 8}, v7, s[20:23], 0 offen offset:512 sc1")
        A.label("L_a_uchk")
        A("s_add_u32 s91, s91, 1")
        A("s_cmp_gt_u32 s91, 0x4000")
        A("s_cbranch_scc1 L_a_udone")
        A("s_waitcnt vmcnt(0)")
        A(f"v_bitop3_b32 v10, v{UD}, v{UD + 1}, v{UD + 2} bitop3:0x96")
        A(f"v_bitop3_b32 v10, v10, v{UD + 3}, v{UD + 4} bitop3:0x96")
        A(f"v_bitop3_b32 v10, v10, v{UD + 5}, v{UD + 6} bitop3:0x96")
        A(f"v_bitop3_b32 v10, v10, v{UD + 7}, v{UD + 8} bitop3:0x96")
        A("v_cmp_ne_u32 vcc, s33, v10")
        A("s_cbranch_vccnz L_a_upoll")
        A.label("L_a_udone")
        A("s_waitcnt vmcnt(0)")
        self.stamp(4)
        A(f"v_and_b32 v10, 1, v{VL}")
        A(f"v_mul_u32_u24 v10, {2 * U_PITCH}, v10")
        A(f"v_lshrrev_b32 v11, 1, v{VL}")
        A(f"v_lshl_add_u32 v10, v11, 5, v10")
        A(f"s_lshl_b32 s{s_t0}, s{s_a}, 10")
        A(f"s_add_u32 s{s_t0}, s{s_t0}, {L_U + 448}")
        A(f"v_add_u32 v10, s{s_t0}, v10")
        A(f"ds_write_b128 v10, v[{UD}:{UD + 3}]")
        A(f"ds_write_b128 v10, v[{UD + 4}:{UD + 7}] offset:16")
        for k in range(4):
            A(f"ds_write_b64 v10, v[{UD + 2 * k}:{UD + 2 * k + 1}] offset:{U_PITCH + 8 + 8 * k}")
        self.wait_flag("s58", 2, 10, 11)
        P = 64
        for r in range(2):
            for m in range(11):
                A(f"ds_read_u16 v{P + 12 * r + m}, v{GA + 12 * r + m}")
                if m == 7:
                    A("s_waitcnt lgkmcnt(6)")
        A(f"s_mul_i32 s{s_t0}, s{s_pair}, {2 * SCR_SZ}")
        A(f"s_lshl_b32 s{s_t1}, s{s_nh}, 11")
        A(f"s_add_u32 s{s_t1}, s{s_t1}, s{s_t0}")
        A(f"v_add_u32 v9, s{s_t1}, v8")
        QQ = 88
        for r in range(2):
            p = P + 12 * r
            A(f"s_waitcnt lgkmcnt({11 if r == 0 else 4})")
            for sc in range(4):
                q = QQ + 16 * r + 4 * sc
                for k in range(4):
                    m = 3 - sc + 2 * k
                    A(f"v_lshl_or_b32 v{q + k}, v{p + m + 1}, 16, v{p + m}")
            for sc in range(4):
                q = QQ + 16 * r + 4 * sc
                A(f"ds_write_b128 v9, v[{q}:{q + 3}] offset:{r * 1024 + sc * KC_PITCH}")
        A(f"v_lshrrev_b32 v10, 2, v{VL}")
        A(f"v_mul_u32_u24 v10, {KC_PITCH}, v10")
        A(f"v_and_b32 v11, 3, v{VL}")
        A(f"v_lshl_add_u32 v10, v11, 4, v10")
        A(f"v_add_u32 v10, s{s_t0}, v10")
        for i in range(4):
            A(f"v_mov_b32 v{12 + i}, 0")
        A("s_mov_b64 exec, 0xffff")
        A("ds_write_b128 v10, v[12:15] offset:4096")
        A("s_mov_b64 exec, -1")
        self.signal(F_AK0, 10, 11)
        vA, vB = 2, 3
        A(f"v_and_b32 v4, 3, v{VL}")
        A(f"v_mul_u32_u24 v{vA}, {KC_PITCH}, v4")
        A(f"v_lshrrev_b32 v4, 4, v{VL}")
        A(f"v_bfe_u32 v5, v{VL}, 2, 2")
        A(f"v_sub_u32 v5, v4, v5")
        A(f"v_lshl_add_u32 v{vA}, v5, 4, v{vA}")
        A(f"s_add_u32 s{s_t0}, s{s_t0}, {2 * (2040 - 1792)}")
        A(f"v_add_u32 v{vA}, s{s_t0}, v{vA}")
        A(f"v_and_b32 v5, 1, v{VL}")
        A(f"v_xor_b32 v5, 1, v5")
        A(f"v_mul_u32_u24 v{vB}, {U_PITCH}, v5")
        A(f"v_lshl_add_u32 v{vB}, v4, 4, v{vB}")
        A(f"v_bfe_u32 v5, v{VL}, 1, 3")
        A(f"v_lshl_add_u32 v{vB}, v5, 6, v{vB}")
        A(f"s_mul_i32 s{s_t0}, s{s_pair}, {2 * U_PITCH}")
        A(f"s_add_u32 s{s_t0}, s{s_t0}, {L_U + 448}")
        A(f"v_add_u32 v{vB}, s{s_t0}, v{vB}")
        CA = 64
        for i in range(20):
            A(f"v_mov_b32 v{CA + i}, 0")
        self.wait_flag(F_AK0, 4, 10, 11)
        self.stamp(5)
        if o.get("dumpA"):
            A(f"v_lshlrev_b32 v10, 4, v{VL}")
            A(f"s_mul_i32 s{s_t0}, s{s_a}, 14336")
            A(f"v_add_u32 v10, s{s_t0}, v10")
            A(f"s_lshl_b32 s{s_t0}, s2, 16")
            A(f"s_add_u32 s{s_t0}, s{s_t0}, {WS_DBG}")
            A(f"v_add_u32 v11, s{s_t0}, v10")
            for i in range(14):
                A(f"ds_read_b128 v[12:15], v10 offset:{i * 1024}")
                A("s_waitcnt lgkmcnt(0)")
                A(f"buffer_store_dwordx4 v[12:15], v11, s[20:23], 0 offen")
                A("v_add_u32 v11, 1024, v11")
                A("s_waitcnt vmcnt(0)")
        A(f"s_cmp_eq_u32 s{s_nh}, 0")
        A("s_cbranch_scc0 L_a_conv1")
        self.conv("c0", [7, 6, 2], vA, vB, CA)
        A("s_branch L_a_convd")
        A.label("L_a_conv1")
        self.conv("c1", [5, 4, 3, 1, 0], vA, vB, CA)
        A.label("L_a_convd")
        self.stamp(7)
        self.signal(F_ACV, 10, 11)
        A(f"v_lshrrev_b32 v4, 4, v{VL}")
        A(f"v_mul_u32_u24 v4, 384, v4")
        A(f"s_lshl_b32 s{s_t0}, s31, 5")
        A(f"s_add_u32 s{s_t0}, s{s_t0}, s32")
        A(f"s_lshl_b32 s{s_t0}, s{s_t0}, 2")
        A(f"s_add_u32 s{s_t0}, s{s_t0}, s{s_a}")
        A(f"s_mul_i32 s{s_t0}, s{s_t0}, {8 * 384}")
        A(f"s_add_u32 s{s_t0}, s{s_t0}, {WS_YT}")
        A(f"v_add_u32 v4, s{s_t0}, v4")
        A(f"v_and_b32 v5, 15, v{VL}")
        A(f"v_lshl_add_u32 v6, v5, 2, v4")
        A(f"v_lshl_add_u32 v4, v5, 4, v4")
        FP = 144
        A(f"v_lshrrev_b32 v7, 3, v{VL}")
        A(f"v_mul_u32_u24 v7, {FP}, v7")
        A(f"v_and_b32 v5, 7, v{VL}")
        A(f"v_lshl_add_u32 v7, v5, 4, v7")
        A(f"s_mul_i32 s{s_t0}, s{s_a}, {16 * FP}")
        A(f"v_add_u32 v7, s{s_t0}, v7")
        A(f"v_lshrrev_b32 v8, 4, v{VL}")
        A(f"v_lshlrev_b32 v8, 3, v8")
        A(f"v_bfe_u32 v9, v{VL}, 2, 2")
        A(f"v_add_u32 v8, v8, v9")
        A(f"v_mul_u32_u24 v8, {FP}, v8")
        A(f"v_and_b32 v9, 3, v{VL}")
        A(f"v_lshl_add_u32 v8, v9, 3, v8")
        A(f"s_lshl_b32 s{s_t0}, s{s_a}, 5")
        A(f"v_add_u32 v8, s{s_t0}, v8")
        A(f"s_mul_i32 s{s_t0}, s{s_a}, {16 * FP}")
        A(f"s_add_u32 s{s_t0}, s{s_t0}, 16384")
        A(f"v_and_b32 v9, 15, v{VL}")
        A(f"v_mul_u32_u24 v9, {FP}, v9")
        A(f"v_lshrrev_b32 v12, 4, v{VL}")
        A(f"v_lshl_add_u32 v9, v12, 4, v9")
        A(f"v_add_u32 v9, s{s_t0}, v9")
        A(f"v_lshrrev_b32 v12, 3, v{VL}")
        A(f"v_mul_u32_u24 v13, {FP}, v12")
        A(f"v_lshl_add_u32 v13, v5, 4, v13")
        A(f"v_add_u32 v13, s{s_t0}, v13")
        A(f"v_mul_u32_u24 v12, 1792, v12")
        A(f"v_lshl_add_u32 v12, v5, 4, v12")
        A(f"s_lshl_b32 s{s_t0}, s32, 2")
        A(f"s_add_u32 s{s_t0}, s{s_t0}, s{s_a}")
        A(f"s_mul_i32 s{s_t0}, s{s_t0}, {16 * 1792}")
        A(f"s_lshl_b32 s{s_t1}, s31, 7")
        A(f"s_add_u32 s{s_t0}, s{s_t0}, s{s_t1}")
        A(f"v_add_u32 v12, s{s_t0}, v12")
        A(f"v_add_u32 v14, {8 * 1792}, v12")
        self.wait_flag(F_ACV, 4, 10, 11)
        A("s_mov_b32 s91, 0")
        A.label("L_a_ypoll")
        A("buffer_load_dwordx4 v[20:23], v4, s[20:23], 0 offen sc1")
        A(f"buffer_load_dwordx4 v[24:27], v4, s[20:23], 0 offen offset:{4 * 384} sc1")
        A("buffer_load_dword v28, v6, s[20:23], 0 offen offset:256 sc1")
        A(f"buffer_load_dword v29, v6, s[20:23], 0 offen offset:{256 + 4 * 384} sc1")
        A("s_add_u32 s91, s91, 1")
        A("s_cmp_gt_u32 s91, 0x4000")
        A("s_cbranch_scc1 L_a_ydone")
        A("s_waitcnt vmcnt(0)")
        A("v_bitop3_b32 v10, v20, v21, v22 bitop3:0x96")
        A("v_bitop3_b32 v11, v24, v25, v26 bitop3:0x96")
        A("v_bitop3_b32 v10, v10, v23, v28 bitop3:0x96")
        A("v_bitop3_b32 v11, v11, v27, v29 bitop3:0x96")
        A("v_xor_b32 v10, s33, v10")
        A("v_xor_b32 v11, s33, v11")
        A("v_or_b32 v10, v10, v11")
        A("v_cmp_ne_u32 vcc, 0, v10")
        A("s_cbranch_vccnz L_a_ypoll")
        A.label("L_a_ydone")
        A("s_waitcnt vmcnt(0)")
        self.stamp(8)
        A("ds_write_b128 v7, v[20:23]")
        A(f"ds_write_b128 v7, v[24:27] offset:{8 * FP}")
        self.signal(F_AF, 10, 11)
        self.wait_flag(F_AF, 4, 10, 11)
        A("ds_read_b64_tr_b16 v[20:21], v8")
        A(f"ds_read_b64_tr_b16 v[22:23], v8 offset:{4 * FP}")
        A(f"ds_read_b64_tr_b16 v[24:25], v8 offset:{32 * FP}")
        A(f"ds_read_b64_tr_b16 v[26:27], v8 offset:{36 * FP}")
        A("s_waitcnt lgkmcnt(2)")
        A("ds_write_b128 v9, v[20:23]")
        A("s_waitcnt lgkmcnt(1)")
        A("ds_write_b128 v9, v[24:27] offset:64")
        A("ds_read_b128 v[28:31], v13")
        A(f"ds_read_b128 v[32:35], v13 offset:{8 * FP}")
        A("s_waitcnt lgkmcnt(1)")
        A("buffer_store_dwordx4 v[28:31], v12, s[96:99], 0 offen")
        A("s_waitcnt lgkmcnt(0)")
        A("buffer_store_dwordx4 v[32:35], v14, s[96:99], 0 offen")
        self.stamp(9)
        self.dump_stamps(10)
        A("s_endpgm")
        A.label("L_a_idle")
        A("s_barrier")
        A(f"s_cmp_eq_u32 s{s_a}, 0")
        A("s_cbranch_scc0 L_end")
        A("v_mov_b32 v7, 0")
        self.get_nonce(24, 7, first_loaded=False, vm=0)
        A(f"v_mov_b32 v21, {L_FLAG + 4 * F_NONCE}")
        A("v_mov_b32 v22, s33")
        A("ds_write_b32 v21, v22")
        A("s_waitcnt lgkmcnt(0)")
        A("s_endpgm")

    def get_nonce(self, vd, vzero, first_loaded, vm):
        A = self.A
        L, Lc, Ld = A.uid("Ln"), A.uid("Lnc"), A.uid("Lnd")
        A("s_mov_b32 s91, 0")
        if first_loaded:
            A(f"s_waitcnt vmcnt({vm})")
            A(f"s_branch {Lc}")
        A.label(L)
        A(f"global_load_dword v{vd}, v{vzero}, s[26:27] sc1")
        A("s_waitcnt vmcnt(0)")
        A.label(Lc)
        A(f"v_readfirstlane_b32 s33, v{vd}")
        A("s_add_u32 s91, s91, 1")
        A("s_cmp_gt_u32 s91, 0x4000")
        A(f"s_cbranch_scc1 {Ld}")
        A("s_cmp_eq_u32 s33, 0")
        A(f"s_cbranch_scc1 {L}")
        A.label(Ld)
        A("s_or_b32 s33, s33, 1")

    def conv(self, name, tiles, vA, vB, CA):
        A = self.A
        VL = 1
        s_a, s_pair, s_nh = 36, 37, 38
        s_t0, s_t1 = 41, 42
        nmax = max(tiles) + 1
        FA, FB = 96, 160
        def loads(st):
            out = []
            for k in range(nmax):
                out.append(f"ds_read_b128 v[{FB + 32 * st + 4 * k}:{FB + 32 * st + 4 * k + 3}], v{vB} offset:{512 * k}")
                out.append(f"ds_read_b128 v[{FA + 32 * st + 4 * k}:{FA + 32 * st + 4 * k + 3}], v{vA} offset:{512 * (7 - k)}")
            return out
        def mfmas(st):
            out = []
            units = [(a, c - a, ti) for ti, c in enumerate(tiles) for a in range(c + 1)]
            units.sort(key=lambda u: (max(u[0], u[1]), u[2]))
            for a, cp, ti in units:
                acc = CA + 4 * ti
                fa = FA + 32 * st + 4 * a
                fb = FB + 32 * st + 4 * cp
                out.append(f"v_mfma_f32_16x16x32_bf16 v[{acc}:{acc + 3}], v[{fa}:{fa + 3}], v[{fb}:{fb + 3}], v[{acc}:{acc + 3}]")
            return out
        for l_ in loads(0):
            A(l_)
        A(f"v_subrev_u32 v{vA}, 64, v{vA}")
        A(f"v_subrev_u32 v{vB}, 64, v{vB}")
        A("s_mov_b32 s91, 0")
        A.label(f"L_{name}_loop")
        for st in range(2):
            ld = loads(1 - st)
            mf = mfmas(st)
            A("s_waitcnt lgkmcnt(0)")
            last = (st == 1)
            if last:
                A("s_cmp_eq_u32 s91, 3")
                A(f"s_cbranch_scc1 L_{name}_tail")
            for i, m_ in enumerate(mf):
                if i < len(ld):
                    A(ld[i])
                A(m_)
            A(f"v_subrev_u32 v{vA}, 64, v{vA}")
            A(f"v_subrev_u32 v{vB}, 64, v{vB}")
        A("s_add_u32 s91, s91, 1")
        A(f"s_branch L_{name}_loop")
        A.label(f"L_{name}_tail")
        for m_ in mfmas(1):
            A(m_)
        self.stamp(6)
        A(f"v_bfe_u32 v4, v{VL}, 1, 3")
        A(f"v_lshlrev_b32 v4, 6, v4")
        A(f"v_and_b32 v5, 1, v{VL}")
        A(f"v_lshl_add_u32 v4, v5, 3, v4")
        A(f"v_lshrrev_b32 v5, 4, v{VL}")
        A(f"v_lshl_add_u32 v4, v5, 4, v4")
        A(f"s_lshl_b32 s{s_t0}, s{s_a}, 10")
        A(f"s_add_u32 s{s_t0}, s{s_t0}, {L_T}")
        A(f"v_add_u32 v4, s{s_t0}, v4")
        A(f"v_lshlrev_b32 v5, 4, v{VL}")
        A(f"v_add_u32 v5, s{s_t0}, v5")
        A(f"v_bfe_u32 v6, v{VL}, 3, 2")
        A(f"v_mul_u32_u24 v6, {32 * 384}, v6")
        A(f"s_lshl_b32 s{s_t0}, s31, 10")
        A(f"s_add_u32 s{s_t0}, s{s_t0}, s32")
        A(f"s_mul_i32 s{s_t0}, s{s_t0}, 384")
        A(f"s_add_u32 s{s_t0}, s{s_t0}, {WS_YT}")
        A(f"v_add_u32 v6, s{s_t0}, v6")
        A(f"v_and_b32 v7, 7, v{VL}")
        A(f"s_lshl_b32 s{s_t0}, s{s_pair}, 3")
        A(f"v_add_u32 v7, s{s_t0}, v7")
        A(f"v_lshl_add_u32 v8, v7, 2, v6")
        A(f"v_lshl_add_u32 v6, v7, 4, v6")
        A(f"v_cmp_lt_u32 vcc, 31, v{VL}")
        TS = 4 * 32 * 384
        for k in range(0, len(tiles), 2):
            grp = list(range(k, min(k + 2, len(tiles))))
            for q, ti in enumerate(grp):
                acc = CA + 4 * ti
                A(f"v_cvt_pk_bf16_f32 v{12 + 2 * q}, v{acc}, v{acc + 1}")
                A(f"v_cvt_pk_bf16_f32 v{13 + 2 * q}, v{acc + 2}, v{acc + 3}")
                A(f"ds_write_b64 v4, v[{12 + 2 * q}:{13 + 2 * q}] offset:{q * 512}")
            D = 20 + 8 * (k // 2)
            A(f"ds_read_b128 v[{D}:{D + 3}], v5")
            c0 = tiles[grp[0]]
            c1 = tiles[grp[-1]]
            A(f"v_mov_b32 v9, {c0 * TS}")
            A(f"v_mov_b32 v10, {c1 * TS}")
            A(f"v_cndmask_b32 v9, v9, v10, vcc")
            A(f"v_add_u32 v{D + 5}, v9, v6")
            A(f"v_add_u32 v{D + 6}, v9, v8")
            A("s_waitcnt lgkmcnt(0)")
            A(f"v_bitop3_b32 v{D + 4}, v{D}, v{D + 1}, v{D + 2} bitop3:0x96")
            A(f"v_bitop3_b32 v{D + 4}, v{D + 4}, v{D + 3}, s33 bitop3:0x96")
            if len(grp) == 1:
                A("s_mov_b32 exec_hi, 0")
            A(f"buffer_store_dwordx4 v[{D}:{D + 3}], v{D + 5}, s[20:23], 0 offen sc1")
            A(f"buffer_store_dword v{D + 4}, v{D + 6}, s[20:23], 0 offen offset:256 sc1")
            if len(grp) == 1:
                A("s_mov_b32 exec_hi, -1")

    def build(self):
        A = self.A
        self.prologue()
        self.teamB()
        self.teamA()
        A.label("L_end")
        A("s_endpgm")
        body = A.finalize(verbose=True)
        tab = gather_table().reshape(-1).view(np.uint32)
        tabtxt = "\n".join(".long " + ", ".join("0x%08x" % x for x in tab[i:i + 8]) for i in range(0, len(tab), 8))
        hdr = open(os.path.join(os.path.dirname(os.path.abspath(__file__)), "header.txt")).read()
        txt = hdr + f"""; @launch grid=(256,1,1) block=(512,1,1) lds={LDS_TOTAL}
.amdgcn_target "amdgcn-amd-amdhsa--gfx950"
.text
.globl {KNAME}
.p2align 8
.type {KNAME},@function
{KNAME}:
{body}
L_code_end:
.p2align 8
.type gather_tab,@object
gather_tab:
{tabtxt}
.size gather_tab, {len(tab) * 4}
.section .rodata,"a"
.p2align 6
.amdhsa_kernel {KNAME}
  .amdhsa_next_free_vgpr 256
  .amdhsa_next_free_sgpr 102
  .amdhsa_accum_offset 256
  .amdhsa_group_segment_fixed_size 0
  .amdhsa_kernarg_size 104
  .amdhsa_user_sgpr_count 2
  .amdhsa_user_sgpr_kernarg_segment_ptr 1
  .amdhsa_system_sgpr_workgroup_id_x 1
.end_amdhsa_kernel
"""
        return txt


if __name__ == "__main__":
    import argparse
    ap = argparse.ArgumentParser()
    ap.add_argument("-o", default="concat_heads__ssm_conv_s4d__linear_attn_block__prompt.s")
    ap.add_argument("--stamps", action="store_true")
    ap.add_argument("--pf", type=int, default=6)
    ap.add_argument("--dumpA", action="store_true")
    a = ap.parse_args()
    g = Gen({"stamps": a.stamps, "pf_n": a.pf + (1 if a.stamps or a.dumpA else 0), "dumpA": a.dumpA})
    open(a.o, "w").write(g.build())
```

```python
import sys, os, struct
sys.path.insert(0, os.path.dirname(os.path.abspath(__file__)))
from asmdsl import Asm
import numpy as np

KNAME = "concat_heads__ssm_conv_s4d__linear_attn_block__prompt_kernel"

WS_PART = 0x000000
WS_KV = 0x080000
G_DELTA = 0x1000000
KV_G = G_DELTA
WS_PQ = 0x100000
WS_UT = 0x300000
WS_YT = 0x600000
YT_G = 2 * G_DELTA
T_PITCH = 56
POLL_LOCAL = 48
WS_CEN = 0x5C0000
WS_WOP = 0x540000
WOP_U = 2304
WS_DBG = 0x3000000

SCR_P2 = 1040
SCR_SZ = 8704
KC_PITCH = 4160
U_PITCH = 4576
L_FLAG = 0
L_T = 256
L_TEAM = 8448
TEAM_SZ = 53248
L_U = 34816
L_STG = L_TEAM + 2 * TEAM_SZ
L_TAB = L_STG + 4 * 4096
SLOT = 32768
L_EX = 4 * SLOT
LDS_TOTAL = 163840

F_W, F_WQ, F_RED, F_WO0, F_WO0R, F_WO1, F_OX, F_NONCE = 0, 1, 2, 3, 4, 5, 6, 7
F_AX0, F_AT0, F_AK0, F_ACV, F_AF = 8, 10, 12, 14, 15
F_WS = 16

TBR = (54, 58, 108)
LOG2E = 1.4426950408889634
INV2PI = 0.15915494309189535


def f32(x):
    return "0x%08x" % struct.unpack("<I", struct.pack("<f", x))[0]


ROWS = list(range(8)) + [256, 258, 260, 262, 512, 516, 768, 772, 1024, 1280, 1536, 1792, 2048]


def bf16_round_int(x):
    if x < 256:
        return x
    e = x.bit_length() - 8
    step = 1 << e
    lo = (x >> e) << e
    rem = x - lo
    if rem * 2 < step:
        return lo
    if rem * 2 > step:
        return lo + step
    return lo if ((lo >> e) & 1) == 0 else lo + step


def t_index(p):
    for c, r in enumerate(ROWS):
        if p >= r and (p - r) % 8 == 0 and (p - r) // 8 < 32:
            if p < 256 and c < 8:
                return c, (p - r) // 8
            if 256 <= p < 512 and 8 <= c < 12:
                return c, (p - r) // 8
            if 512 <= p < 1024 and 12 <= c < 16:
                return c, (p - r) // 8
            if 1024 <= p < 2048 and 16 <= c < 20:
                return c, (p - r) // 8
            if p == 2048 and c == 20:
                return c, 0
    raise ValueError(p)


def gather_table():
    tab = np.zeros((2, 3, 64, 8), np.uint16)
    for a in range(2):
        tb = L_T + 2048 * (a >> 1)
        zero_addr = tb + 23 * 2
        for r in range(2):
            rho = 2 * (a & 1) + r
            for l in range(64):
                y0 = 512 * rho + 8 * l
                for m in range(12):
                    idx = 2047 - y0 - m
                    if idx < 0:
                        ad = zero_addr
                    else:
                        c, j = t_index(bf16_round_int(idx))
                        ad = tb + j * T_PITCH + c * 2
                    k = r * 12 + m
                    tab[a, k // 8, l, k % 8] = ad
    return tab


class Gen:
    def __init__(self, opts):
        self.A = Asm()
        self.o = opts

    def signal(self, flag, vtmp_addr, vtmp_one, sbase="s86"):
        A = self.A
        A(f"v_mov_b32 v{vtmp_addr}, {sbase}")
        A(f"v_mov_b32 v{vtmp_one}, 1")
        A("s_mov_b64 exec, 1")
        A(f"ds_add_u32 v{vtmp_addr}, v{vtmp_one} offset:{4 * flag}")
        A("s_mov_b64 exec, -1")

    def wait_flag(self, flag, count, vtmp_addr, vtmp, sbase="s86", stmp=90):
        A = self.A
        L = A.uid("Lw")
        Ld = A.uid("Lwd")
        A(f"v_mov_b32 v{vtmp_addr}, {sbase}")
        A(f"s_mov_b32 s{stmp + 1}, 0")
        A.label(L)
        A(f"ds_read_b32 v{vtmp}, v{vtmp_addr} offset:{4 * flag}")
        A(f"s_add_u32 s{stmp + 1}, s{stmp + 1}, 1")
        A(f"s_cmp_gt_u32 s{stmp + 1}, 0x40000")
        A(f"s_cbranch_scc1 {Ld}")
        A("s_waitcnt lgkmcnt(0)")
        A(f"v_readfirstlane_b32 s{stmp}, v{vtmp}")
        A(f"s_cmp_ge_u32 s{stmp}, {count}")
        A(f"s_cbranch_scc1 {Ld}")
        if self.o.get("slp", 1):
            A(f"s_sleep {self.o.get('slp', 1)}")
        A(f"s_branch {L}")
        A.label(Ld)
        A("s_waitcnt lgkmcnt(0)")

    def srd(self, sd, sptr, nbytes):
        A = self.A
        A(f"s_mov_b32 s{sd}, s{sptr}")
        A(f"s_and_b32 s{sd + 1}, s{sptr + 1}, 0xffff")
        A(f"s_mov_b32 s{sd + 2}, {nbytes}")
        A(f"s_mov_b32 s{sd + 3}, 0x00020000")

    def stamp(self, i, fine=False):
        if self.o.get("fine") and self.inB and not fine and i >= 3:
            return
        if fine and not self.o.get("fine"):
            return
        if self.o.get("stamps"):
            self.A(f"s_memtime s[{64 + 2 * i}:{65 + 2 * i}]")

    def dump_stamps(self, n):
        if self.o.get("endstamp"):
            A = self.A
            A("s_waitcnt vmcnt(0)")
            A("s_memrealtime s[90:91]")
            A("s_and_b32 s92, s30, 4")
            A("s_add_u32 s92, s92, 4")
            A("v_mov_b32 v2, s92")
            A("s_waitcnt lgkmcnt(0)")
            A("v_mov_b32 v3, s90")
            A("s_mov_b64 exec, 1")
            A("global_atomic_umax v2, v3, s[26:27]")
            A("s_mov_b64 exec, -1")
        if not self.o.get("stamps"):
            return
        A = self.A
        A("s_waitcnt lgkmcnt(0)")
        A("s_lshl_b32 s90, s2, 3")
        A("s_add_u32 s90, s90, s30")
        A("s_lshl_b32 s90, s90, 7")
        A(f"s_add_u32 s90, s90, {WS_DBG}")
        A("v_mov_b32 v2, s90")
        A("s_mov_b64 exec, 1")
        for i in range(n):
            A(f"s_sub_u32 s91, s{64 + 2 * i}, s62")
            A("v_mov_b32 v3, s91")
            A(f"global_store_dword v2, v3, s[28:29] offset:{4 * i}")
        A("v_mov_b32 v3, s60")
        A(f"global_store_dword v2, v3, s[28:29] offset:{4 * 15}")
        A("s_mov_b64 exec, -1")

    def census_write(self, srd, v0_, v1_, st):
        A = self.A
        A(f"s_getreg_b32 s{st}, hwreg(HW_REG_XCC_ID)")
        A(f"s_and_b32 s{st}, s{st}, 15")
        A(f"s_lshl_b32 s{st}, s{st}, 4")
        A(f"s_xor_b32 s{st}, s{st}, s33")
        A(f"v_mov_b32 v{v1_}, s{st}")
        A(f"s_lshl_b32 s{st}, s31, 5")
        A(f"s_add_u32 s{st}, s{st}, s3")
        A(f"s_lshl_b32 s{st}, s{st}, 3")
        A(f"s_add_u32 s{st}, s{st}, {WS_CEN}")
        A(f"v_mov_b32 v{v0_}, s{st}")
        A(f"v_mov_b32 v{v1_ + 1}, v{v1_}")
        A("s_mov_b64 exec, 1")
        A(f"buffer_store_dwordx2 v[{v1_}:{v1_ + 1}], v{v0_}, {srd}, 0 offen")
        A("s_mov_b64 exec, -1")

    def census_load(self, srd, vd, vt, st, half):
        A = self.A
        A(f"v_and_b32 v{vt}, 15, v1")
        A(f"v_lshlrev_b32 v{vt}, 3, v{vt}")
        A(f"s_lshl_b32 s{st}, s31, 8")
        A(f"s_add_u32 s{st}, s{st}, {WS_CEN + 128 * half}")
        A(f"buffer_load_dword v{vd}, v{vt}, {srd}, s{st} offen sc1")

    def census_eval(self, vd, sdst, st):
        A = self.A
        A(f"s_getreg_b32 s{st}, hwreg(HW_REG_XCC_ID)")
        A(f"s_and_b32 s{st}, s{st}, 15")
        A(f"s_lshl_b32 s{st}, s{st}, 4")
        A(f"s_xor_b32 s{st}, s{st}, s33")
        A(f"v_cmp_ne_u32 vcc, s{st}, v{vd}")
        A("s_cmp_eq_u64 vcc, 0")
        A(f"s_cselect_b32 s{sdst}, 1, 0")

    def poll_next(self, scnt, soff, delta, Ldone):
        A = self.A
        A(f"s_add_u32 s{scnt}, s{scnt}, 1")
        A(f"s_cmp_gt_u32 s{scnt}, 0x4000")
        A(f"s_cbranch_scc1 {Ldone}")
        A(f"s_cmp_gt_u32 s{scnt}, {POLL_LOCAL}")
        A(f"s_cselect_b32 s{scnt + 1}, {delta}, 0")
        A(f"s_xor_b32 s{soff}, s{soff}, s{scnt + 1}")
        if self.o.get("pslp", 2):
            A(f"s_sleep {self.o.get('pslp', 2)}")

    def cmul(self, d, z, w, t):
        A = self.A
        A(f"v_pk_mul_f32 v[{t}:{t + 1}], v[{z}:{z + 1}], v[{w}:{w + 1}] op_sel:[0,0] op_sel_hi:[0,1]")
        return f"v_pk_fma_f32 v[{d}:{d + 1}], v[{z}:{z + 1}], v[{w}:{w + 1}], v[{t}:{t + 1}] op_sel:[1,1,0] op_sel_hi:[1,0,1] neg_lo:[0,1,0]"

    def prologue(self):
        A = self.A
        o = self.o
        VL = 1
        A("s_cmp_ge_u32 s2, 256")
        A("s_cbranch_scc1 L_end")
        if o.get("stamps"):
            A("s_memtime s[62:63]")
            A("s_memrealtime s[60:61]")
        if o.get("spin"):
            A("s_memtime s[36:37]")
            A("s_waitcnt lgkmcnt(0)")
            A.label("L_spin")
            A("s_memtime s[38:39]")
            A("s_waitcnt lgkmcnt(0)")
            A("s_sub_u32 s40, s38, s36")
            A(f"s_cmp_lt_u32 s40, {o['spin']}")
            A("s_cbranch_scc1 L_spin")
        A("s_load_dwordx16 s[4:19], s[0:1], 0")
        A("s_load_dwordx8 s[20:27], s[0:1], 64")
        A("s_load_dwordx2 s[28:29], s[0:1], 96")
        A("s_getpc_b64 s[34:35]")
        A("s_lshr_b32 s3, s2, 3")
        A("s_and_b32 s34, s34, 0xffffff00")
        A("s_and_b32 s33, s3, 3")
        A("s_lshl_b32 s33, s33, 13")
        A("v_lshlrev_b32 v2, 4, v0")
        A("v_add_u32 v2, s33, v2")
        A("global_load_dword v255, v2, s[34:35]")
        A("v_and_b32 v1, 63, v0")
        A("v_lshrrev_b32 v2, 6, v0")
        A("s_and_b32 s31, s2, 7")
        A("v_readfirstlane_b32 s30, v2")
        A("s_cmp_lt_u32 s3, 16")
        A("s_cbranch_scc1 L_teamB")
        s_a, s_pair, s_nh, s_scr, s_d = 36, 37, 38, 39, 40
        s_t0, s_t1, s_t2 = 41, 42, 43
        A(f"s_lshr_b32 s{s_t2}, s30, 2")
        A(f"s_and_b32 s32, s3, 15")
        A(f"s_lshl_b32 s32, s32, 1")
        A(f"s_add_u32 s32, s32, s{s_t2}")
        A(f"s_and_b32 s{s_a}, s30, 3")
        A(f"s_lshr_b32 s{s_pair}, s{s_a}, 1")
        A(f"s_and_b32 s{s_nh}, s{s_a}, 1")
        A(f"s_lshl_b32 s{s_d}, s31, 5")
        A(f"s_add_u32 s{s_d}, s{s_d}, s32")
        A(f"s_lshl_b32 s44, s{s_d}, 2")
        A(f"s_lshl_b32 s{s_d}, s{s_d}, 1")
        A(f"s_add_u32 s{s_d}, s{s_d}, s{s_pair}")
        A(f"s_lshl_b32 s{s_t0}, s{s_d}, 9")
        A(f"s_lshl_b32 s{s_t1}, s{s_nh}, 8")
        A(f"s_add_u32 s{s_t0}, s{s_t0}, s{s_t1}")
        A(f"v_lshlrev_b32 v5, 2, v{VL}")
        A(f"v_add_u32 v6, s{s_t0}, v5")
        A("v_mov_b32 v7, 0")
        A(f"s_lshl_b32 s86, s{s_t2}, 7")
        A(f"s_mul_i32 s87, s{s_t2}, {TEAM_SZ}")
        A(f"s_add_u32 s87, s87, {L_TEAM}")
        A(f"s_lshl_b32 s100, s{s_t2}, 12")
        A(f"s_add_u32 s100, s100, {L_T}")
        A(f"s_mul_i32 s{s_scr}, s{s_a}, {SCR_SZ}")
        A(f"s_add_u32 s{s_scr}, s{s_scr}, s87")
        A("ds_write_b32 v5, v7")
        A(f"v_lshrrev_b32 v62, 3, v{VL}")
        A(f"v_mul_u32_u24 v62, 896, v62")
        A(f"v_and_b32 v4, 7, v{VL}")
        A(f"v_lshl_add_u32 v62, v4, 4, v62")
        A(f"s_lshl_b32 s59, s32, 2")
        A(f"s_add_u32 s59, s59, s{s_a}")
        A(f"s_mul_i32 s56, s59, {16 * 896}")
        A(f"s_lshl_b32 s57, s31, 7")
        A(f"s_add_u32 s56, s56, s57")
        A(f"s_add_u32 s57, s56, {8 * 896}")
        A(f"s_lshl_b32 s101, s30, 12")
        A(f"s_add_u32 s101, s101, {L_STG}")
        A(f"s_add_u32 s46, s34, gather_tab-{KNAME}")
        A(f"s_addc_u32 s47, s35, 0")
        A(f"s_lshl_b32 s45, s{s_a}, 11")
        A(f"v_lshl_add_u32 v63, v{VL}, 4, s45")
        A("s_waitcnt lgkmcnt(0)")
        A("s_barrier")
        A("s_cmp_ge_u32 s30, 4")
        A("s_cbranch_scc0 L_a_pf0")
        self.prefetch_late(12, 13, 14, 90, "s[20:21]", "s[18:19]", c0=0, with_q=False)
        A.label("L_a_pf0")
        A("s_cmp_eq_u32 s31, 7")
        A("s_cbranch_scc1 L_pack")
        if o.get("noA"):
            A("s_endpgm")
        A("global_load_dword v8, v6, s[6:7]")
        A("global_load_dword v9, v6, s[8:9]")
        A("global_load_dword v10, v6, s[10:11]")
        A("global_load_dword v11, v6, s[12:13]")
        A("s_load_dword s50, s[14:15], s44")
        A("s_load_dword s51, s[16:17], s44")
        self.srd(52, 4, 2048 * 896)
        A("s_cmp_lt_u32 s30, 4")
        A("s_cbranch_scc0 L_a_p0")
        A("s_setprio 1")
        A(f"s_add_u32 m0, s45, {L_TAB}")
        A("s_nop 0")
        A("global_load_lds_dwordx4 v63, s[46:47]")
        A("global_load_lds_dwordx4 v63, s[46:47] offset:1024")
        A("s_branch L_a_p1")
        A.label("L_a_p0")
        self.prefetch_late(12, 13, 14, 90, "s[20:21]", "s[18:19]")
        A.label("L_a_p1")
        A("s_branch L_teamA")

    def teamB(self):
        A = self.A
        o = self.o
        VL = 1
        vW, vX, vXR, vTR = 2, 3, 7, 11
        XF, AK, AV, AQ, WF = 16, 128, 144, 160, 176
        T = 192
        TT = 240
        sX, sW = 36, 40
        s_rb, s_h, s_rot, s_xo, s_wo_, s_rg = 48, 49, 50, 51, 52, 53
        s_t0, s_t1, s_t2, s_hd = 54, 55, 56, 57
        A.label("L_teamB")
        self.inB = True
        if o.get("noB"):
            A("s_cmp_eq_u32 s2, 0")
            A("s_cbranch_scc0 L_end")
        vm = []

        def VM(text, tag):
            A(text)
            vm.append(tag)

        def wait_vm(tag):
            last = max(i for i, t in enumerate(vm) if t == tag)
            n = len(vm) - 1 - last
            assert n <= 63
            A(f"s_waitcnt vmcnt({n})")
        A("s_memrealtime s[44:45]")
        A(f"s_lshl_b32 s{s_rb}, s31, 1")
        A(f"s_and_b32 s{s_t0}, s3, 1")
        A(f"s_add_u32 s{s_rb}, s{s_rb}, s{s_t0}")
        A(f"s_and_b32 s{s_rg}, s30, 3")
        A(f"s_lshr_b32 s{s_hd}, s30, 2")
        A(f"s_and_b32 s{s_h}, s3, 14")
        A(f"s_mul_i32 s{s_wo_}, s{s_h}, 56")
        A(f"s_add_u32 s{s_h}, s{s_h}, s{s_hd}")
        A(f"s_add_u32 s{s_rot}, s3, s31")
        A(f"s_mul_hi_u32 s{s_t0}, s{s_rot}, 0x24924925")
        A(f"s_mul_i32 s{s_t0}, s{s_t0}, 7")
        A(f"s_sub_u32 s{s_rot}, s{s_rot}, s{s_t0}")
        if not o.get("rot", 0):
            A(f"s_mov_b32 s{s_rot}, 0")
        A(f"v_lshrrev_b32 v{TT}, 3, v{VL}")
        A(f"v_mul_u32_u24 v{vW}, 2688, v{TT}")
        A(f"v_and_b32 v{TT + 2}, 7, v{VL}")
        A(f"v_bfe_u32 v{TT + 1}, v{VL}, 4, 1")
        A(f"v_lshlrev_b32 v{TT + 1}, 2, v{TT + 1}")
        A(f"v_xor_b32 v{TT + 1}, v{TT + 1}, v{TT + 2}")
        A(f"v_min_u32 v{TT + 1}, 6, v{TT + 1}")
        A(f"v_lshl_add_u32 v{vW}, v{TT + 1}, 4, v{vW}")
        A(f"v_mul_u32_u24 v{TT}, 896, v{TT}")
        A(f"v_lshrrev_b32 v{TT + 1}, 4, v{VL}")
        A(f"v_xor_b32 v{TT + 1}, v{TT + 1}, v{TT + 2}")
        A(f"v_lshl_add_u32 v{vX}, v{TT + 1}, 4, v{TT}")
        A(f"v_xor_b32 v{TT + 1}, 4, v{TT + 1}")
        A(f"v_lshl_add_u32 v{vX + 1}, v{TT + 1}, 4, v{TT}")
        A(f"v_add_u32 v{vX + 1}, {8 * 896}, v{vX + 1}")
        s_xb, s_wb, s_lx, s_lw = 96, 59, 97, 58
        A(f"s_lshl_b32 s{s_t0}, s{s_rb}, 3")
        A(f"s_add_u32 s{s_t0}, s{s_t0}, s30")
        A(f"s_mul_i32 s{s_xb}, s{s_t0}, {16 * 896}")
        A(f"s_mul_i32 s{s_wb}, s{s_rg}, {16 * 2688}")
        A(f"s_add_u32 s{s_t0}, s{s_hd}, 1")
        A(f"s_mul_i32 s{s_t0}, s{s_t0}, 896")
        A(f"s_add_u32 s{s_wb}, s{s_wb}, s{s_t0}")
        A(f"s_add_u32 s{s_wb}, s{s_wb}, s{s_wo_}")
        A(f"s_lshl_b32 s{s_lx}, s30, 11")
        A(f"s_mov_b32 s{s_xo}, s{s_rot}")
        A("s_lshl_b32 s46, s2, 3")
        A("s_or_b32 s46, s46, s30")
        A("v_mov_b32 v6, 0")
        A(f"v_mul_u32_u24 v14, 37, v{VL}")
        A(f"v_lshrrev_b32 v14, 8, v14")
        A(f"v_mul_u32_u24 v15, {(64 * 2688 - 7 * 128) // 128}, v14")
        A(f"v_add_lshl_u32 v15, v15, v{VL}, 7")
        A(f"v_and_b32 v13, 1, v{VL}")
        A(f"v_mul_u32_u24 v13, {896 - 64}, v13")
        A(f"v_lshl_add_u32 v13, v{VL}, 6, v13")
        A("s_waitcnt lgkmcnt(0)")
        self.srd(sW, 20, 448 * 2688)
        self.srd(sX, 18, 2048 * 896)
        A("s_cmp_eq_u32 s46, 0")
        A("s_cbranch_scc0 L_b_nn")
        A("s_or_b32 s44, s44, 1")
        A("v_mov_b32 v5, s44")
        A("s_mov_b64 exec, 1")
        A("global_store_dword v6, v5, s[26:27] sc1")
        A("s_mov_b64 exec, -1")
        A.label("L_b_nn")
        if o.get("noB"):
            A("s_endpgm")

        def next_chunk():
            A(f"s_add_u32 s{s_xo}, s{s_xo}, 1")
            A(f"s_cmp_ge_u32 s{s_xo}, 7")
            A(f"s_cselect_b32 s{s_xo}, 0, s{s_xo}")

        def issue_stage(p):
            base = (p % 4) * SLOT
            A(f"s_mul_i32 s{s_t2}, s{s_xo}, {64 * 2688}")
            A(f"s_add_u32 s{s_t2}, s{s_t2}, s{s_wb}")
            A(f"s_add_u32 m0, s{s_lx}, {base + 16384}")
            A(f"s_lshl_b32 s{s_t1}, s{s_xo}, 7")
            VM(f"buffer_load_dwordx4 v{vW}, s[{sW}:{sW + 3}], s{s_t2} offen lds", f"s{p}")
            A(f"s_add_u32 m0, s{s_lx}, {base + 16384 + 1024}")
            A(f"s_add_u32 s{s_t2}, s{s_t2}, {8 * 2688}")
            VM(f"buffer_load_dwordx4 v{vW}, s[{sW}:{sW + 3}], s{s_t2} offen lds", f"s{p}")
            A(f"s_add_u32 m0, s{s_lx}, {base}")
            A(f"s_add_u32 s{s_t1}, s{s_t1}, s{s_xb}")
            VM(f"buffer_load_dwordx4 v{vX}, s[{sX}:{sX + 3}], s{s_t1} offen lds", f"s{p}")
            A(f"s_add_u32 m0, s{s_lx}, {base + 1024}")
            next_chunk()
            VM(f"buffer_load_dwordx4 v{vX + 1}, s[{sX}:{sX + 3}], s{s_t1} offen lds", f"s{p}")
        if o.get("bpf"):
            A("s_lshl_b32 s46, s3, 3")
            A("s_add_u32 s46, s46, s30")
            A("s_lshr_b32 s44, s46, 1")
            A("s_mul_i32 s44, s44, 2688")
            A("s_and_b32 s45, s46, 1")
            A("s_add_u32 s45, s45, 1")
            A("s_mul_i32 s45, s45, 896")
            A("s_add_u32 s45, s45, s44")
            A("s_mov_b64 exec, 0x1fffff")
            VM(f"buffer_load_dword v254, v15, s[{sW}:{sW + 3}], s45 offen", "pf")
            A("s_lshl_b32 s44, s31, 7")
            A("s_add_u32 s44, s44, s46")
            A(f"s_mul_i32 s44, s44, {2 * 896}")
            A("s_mov_b64 exec, 0x3f")
            VM(f"buffer_load_dword v254, v13, s[{sX}:{sX + 3}], s44 offen", "pf")
            A("s_mov_b64 exec, -1")
        D0 = o.get("d0", 2)
        for p in range(D0):
            issue_stage(p)
        self.stamp(0)
        self.srd(4, 28, 0x10000000)
        self.srd(8, 24, 2048 * 1792)
        A(f"v_and_b32 v{TT}, 31, v{VL}")
        A(f"v_lshlrev_b32 v{TT + 1}, 7, v{TT}")
        A(f"s_lshl_b32 s{s_t0}, s{s_rg}, 12")
        A(f"v_add_u32 v{TT + 1}, s{s_t0}, v{TT + 1}")
        A(f"v_bfe_u32 v{TT + 2}, v{TT}, 1, 3")
        A(f"v_lshrrev_b32 v{TT + 3}, 5, v{VL}")
        A(f"v_xor_b32 v{TT + 2}, v{TT + 2}, v{TT + 3}")
        for t in range(4):
            A(f"v_xor_b32 v{TT + 4}, {2 * t}, v{TT + 2}")
            A(f"v_lshl_add_u32 v{vXR + t}, v{TT + 4}, 4, v{TT + 1}")
        A(f"v_bfe_u32 v{TT}, v{VL}, 2, 2")
        A(f"v_lshl_add_u32 v{TT + 1}, v{TT + 3}, 3, v{TT}")
        A(f"v_lshlrev_b32 v{TT + 1}, 7, v{TT + 1}")
        A(f"v_bfe_u32 v{TT + 2}, v{VL}, 4, 1")
        A(f"v_lshlrev_b32 v{TT + 2}, 5, v{TT + 2}")
        A(f"v_and_b32 v{TT + 4}, 3, v{VL}")
        A(f"v_lshl_add_u32 v{TT + 2}, v{TT + 4}, 3, v{TT + 2}")
        A(f"s_mul_i32 s{s_t0}, s{s_hd}, 56")
        A(f"v_add_u32 v{TT + 2}, s{s_t0}, v{TT + 2}")
        A(f"v_bfe_u32 v{TT + 4}, v{VL}, 3, 1")
        A(f"v_lshlrev_b32 v{TT + 4}, 6, v{TT + 4}")
        A(f"v_xor_b32 v{TT + 2}, v{TT + 2}, v{TT + 4}")
        A(f"v_add_u32 v{vTR}, v{TT + 1}, v{TT + 2}")
        A(f"v_add_u32 v12, {2 * SLOT}, v{vTR}")
        for t in range(4):
            A(f"v_add_u32 v{TT + 8 + t}, {2 * SLOT}, v{vXR + t}")
        A(f"v_lshlrev_b32 v14, 4, v{VL}")
        A(f"v_lshlrev_b32 v13, 2, v{VL}")
        A(f"s_mov_b32 s{s_t0}, {f32(1e-6)}")
        for i in range(16):
            A(f"v_mov_b32 v{AK + i}, s{s_t0}")
            A(f"v_mov_b32 v{AQ + i}, s{s_t0}")
        A(f"s_mul_i32 s{s_lw}, s30, {8 * 2688}")
        A(f"s_add_u32 s{s_lw}, s{s_lw}, s{s_wo_}")
        A(f"s_lshl_b32 s47, s30, 10")

        def wq_lds(p):
            return (3 * SLOT + p * 8192) if p < 4 else ((p - 4) * 8192)

        def issue_wq(lo, hi):
            for p in range(lo, hi):
                A(f"s_mul_i32 s{s_t2}, s{s_xo}, {64 * 2688}")
                A(f"s_add_u32 s{s_t2}, s{s_t2}, s{s_lw}")
                A(f"s_add_u32 m0, s47, {wq_lds(p)}")
                next_chunk()
                VM(f"buffer_load_dwordx4 v{vW}, s[{sW}:{sW + 3}], s{s_t2} offen lds", "wq")

        def lds_ref(addr, lo, hi):
            return (lo, addr) if addr < 2 * SLOT else (hi, addr - 2 * SLOT)

        def reads(j):
            out = []
            base = (j % 4) * SLOT
            for t in range(4):
                r = XF + 4 * (4 * j + t)
                v_, off = lds_ref(base, vXR + t, TT + 8 + t)
                out.append(f"ds_read_b128 v[{r}:{r + 3}], v{v_} offset:{off}")
                b = WF + 32 * (j & 1) + 8 * t
                v_, off = lds_ref(base + 16384 + t * 2048, vTR, 12)
                out.append(f"ds_read_b64_tr_b16 v[{b}:{b + 1}], v{v_} offset:{off}")
                out.append(f"ds_read_b64_tr_b16 v[{b + 2}:{b + 3}], v{v_} offset:{off + 512}")
                out.append(f"ds_read_b64_tr_b16 v[{b + 4}:{b + 5}], v{v_} offset:{off + 8192}")
                out.append(f"ds_read_b64_tr_b16 v[{b + 6}:{b + 7}], v{v_} offset:{off + 8192 + 512}")
            return out

        def mfmas(j):
            out = []
            for t in range(4):
                ks = 4 * j + t
                x = XF + 4 * ks
                b = WF + 32 * (j & 1) + 8 * t
                out.append(f"v_mfma_f32_32x32x16_bf16 v[{AK}:{AK + 15}], v[{x}:{x + 3}], v[{b}:{b + 3}], v[{AK}:{AK + 15}]")
                cv = "0" if ks == 0 else f"v[{AV}:{AV + 15}]"
                out.append(f"v_mfma_f32_32x32x16_bf16 v[{AV}:{AV + 15}], v[{x}:{x + 3}], v[{b + 4}:{b + 7}], {cv}")
            return out
        s_q4, s_rb2 = 92, 93
        nxt = [D0]
        for j in range(8):
            if j <= 6:
                wait_vm(f"s{j}")
                A("s_barrier")
                self.stamp(2 + j, fine=True)
            rd = reads(j) if j <= 6 else []
            mm = mfmas(j - 1) if j >= 1 else []
            if mm and rd:
                for i, m_ in enumerate(mm):
                    A(m_)
                    for r_ in rd[(20 * i) // 8:(20 * (i + 1)) // 8]:
                        A(r_)
            else:
                for x_ in rd + mm:
                    A(x_)
            if rd:
                A("s_waitcnt lgkmcnt(0)")
            if j <= 6:
                if j == 1:
                    VM("global_load_dword v252, v6, s[26:27] sc1", "nonce")
                while nxt[0] <= min(j + 3, 6) and nxt[0] <= j + D0 + (1 if j >= o.get("dj", 1) else 0):
                    issue_stage(nxt[0])
                    nxt[0] += 1
                if j == 4:
                    issue_wq(0, 4)
                elif j == 5:
                    issue_wq(4, 7)
                    self.get_nonce(252, 6, first_loaded=True, vm=63)
                    A("s_cmp_eq_u32 s30, 0")
                    A("s_cbranch_scc0 L_b_nc")
                    self.census_write("s[4:7]", TT, TT + 2, s_t2)
                    A.label("L_b_nc")
                elif j == 6:
                    A(f"s_lshl_b32 s{s_t1}, s3, 3")
                    A(f"s_add_u32 s{s_t1}, s{s_t1}, s30")
                    A(f"s_mul_i32 s{s_t2}, s{s_t1}, {28 * 128}")
                    A(f"s_add_u32 s{s_t2}, s{s_t2}, {WS_WOP}")
                    A(f"v_lshlrev_b32 v{TT}, 7, v{VL}")
                    A("s_mov_b64 exec, 0xfffffff")
                    VM(f"buffer_load_dword v253, v{TT}, s[4:7], s{s_t2} offen sc1", "t")
                    A("s_mov_b64 exec, 3")
                    A(f"s_lshl_b32 s{s_t1}, s{s_t1}, 8")
                    A(f"s_lshl_b32 s{s_t2}, s31, 15")
                    A(f"s_add_u32 s{s_t1}, s{s_t1}, s{s_t2}")
                    A(f"s_add_u32 s{s_t1}, s{s_t1}, {WS_KV}")
                    VM(f"buffer_load_dword v253, v{TT}, s[4:7], s{s_t1} offen sc1", "t")
                    A("s_mov_b64 exec, 0xffff")
                    A(f"s_lshl_b32 s88, s{s_rb}, 2")
                    A(f"s_add_u32 s88, s88, s{s_rg}")
                    A(f"s_lshl_b32 s88, s88, 4")
                    A(f"s_add_u32 s88, s88, s{s_h}")
                    A(f"s_lshl_b32 s88, s88, 11")
                    A(f"s_add_u32 s88, s88, {WS_PQ}")
                    VM(f"buffer_load_dword v253, v{TT}, s[4:7], s88 offen sc1", "t")
                    A("s_mov_b64 exec, -1")
            if j == 0:
                self.stamp(1)
            if j == 2 and not o.get("fine"):
                self.stamp(2)
        self.stamp(3)
        self.stamp(9, fine=True)
        PK, PV = T, T + 8
        E = T + 16
        A(f"s_mov_b32 s{s_t0}, {f32(LOG2E)}")
        A(f"s_mov_b32 s{s_t1}, {f32(1e-6)}")

        def phi(acc, dst):
            for i in range(16):
                A(f"v_mul_f32 v{E + i}, s{s_t0}, v{acc + i}")
            for i in range(16):
                A(f"v_exp_f32 v{E + i}, v{E + i} clamp")
                A(f"v_max_f32 v{acc + i}, s{s_t1}, v{acc + i}")
            for i in range(8):
                A(f"v_pk_add_f32 v[{acc + 2 * i}:{acc + 2 * i + 1}], v[{acc + 2 * i}:{acc + 2 * i + 1}], v[{E + 2 * i}:{E + 2 * i + 1}]")
            for i in range(8):
                A(f"v_cvt_pk_bf16_f32 v{dst + i}, v{acc + 2 * i}, v{acc + 2 * i + 1}")
        A(f"v_and_b32 v{E}, 31, v{VL}")
        A(f"v_cmp_eq_u32 vcc, 28, v{E}")
        phi(AK, PK)
        A(f"v_mov_b32 v{E}, 0x3f803f80")
        for i in range(8):
            A(f"v_cvt_pk_bf16_f32 v{PV + i}, v{AV + 2 * i}, v{AV + 2 * i + 1}")
        for i in range(8):
            A(f"v_cndmask_b32 v{PV + i}, v{PV + i}, v{E}, vcc")
        A(f"v_mfma_f32_32x32x16_bf16 v[{AK}:{AK + 15}], v[{PK}:{PK + 3}], v[{PV}:{PV + 3}], 0")
        A(f"v_mfma_f32_32x32x16_bf16 v[{AK}:{AK + 15}], v[{PK + 4}:{PK + 7}], v[{PV + 4}:{PV + 7}], v[{AK}:{AK + 15}]")
        A(f"s_lshl_b32 s{s_t2}, s30, 12")
        A(f"s_add_u32 s{s_t2}, s{s_t2}, {L_EX}")
        A(f"v_add_u32 v{E}, s{s_t2}, v14")
        A(f"v_lshrrev_b32 v{E + 1}, 3, v{VL}")
        A(f"s_lshl_b32 s{s_t2}, s{s_rg}, 3")
        A(f"v_add_u32 v{E + 1}, s{s_t2}, v{E + 1}")
        A(f"v_bfe_u32 v{E + 2}, v{VL}, 2, 1")
        A(f"v_lshl_add_u32 v{E + 2}, v{E + 2}, 5, v{E + 1}")
        A(f"v_lshlrev_b32 v{E + 2}, 4, v{E + 2}")
        A(f"v_and_b32 v{E + 3}, 3, v{VL}")
        A(f"v_lshl_add_u32 v{E + 2}, v{E + 3}, 10, v{E + 2}")
        A(f"s_lshl_b32 s{s_t2}, s{s_hd}, 14")
        A(f"s_add_u32 s{s_t2}, s{s_t2}, {L_EX}")
        A(f"v_add_u32 v{E + 2}, s{s_t2}, v{E + 2}")
        for g in range(4):
            A(f"ds_write_b128 v{E}, v[{AK + 4 * g}:{AK + 4 * g + 3}] offset:{g * 1024}")
        A("s_waitcnt lgkmcnt(0)")
        self.stamp(10, fine=True)
        A("s_barrier")
        for w in range(4):
            A(f"ds_read_b128 v[{AV + 4 * w}:{AV + 4 * w + 3}], v{E + 2} offset:{w * 4096}")
        A(f"s_and_b32 s{s_q4}, s3, 3")
        A(f"s_lshl_b32 s{s_rb2}, s31, 3")
        A(f"s_lshr_b32 s{s_t2}, s3, 2")
        A(f"s_lshl_b32 s{s_t2}, s{s_t2}, 1")
        A(f"s_add_u32 s{s_rb2}, s{s_rb2}, s{s_t2}")
        A(f"s_lshl_b32 s94, s{s_q4}, 2")
        A(f"s_add_u32 s94, s94, s{s_rg}")
        A(f"s_mul_i32 s95, s94, {14 * WOP_U}")
        A(f"s_add_u32 s95, s95, {WS_WOP}")
        A(f"s_cmp_lt_u32 s94, 14")
        A(f"s_cselect_b32 s89, s{s_hd}, 1")
        A(f"s_cmp_eq_u32 s89, 0")
        A(f"s_cselect_b32 s94, s95, 0x7f000000")
        WC = 232

        def wop_load(ks):
            r = XF + 4 * ks
            if ks % 2 == 0:
                A(f"s_add_u32 s95, s94, {(ks // 2) * WOP_U}")
            fl = "" if o.get("wplain") else " sc1"
            A(f"buffer_load_dwordx4 v[{r}:{r + 3}], v14, s[4:7], s95 offen offset:{(ks % 2) * 1024}{fl}")
            if ks % 2 == 1:
                A(f"buffer_load_dword v{WC + ks // 2}, v13, s[4:7], s95 offen offset:2048{fl}")
        A("s_waitcnt lgkmcnt(0)")
        for k in range(2):
            A(f"v_pk_add_f32 v[{AV + 2 * k}:{AV + 2 * k + 1}], v[{AV + 2 * k}:{AV + 2 * k + 1}], v[{AV + 4 + 2 * k}:{AV + 5 + 2 * k}]")
            A(f"v_pk_add_f32 v[{AV + 8 + 2 * k}:{AV + 9 + 2 * k}], v[{AV + 8 + 2 * k}:{AV + 9 + 2 * k}], v[{AV + 12 + 2 * k}:{AV + 13 + 2 * k}]")
        for k in range(2):
            A(f"v_pk_add_f32 v[{AV + 2 * k}:{AV + 2 * k + 1}], v[{AV + 2 * k}:{AV + 2 * k + 1}], v[{AV + 8 + 2 * k}:{AV + 9 + 2 * k}]")
        A(f"v_and_b32 v{E + 4}, 7, v{VL}")
        A(f"v_cmp_eq_u32 vcc, 7, v{E + 4}")
        A(f"v_cvt_pk_bf16_f32 v{E + 6}, v{AV}, v{AV + 1}")
        A(f"v_cvt_pk_bf16_f32 v{E + 7}, v{AV + 2}, v{AV + 3}")
        A(f"v_cndmask_b32 v{E + 6}, v{E + 6}, 0, vcc")
        A(f"v_cndmask_b32 v{E + 7}, v{E + 7}, 0, vcc")
        A(f"v_xor_b32 v{E + 4}, v{E + 6}, v{E + 7}")
        A(f"v_xor_b32_dpp v{E + 4}, v{E + 4}, v{E + 4} quad_perm:[1,0,3,2] row_mask:0xf bank_mask:0xf")
        A(f"v_xor_b32_dpp v{E + 4}, v{E + 4}, v{E + 4} quad_perm:[2,3,0,1] row_mask:0xf bank_mask:0xf")
        A(f"v_xor_b32_dpp v{E + 4}, v{E + 4}, v{E + 4} row_half_mirror row_mask:0xf bank_mask:0xf")
        A(f"v_xor_b32 v{E + 4}, s33, v{E + 4}")
        A(f"v_cndmask_b32 v{E + 6}, v{E + 6}, v{E + 4}, vcc")
        A(f"s_lshl_b32 s{s_t2}, s{s_h}, 4")
        A(f"s_add_u32 s{s_t2}, s{s_t2}, s{s_rb}")
        A(f"s_lshl_b32 s{s_t2}, s{s_t2}, 2")
        A(f"s_add_u32 s{s_t2}, s{s_t2}, s{s_rg}")
        A(f"s_lshl_b32 s{s_t2}, s{s_t2}, 9")
        A(f"v_lshlrev_b32 v{E + 5}, 3, v{VL}")
        A(f"buffer_store_dwordx2 v[{E + 6}:{E + 7}], v{E + 5}, s[4:7], s{s_t2} offen sc1")
        self.stamp(4)
        self.stamp(11, fine=True)
        vm.append("part")
        wait_vm("wq")
        A("s_barrier")
        def rd_q(ks, buf):
            b = WF + 4 * buf
            v_, off = lds_ref(wq_lds(ks >> 2) + (ks & 3) * 2048, vTR, 12)
            A(f"ds_read_b64_tr_b16 v[{b}:{b + 1}], v{v_} offset:{off}")
            A(f"ds_read_b64_tr_b16 v[{b + 2}:{b + 3}], v{v_} offset:{off + 512}")

        def q_gemm(with_wo):
            for ks in range(3):
                rd_q(ks, ks)
            for ks in range(28):
                if ks + 3 < 28:
                    rd_q(ks + 3, (ks + 3) & 3)
                    A("s_waitcnt lgkmcnt(6)")
                else:
                    A(f"s_waitcnt lgkmcnt({2 * (27 - ks)})")
                b = WF + 4 * (ks & 3)
                x = XF + 4 * ks
                A(f"v_mfma_f32_32x32x16_bf16 v[{AQ}:{AQ + 15}], v[{b}:{b + 3}], v[{x}:{x + 3}], v[{AQ}:{AQ + 15}]")
                if with_wo and ks >= 1:
                    wop_load(ks - 1)
            if with_wo:
                wop_load(27)
        self.census_load("s[4:7]", 252, E, 91, 0)
        A(f"s_cmp_eq_u32 s{s_hd}, 0")
        A(f"s_cbranch_scc{0 if o.get('lofirst') else 1} L_b_qp")
        A("s_setprio 2")
        if o.get("woq", 0):
            q_gemm(False)
            A("s_waitcnt vmcnt(0)")
            A("s_branch L_b_qd")
            A.label("L_b_qp")
            A("s_waitcnt vmcnt(0)")
            q_gemm(True)
            A.label("L_b_qd")
        else:
            A.label("L_b_qp")
            q_gemm(False)
            A("s_waitcnt vmcnt(0)")
        self.census_eval(252, 47, s_t2)
        phi(AQ, PK)
        A(f"v_cmp_lt_u32 s[98:99], 31, v{VL}")
        A(f"v_cndmask_b32 v{PK + 6}, v{PK + 6}, 0, s[98:99]")
        A(f"v_cndmask_b32 v{PK + 7}, v{PK + 7}, 0, s[98:99]")

        def xor8(dst, src):
            A(f"v_bitop3_b32 v{dst}, v{src}, v{src + 1}, v{src + 2} bitop3:0x96")
            A(f"v_bitop3_b32 v{dst}, v{dst}, v{src + 3}, v{src + 4} bitop3:0x96")
            A(f"v_bitop3_b32 v{dst}, v{dst}, v{src + 5}, v{src + 6} bitop3:0x96")
            A(f"v_xor_b32 v{dst}, v{dst}, v{src + 7}")
        xor8(E, PK)
        A(f"v_mov_b32 v{E + 1}, v{E}")
        A(f"v_permlane32_swap_b32 v{E}, v{E + 1}")
        A(f"v_bitop3_b32 v{E}, v{E}, v{E + 1}, s33 bitop3:0x96")
        A(f"v_cndmask_b32 v{PK + 6}, v{PK + 6}, v{E}, s[98:99]")
        A(f"buffer_store_dwordx4 v[{PK}:{PK + 3}], v14, s[4:7], s88 offen")
        A(f"buffer_store_dwordx4 v[{PK + 4}:{PK + 7}], v14, s[4:7], s88 offen offset:1024")
        A("s_cmp_eq_u32 s47, 1")
        A("s_cbranch_scc1 L_b_npq")
        A(f"s_add_u32 s88, s88, {G_DELTA}")
        A(f"buffer_store_dwordx4 v[{PK}:{PK + 3}], v14, s[4:7], s88 offen sc1")
        A(f"buffer_store_dwordx4 v[{PK + 4}:{PK + 7}], v14, s[4:7], s88 offen offset:1024 sc1")
        A.label("L_b_npq")
        self.stamp(5)
        A(f"s_cmp_eq_u32 s{s_hd}, 0")
        A("s_cbranch_scc1 L_b_lo")
        A("s_setprio 3")
        R0 = 16
        S0 = 48
        A(f"v_lshrrev_b32 v{E}, 5, v{VL}")
        A(f"v_lshlrev_b32 v{E}, 11, v{E}")
        A(f"v_and_b32 v{E + 1}, 31, v{VL}")
        A(f"v_lshl_add_u32 v{E}, v{E + 1}, 4, v{E}")
        A(f"s_lshl_b32 s{s_t2}, s3, 15")
        A(f"s_lshl_b32 s{s_t1}, s{s_rg}, 9")
        A(f"s_add_u32 s{s_t2}, s{s_t2}, s{s_t1}")
        A(f"v_and_b32 v15, 1, v{VL}")
        A(f"v_lshlrev_b32 v15, 10, v15")
        A(f"v_bfe_u32 v{E + 1}, v{VL}, 1, 1")
        A(f"v_lshl_add_u32 v15, v{E + 1}, 9, v15")
        A(f"v_bfe_u32 v{E + 1}, v{VL}, 2, 3")
        A(f"v_lshl_add_u32 v15, v{E + 1}, 4, v15")
        A(f"v_lshrrev_b32 v{E + 1}, 5, v{VL}")
        A(f"v_lshl_add_u32 v15, v{E + 1}, 3, v15")
        A(f"s_lshl_b32 s58, s31, 15")
        A(f"s_lshl_b32 s{s_t1}, s3, 11")
        A(f"s_add_u32 s58, s58, s{s_t1}")
        A(f"s_lshl_b32 s{s_t1}, s{s_rg}, 7")
        A(f"s_add_u32 s58, s58, s{s_t1}")
        A(f"s_add_u32 s58, s58, {WS_KV}")
        A(f"v_mov_b32 v{E + 12}, 0x00003f80")
        A(f"v_mov_b32 v{E + 13}, 0x3f800000")
        A(f"v_and_b32 v{E + 1}, 0x23, v{VL}")
        A(f"v_cmp_eq_u32 s[44:45], 0x23, v{E + 1}" if False else f"v_cmp_eq_u32 vcc, 0x23, v{E + 1}")
        A("s_mov_b64 s[44:45], vcc")
        A("s_mov_b32 s91, 0")
        A.label("L_b_rpoll")
        for i in range(8):
            A(f"s_add_u32 s{s_t1}, s{s_t2}, {4096 * i}")
            A(f"buffer_load_dwordx4 v[{R0 + 4 * i}:{R0 + 4 * i + 3}], v{E}, s[4:7], s{s_t1} offen sc1")
        A("s_add_u32 s91, s91, 1")
        A("s_cmp_gt_u32 s91, 0x4000")
        A("s_cbranch_scc1 L_b_rdone")
        for k in range(8):
            A(f"s_waitcnt vmcnt({7 - k})")
            A(f"v_bitop3_b32 v{E + 2 + k}, v{R0 + 4 * k}, v{R0 + 4 * k + 1}, v{R0 + 4 * k + 2} bitop3:0x96")
            A(f"v_xor_b32 v{E + 2 + k}, v{E + 2 + k}, v{R0 + 4 * k + 3}")
            for i in range(4):
                c0 = "0" if k == 0 else f"v{S0 + 2 * i}"
                c1 = "0" if k == 0 else f"v{S0 + 2 * i + 1}"
                A(f"v_dot2_f32_bf16 v{S0 + 2 * i}, v{R0 + 4 * k + i}, v{E + 12}, {c0}")
                A(f"v_dot2_f32_bf16 v{S0 + 2 * i + 1}, v{R0 + 4 * k + i}, v{E + 13}, {c1}")
        for k in range(8):
            A(f"v_xor_b32_dpp v{E + 2 + k}, v{E + 2 + k}, v{E + 2 + k} quad_perm:[1,0,3,2] row_mask:0xf bank_mask:0xf")
        for k in range(8):
            A(f"v_xor_b32_dpp v{E + 2 + k}, v{E + 2 + k}, v{E + 2 + k} quad_perm:[2,3,0,1] row_mask:0xf bank_mask:0xf")
        for k in range(8):
            A(f"v_xor_b32 v{E + 2 + k}, s33, v{E + 2 + k}")
        A(f"v_or3_b32 v{E + 2}, v{E + 2}, v{E + 3}, v{E + 4}")
        A(f"v_or3_b32 v{E + 5}, v{E + 5}, v{E + 6}, v{E + 7}")
        A(f"v_or3_b32 v{E + 2}, v{E + 2}, v{E + 8}, v{E + 9}")
        A(f"v_or_b32 v{E + 2}, v{E + 2}, v{E + 5}")
        A(f"v_cmp_ne_u32 vcc, 0, v{E + 2}")
        A("s_cbranch_vccnz L_b_rpoll")
        A.label("L_b_rdone")
        A("s_waitcnt vmcnt(0)")
        self.stamp(6)
        for i in range(4):
            A(f"v_permlane32_swap_b32 v{S0 + i}, v{S0 + 4 + i}")
        for i in range(2):
            A(f"v_pk_add_f32 v[{S0 + 2 * i}:{S0 + 2 * i + 1}], v[{S0 + 2 * i}:{S0 + 2 * i + 1}], v[{S0 + 4 + 2 * i}:{S0 + 5 + 2 * i}]")
        A(f"v_cvt_pk_bf16_f32 v{S0 + 8}, v{S0}, v{S0 + 1}")
        A(f"v_cvt_pk_bf16_f32 v{S0 + 9}, v{S0 + 2}, v{S0 + 3}")
        A(f"v_cndmask_b32 v{S0 + 8}, v{S0 + 8}, 0, s[44:45]")
        A(f"v_cndmask_b32 v{S0 + 9}, v{S0 + 9}, 0, s[44:45]")
        A(f"v_xor_b32 v{S0 + 2}, v{S0 + 8}, v{S0 + 9}")
        A(f"v_xor_b32_dpp v{S0 + 2}, v{S0 + 2}, v{S0 + 2} quad_perm:[1,0,3,2] row_mask:0xf bank_mask:0xf")
        A(f"v_xor_b32_dpp v{S0 + 2}, v{S0 + 2}, v{S0 + 2} quad_perm:[2,3,0,1] row_mask:0xf bank_mask:0xf")
        A(f"v_mov_b32 v{S0 + 3}, v{S0 + 2}")
        A(f"v_permlane32_swap_b32 v{S0 + 2}, v{S0 + 3}")
        A(f"v_bitop3_b32 v{S0 + 2}, v{S0 + 2}, v{S0 + 3}, s33 bitop3:0x96")
        A(f"v_cndmask_b32 v{S0 + 8}, v{S0 + 8}, v{S0 + 2}, s[44:45]")
        A(f"buffer_store_dwordx2 v[{S0 + 8}:{S0 + 9}], v15, s[4:7], s58 offen")
        A("s_cmp_eq_u32 s47, 1")
        A("s_cbranch_scc1 L_b_nored")
        A(f"s_add_u32 s58, s58, {KV_G}")
        A(f"buffer_store_dwordx2 v[{S0 + 8}:{S0 + 9}], v15, s[4:7], s58 offen sc1")
        A.label("L_b_nored")
        self.stamp(7)
        PQ, KV, PQ1 = 128, 160, 64
        A(f"s_lshl_b32 s{s_t2}, s{s_rb2}, 4")
        A(f"s_lshl_b32 s{s_t1}, s{s_rg}, 2")
        A(f"s_add_u32 s{s_t2}, s{s_t2}, s{s_t1}")
        A(f"s_lshl_b32 s{s_t2}, s{s_t2}, 11")
        A(f"s_add_u32 s{s_t2}, s{s_t2}, {WS_PQ}")
        A(f"v_add_u32 v8, s{s_t2}, v14")
        A(f"v_add_u32 v9, 4096, v8")
        A(f"v_add_u32 v10, 32768, v8")
        A(f"v_add_u32 v11, 32768, v9")

        A(f"s_lshl_b32 s{s_t2}, s31, 15")
        A(f"s_lshl_b32 s{s_t1}, s{s_rg}, 13")
        A(f"s_add_u32 s{s_t2}, s{s_t2}, s{s_t1}")
        A(f"s_add_u32 s{s_t2}, s{s_t2}, {WS_KV}")
        A(f"v_add_u32 v2, s{s_t2}, v14")
        A(f"v_add_u32 v3, 4096, v2")
        A(f"v_xor_b32 v4, 64, v2")
        A(f"v_xor_b32 v7, 64, v3")

        def loads8(base, vs, soff):
            for hh in range(4):
                for st in range(2):
                    r = base + 8 * hh + 4 * st
                    A(f"buffer_load_dwordx4 v[{r}:{r + 3}], v{vs[hh]}, s[4:7], {soff} offen offset:{(hh & 1) * 2048 + st * 1024} sc1")

        def check8(base, younger):
            for hh in range(4):
                A(f"s_waitcnt vmcnt({younger + 6 - 2 * hh})")
                xor8(E + 2 * hh, base + 8 * hh)
                A(f"v_mov_b32 v{E + 2 * hh + 1}, v{E + 2 * hh}")
            for hh in range(4):
                A(f"v_permlane32_swap_b32 v{E + 2 * hh}, v{E + 2 * hh + 1}")
            for hh in range(4):
                A(f"v_bitop3_b32 v{E + 2 * hh}, v{E + 2 * hh}, v{E + 2 * hh + 1}, s33 bitop3:0x96")
            A(f"v_or3_b32 v{E}, v{E}, v{E + 2}, v{E + 4}")
            A(f"v_or_b32 v{E}, v{E}, v{E + 6}")
            A(f"v_cmp_ne_u32 vcc, 0, v{E}")

        def finish8(name, base, vs, younger):
            check8(base, younger)
            A(f"s_cbranch_vccz L_{name}_d")
            A("s_mov_b32 s90, 0")
            A("s_mov_b32 s58, 0")
            A.label(f"L_{name}")
            self.poll_next(90, 58, G_DELTA, f"L_{name}_t")
            loads8(base, vs, "s58")
            check8(base, 0)
            A(f"s_cbranch_vccnz L_{name}")
            A.label(f"L_{name}_t")
            A("s_waitcnt vmcnt(0)")
            A.label(f"L_{name}_d")
            for hh in range(4):
                A(f"v_cndmask_b32 v{base + 8 * hh + 6}, v{base + 8 * hh + 6}, 0, s[98:99]")
        loads8(PQ, (8, 8, 9, 9), "0")
        loads8(PQ1, (10, 10, 11, 11), "0")
        loads8(KV, (2, 4, 3, 7), "0")
        finish8("b_pq", PQ, (8, 8, 9, 9), 16)
        finish8("b_pq1", PQ1, (10, 10, 11, 11), 8)
        self.stamp(8)
        finish8("b_kv", KV, (2, 4, 3, 7), 0)
        self.stamp(9)
        NE, NO = 192, 208
        OP = 224
        A(f"s_mov_b32 s{s_t1}, {f32(1e-6)}")
        L_OX = SLOT
        A(f"s_mul_i32 s{s_t2}, s{s_rg}, 7168")
        A(f"s_add_u32 s{s_t2}, s{s_t2}, {L_OX}")
        A(f"v_add_u32 v5, s{s_t2}, v14")
        def M(u):
            rh, pp = u >> 1, u & 1
            NE = (192, 16)[u & 1]
            for (acc, hh) in ((NE, 2 * pp), (NE + 16, 2 * pp + 1)):
                a, b = KV + 8 * hh, (PQ, PQ1)[rh] + 8 * hh
                A(f"v_mfma_f32_32x32x16_bf16 v[{acc}:{acc + 15}], v[{a}:{a + 3}], v[{b}:{b + 3}], 0")
                A(f"v_mfma_f32_32x32x16_bf16 v[{acc}:{acc + 15}], v[{a + 4}:{a + 7}], v[{b + 4}:{b + 7}], v[{acc}:{acc + 15}]")

        def V(u):
            rh, pp = u >> 1, u & 1
            NE = (192, 16)[u & 1]
            NO = NE + 16
            OPr = (224, 96)[rh]
            A(f"v_cndmask_b32 v10, v{NO + 12}, v{NE + 12}, s[98:99]")
            A(f"v_add_f32 v10, s{s_t1}, v10")
            A("v_rcp_f32 v10, v10")
            for j in range(4):
                A(f"v_cndmask_b32 v{NE + 12 + j}, v{NE + 12 + j}, v{NO + 12 + j}, s[98:99]")
            A("v_mov_b32 v8, v10")
            A("v_permlane32_swap_b32 v10, v8")
            A("v_cndmask_b32 v6, v8, v10, s[98:99]")
            for i in range(12):
                A(f"v_mul_f32 v{NE + i}, v8, v{NE + i}")
            for i in range(12, 16):
                A(f"v_mul_f32 v{NE + i}, v6, v{NE + i}")
            for i in range(12):
                A(f"v_mul_f32 v{NO + i}, v10, v{NO + i}")
            for i in range(8):
                A(f"v_cvt_pk_bf16_f32 v{OPr + 14 * pp + i}, v{NE + 2 * i}, v{NE + 2 * i + 1}")
            for i in range(6):
                A(f"v_cvt_pk_bf16_f32 v{OPr + 14 * pp + 8 + i}, v{NO + 2 * i}, v{NO + 2 * i + 1}")
            lo, hi = (0, 3) if pp == 0 else (3, 7)
            for i in range(lo, hi):
                A(f"ds_write_b128 v5, v[{OPr + 4 * i}:{OPr + 4 * i + 3}] offset:{rh * 28672 + i * 1024}")

        def Vpk(u):
            rh, pp = u >> 1, u & 1
            NE = (192, 16)[u & 1]
            NO = NE + 16
            OPr = (224, 96)[rh]
            A(f"v_cndmask_b32 v10, v{NO + 12}, v{NE + 12}, s[98:99]")
            A(f"v_add_f32 v10, s{s_t1}, v10")
            A("v_rcp_f32 v10, v10")
            for j in range(4):
                A(f"v_cndmask_b32 v{NE + 12 + j}, v{NE + 12 + j}, v{NO + 12 + j}, s[98:99]")
            A("v_mov_b32 v8, v10")
            A("v_permlane32_swap_b32 v10, v8")
            A("v_cndmask_b32 v6, v8, v10, s[98:99]")
            for i in range(6):
                A(f"v_pk_mul_f32 v[{NE + 2 * i}:{NE + 2 * i + 1}], v[{NE + 2 * i}:{NE + 2 * i + 1}], v[8:9] op_sel_hi:[1,0]")
            for i in range(6, 8):
                A(f"v_pk_mul_f32 v[{NE + 2 * i}:{NE + 2 * i + 1}], v[{NE + 2 * i}:{NE + 2 * i + 1}], v[6:7] op_sel_hi:[1,0]")
            for i in range(6):
                A(f"v_pk_mul_f32 v[{NO + 2 * i}:{NO + 2 * i + 1}], v[{NO + 2 * i}:{NO + 2 * i + 1}], v[10:11] op_sel_hi:[1,0]")
            for i in range(8):
                A(f"v_cvt_pk_bf16_f32 v{OPr + 14 * pp + i}, v{NE + 2 * i}, v{NE + 2 * i + 1}")
            for i in range(6):
                A(f"v_cvt_pk_bf16_f32 v{OPr + 14 * pp + 8 + i}, v{NO + 2 * i}, v{NO + 2 * i + 1}")
            lo, hi = (0, 3) if pp == 0 else (3, 7)
            for i in range(lo, hi):
                A(f"ds_write_b128 v5, v[{OPr + 4 * i}:{OPr + 4 * i + 3}] offset:{rh * 28672 + i * 1024}")
        L_OF = L_EX + 28672
        A(f"s_lshl_b32 s{s_t2}, s{s_rg}, 2")
        A(f"s_add_u32 s{s_t2}, s{s_t2}, {L_OF}")
        A(f"v_mov_b32 v2, s{s_t2}")
        A("v_mov_b32 v3, s33")
        M(0)
        for u in range(4):
            if u + 1 < 4:
                M(u + 1)
            (V if o.get("nopk") else Vpk)(u)
            if u & 1:
                A(f"ds_write_b32 v2, v3 offset:{16 * (u >> 1)}")
        A("s_waitcnt lgkmcnt(0)")
        self.stamp(10)
        if o.get("wb3", 0):
            A("s_lshl_b32 s90, s3, 3")
            A("s_or_b32 s90, s90, s30")
            A(f"s_cmp_eq_u32 s90, 4")
            A("s_cbranch_scc0 L_b_fin")
            A("buffer_wbl2 sc1")
        A("s_branch L_b_fin")
        A.label("L_b_lo")
        A("s_cmp_eq_u32 s89, 0")
        A("s_cbranch_scc0 L_b_fin")
        if o.get("plo"):
            A(f"s_setprio {o['plo']}")
        A("s_mov_b32 s90, 0")
        if o.get("woq", 0):
            A("s_waitcnt vmcnt(0)")
            for c in range(14):
                r = XF + 8 * c
                for i in range(4):
                    A(f"v_bitop3_b32 v{WC + c}, v{WC + c}, v{r + 2 * i}, v{r + 2 * i + 1} bitop3:0x96")
                A(f"v_xor_b32 v{WC + c}, s33, v{WC + c}")
            A("s_branch L_b_wochk")
        A.label("L_b_wopoll")
        A("s_add_u32 s90, s90, 1")
        A("s_cmp_gt_u32 s90, 0x1000")
        A("s_cbranch_scc1 L_b_wod")
        WIN = o.get("win", 2)
        for u in range(14 + WIN):
            if u < 14:
                wop_load(2 * u)
                wop_load(2 * u + 1)
            c = u - WIN
            if c >= 0:
                r = XF + 8 * c
                A(f"s_waitcnt vmcnt({3 * (min(u, 13) - c)})")
                for i in range(4):
                    A(f"v_bitop3_b32 v{WC + c}, v{WC + c}, v{r + 2 * i}, v{r + 2 * i + 1} bitop3:0x96")
                A(f"v_xor_b32 v{WC + c}, s33, v{WC + c}")
        A.label("L_b_wochk")
        A(f"v_or_b32 v2, v{WC}, v{WC + 1}")
        for u in range(1, 7):
            A(f"v_or3_b32 v2, v2, v{WC + 2 * u}, v{WC + 2 * u + 1}")
        A("v_cmp_ne_u32 vcc, 0, v2")
        A("s_cbranch_vccnz L_b_wopoll")
        A.label("L_b_wod")
        A("s_waitcnt vmcnt(0)")
        if o.get("wb2", 0):
            A("s_lshl_b32 s90, s3, 3")
            A("s_or_b32 s90, s90, s30")
            A(f"s_cmp_eq_u32 s90, 27")
            A("s_cbranch_scc0 L_b_nwb")
            A("buffer_wbl2 sc1")
            A.label("L_b_nwb")
        self.stamp(8)
        A(f"v_add_u32 v5, {L_OX}, v14")
        A(f"s_mul_i32 s{s_t2}, s30, 5120")
        A(f"s_add_u32 s{s_t2}, s{s_t2}, {L_EX}")
        A(f"v_and_b32 v6, 31, v{VL}")
        A(f"v_mul_u32_u24 v6, 80, v6")
        A(f"v_lshrrev_b32 v7, 5, v{VL}")
        A(f"v_lshl_add_u32 v6, v7, 3, v6")
        A(f"v_add_u32 v6, s{s_t2}, v6")
        A(f"v_lshrrev_b32 v7, 2, v{VL}")
        A(f"v_mul_u32_u24 v8, 80, v7")
        A(f"v_and_b32 v9, 3, v{VL}")
        A(f"v_lshl_add_u32 v8, v9, 4, v8")
        A(f"v_add_u32 v8, s{s_t2}, v8")
        A(f"v_mul_u32_u24 v7, 1792, v7")
        A(f"v_lshl_add_u32 v7, v9, 4, v7")
        A(f"s_mul_i32 s{s_t2}, s{s_rb2}, {32 * 1792}")
        A(f"s_lshl_b32 s{s_t1}, s{s_q4}, 2")
        A(f"s_add_u32 s{s_t1}, s{s_t1}, s30")
        A(f"s_lshl_b32 s{s_t0}, s{s_t1}, 6")
        A(f"s_add_u32 s{s_t2}, s{s_t2}, s{s_t0}")
        A(f"s_add_u32 s{s_t2}, s{s_t2}, 896")
        A(f"s_cmp_eq_u32 s89, 0")
        A(f"s_cselect_b32 s{s_t2}, s{s_t2}, 0x7f000000")
        OB = 128
        AO = 192
        NB = 8
        EB = 160

        def epi(rh):
            out = []
            for i in range(8):
                out.append(f"v_cvt_pk_bf16_f32 v{OP + i}, v{AO + 16 * rh + 2 * i}, v{AO + 16 * rh + 2 * i + 1}")
            out.append(f"ds_write2_b64 v6, v[{OP}:{OP + 1}], v[{OP + 2}:{OP + 3}] offset0:0 offset1:2")
            out.append(f"ds_write2_b64 v6, v[{OP + 4}:{OP + 5}], v[{OP + 6}:{OP + 7}] offset0:4 offset1:6")
            for q in range(2):
                out.append(f"ds_read_b128 v[{EB + 4 * q}:{EB + 4 * q + 3}], v8 offset:{q * 16 * 80}")
            return out

        def epi_store():
            for q in range(2):
                A(f"buffer_store_dwordx4 v[{EB + 4 * q}:{EB + 4 * q + 3}], v7, s[8:11], s{s_t2} offen")
                A(f"s_add_u32 s{s_t2}, s{s_t2}, {16 * 1792}")
        A(f"v_mov_b32 v2, {L_OF}")
        for rh in range(2):
            A("s_mov_b32 s91, 0")
            A.label(f"L_of{rh}")
            A(f"ds_read_b128 v[{EB + 8}:{EB + 11}], v2 offset:{16 * rh}")
            A("s_add_u32 s91, s91, 1")
            A("s_cmp_gt_u32 s91, 0x100000")
            A(f"s_cbranch_scc1 L_of{rh}_d")
            A("s_waitcnt lgkmcnt(0)")
            for i in range(4):
                A(f"v_xor_b32 v{EB + 8 + i}, s33, v{EB + 8 + i}")
            A(f"v_or3_b32 v{EB + 8}, v{EB + 8}, v{EB + 9}, v{EB + 10}")
            A(f"v_or_b32 v{EB + 8}, v{EB + 8}, v{EB + 11}")
            A(f"v_cmp_ne_u32 vcc, 0, v{EB + 8}")
            A(f"s_cbranch_vccz L_of{rh}_d")
            A("s_sleep 1")
            A(f"s_branch L_of{rh}")
            A.label(f"L_of{rh}_d")
            A("s_waitcnt lgkmcnt(0)")
            if rh == 0:
                self.stamp(10)
            for n in range(NB - 1):
                A(f"ds_read_b128 v[{OB + 4 * n}:{OB + 4 * n + 3}], v5 offset:{rh * 28672 + n * 1024}")
            extra = 0
            for ks in range(28):
                n = ks + NB - 1
                if n < 28:
                    r = OB + 4 * (n % NB)
                    A(f"ds_read_b128 v[{r}:{r + 3}], v5 offset:{rh * 28672 + n * 1024}")
                    A(f"s_waitcnt lgkmcnt({NB - 1})")
                else:
                    A(f"s_waitcnt lgkmcnt({27 - ks})")
                r = OB + 4 * (ks % NB)
                a = XF + 4 * ks
                acc = AO + 16 * rh
                c = "0" if ks == 0 else f"v[{acc}:{acc + 15}]"
                A(f"v_mfma_f32_32x32x16_bf16 v[{acc}:{acc + 15}], v[{a}:{a + 3}], v[{r}:{r + 3}], {c}")
                if rh == 1 and ks == 3:
                    for e_ in epi(0):
                        A(e_)
                if rh == 1 and ks == 14:
                    epi_store()
        for e_ in epi(1):
            A(e_)
        A("s_waitcnt lgkmcnt(0)")
        epi_store()
        A.label("L_b_fin")
        self.stamp(11)
        self.dump_stamps(12)
        A("s_endpgm")

    def teamA(self):
        A = self.A
        o = self.o
        VL = 1
        A.label("L_teamA")
        self.inB = False
        s_a, s_pair, s_nh, s_scr, s_d = 36, 37, 38, 39, 40
        s_t0, s_t1, s_t2 = 41, 42, 43
        WS = "s[20:23]"
        FP = 144
        (aYD, aYC, aSW, aFT, aGW, aGR, aOUT, aUD, aUC, aUW, aTW, aVA, aVB, aYS, aYR, aPD, aPC, aSD, aSC, aUT, aKW, aPR, aZT,
         aSR, aWT) = range(224, 249)
        self.stamp(0)
        self.srd(100 - 4, 24, 2048 * 1792)
        A("s_mov_b64 s[12:13], s[20:21]")
        self.srd(20, 28, 0x10000000)
        A(f"v_lshlrev_b32 v2, 4, v{VL}")
        A(f"v_and_b32 v4, 3, v{VL}")
        A(f"v_lshrrev_b32 v5, 4, v{VL}")
        A(f"v_bfe_u32 v6, v{VL}, 2, 2")
        A(f"v_and_b32 v3, 7, v{VL}")
        A(f"v_lshrrev_b32 v12, 3, v{VL}")
        A(f"v_and_b32 v13, 15, v{VL}")
        A(f"v_and_b32 v14, 1, v{VL}")
        A(f"s_lshl_b32 s{s_t1}, s31, 7")
        A(f"v_mul_u32_u24 v{aOUT}, 1792, v12")
        A(f"v_lshl_add_u32 v{aOUT}, v3, 4, v{aOUT}")
        A(f"s_mul_i32 s{s_t0}, s59, {16 * 1792}")
        A(f"s_add_u32 s{s_t0}, s{s_t0}, s{s_t1}")
        A(f"v_add_u32 v{aOUT}, s{s_t0}, v{aOUT}")
        A(f"v_add_u32 v{aSW}, s{s_scr}, v2")
        A(f"v_bfe_u32 v15, v{VL}, 1, 3")
        A(f"v_mul_u32_u24 v{aSR}, {SCR_P2}, v15")
        A(f"v_lshl_add_u32 v{aSR}, v14, 3, v{aSR}")
        A(f"v_lshl_add_u32 v{aSR}, v5, 5, v{aSR}")
        A(f"v_add_u32 v{aSR}, s{s_scr}, v{aSR}")
        A(f"v_lshlrev_b32 v{aUT}, 7, v6")
        A(f"v_lshl_add_u32 v{aUT}, v5, 5, v{aUT}")
        A(f"v_lshl_add_u32 v{aUT}, v4, 3, v{aUT}")
        A(f"v_add_u32 v{aUT}, s101, v{aUT}")
        A(f"v_lshrrev_b32 v18, 2, v{VL}")
        A(f"v_mul_u32_u24 v{aSD}, {32 * 640}, v18")
        A(f"s_lshl_b32 s{s_t0}, s31, 9")
        A(f"s_add_u32 s{s_t0}, s{s_t0}, s32")
        A(f"s_mul_i32 s{s_t0}, s{s_t0}, 640")
        A(f"s_add_u32 s{s_t0}, s{s_t0}, {WS_UT}")
        A(f"s_lshl_b32 s{s_t1}, s{s_a}, 5")
        A(f"s_add_u32 s{s_t1}, s{s_t1}, s{s_t0}")
        A(f"v_lshl_add_u32 v{aSC}, v4, 3, v{aSD}")
        A(f"v_add_u32 v{aSC}, s{s_t1}, v{aSC}")
        A(f"s_lshl_b32 s{s_t1}, s{s_a}, 7")
        A(f"s_add_u32 s{s_t1}, s{s_t1}, s{s_t0}")
        A(f"v_lshl_add_u32 v{aSD}, v4, 4, v{aSD}")
        A(f"v_add_u32 v{aSD}, s{s_t1}, v{aSD}")
        A(f"s_lshl_b32 s{s_t0}, s31, 4")
        A(f"s_lshr_b32 s{s_t1}, s32, 1")
        A(f"s_add_u32 s{s_t0}, s{s_t0}, s{s_t1}")
        A(f"s_lshl_b32 s{s_t0}, s{s_t0}, 2")
        A(f"s_add_u32 s{s_t0}, s{s_t0}, s{s_a}")
        A(f"s_mul_i32 s{s_t0}, s{s_t0}, {8 * 640}")
        A(f"s_add_u32 s88, s{s_t0}, {WS_UT}")
        A(f"v_mul_u32_u24 v{aUD}, 640, v12")
        A(f"v_add_u32 v{aUD}, s88, v{aUD}")
        A(f"s_and_b32 s{s_t1}, s32, 1")
        A(f"s_lshl_b32 s{s_t1}, s{s_t1}, 1")
        A(f"v_add_u32 v19, s{s_t1}, v14")
        A(f"v_bfe_u32 v20, v{VL}, 1, 2")
        A(f"v_lshl_add_u32 v21, v20, 2, v19")
        A(f"v_lshl_add_u32 v{aUC}, v21, 3, v{aUD}")
        A(f"v_lshl_add_u32 v21, v20, 3, v19")
        A(f"v_lshl_add_u32 v{aUD}, v21, 4, v{aUD}")
        A(f"v_mul_u32_u24 v{aUW}, {2 * U_PITCH}, v14")
        A(f"v_lshrrev_b32 v21, 1, v{VL}")
        A(f"v_lshl_add_u32 v{aUW}, v21, 5, v{aUW}")
        A(f"s_lshl_b32 s{s_t0}, s{s_a}, 10")
        A(f"s_add_u32 s{s_t1}, s{s_t0}, {L_U + 448}")
        A(f"s_add_u32 s{s_t1}, s{s_t1}, s87")
        A(f"v_add_u32 v{aUW}, s{s_t1}, v{aUW}")
        A(f"s_add_u32 s{s_t0}, s{s_t0}, s100")
        A(f"v_lshlrev_b32 v{aYS}, 6, v15")
        A(f"v_lshl_add_u32 v{aYS}, v14, 3, v{aYS}")
        A(f"v_lshl_add_u32 v{aYS}, v5, 4, v{aYS}")
        A(f"v_add_u32 v{aYS}, s{s_t0}, v{aYS}")
        A(f"v_add_u32 v{aYR}, s{s_t0}, v2")
        A(f"v_mul_u32_u24 v{aTW}, {T_PITCH}, v13")
        A(f"v_lshl_add_u32 v{aTW}, v5, 3, v{aTW}")
        A(f"s_lshl_b32 s{s_t0}, s{s_pair}, 11")
        A(f"s_mul_i32 s{s_t1}, s{s_nh}, {16 * T_PITCH}")
        A(f"s_add_u32 s{s_t0}, s{s_t0}, s{s_t1}")
        A(f"s_add_u32 s{s_t0}, s{s_t0}, s100")
        A(f"v_add_u32 v{aTW}, s{s_t0}, v{aTW}")
        A(f"s_xor_b32 s{s_t0}, s{s_a}, 1")
        A(f"s_mul_i32 s{s_t0}, s{s_t0}, {SCR_SZ}")
        A(f"s_add_u32 s{s_t0}, s{s_t0}, s87")
        A(f"v_add_u32 v{aPR}, s{s_t0}, v2")
        A(f"s_mul_i32 s{s_t0}, s{s_pair}, {2 * SCR_SZ}")
        A(f"s_add_u32 s{s_t0}, s{s_t0}, s87")
        A(f"s_lshl_b32 s{s_t1}, s{s_nh}, 11")
        A(f"s_add_u32 s{s_t1}, s{s_t1}, s{s_t0}")
        A(f"v_add_u32 v{aKW}, s{s_t1}, v2")
        A(f"v_mul_u32_u24 v{aZT}, {KC_PITCH}, v18")
        A(f"v_lshl_add_u32 v{aZT}, v4, 4, v{aZT}")
        A(f"v_add_u32 v{aZT}, s{s_t0}, v{aZT}")
        A(f"v_mul_u32_u24 v{aVA}, {KC_PITCH}, v4")
        A(f"v_sub_u32 v21, v5, v6")
        A(f"v_lshl_add_u32 v{aVA}, v21, 4, v{aVA}")
        A(f"s_add_u32 s{s_t0}, s{s_t0}, {2 * (2040 - 1792)}")
        A(f"v_add_u32 v{aVA}, s{s_t0}, v{aVA}")
        A(f"v_xor_b32 v21, 1, v14")
        A(f"v_mul_u32_u24 v{aVB}, {U_PITCH}, v21")
        A(f"v_lshl_add_u32 v{aVB}, v5, 4, v{aVB}")
        A(f"v_lshl_add_u32 v{aVB}, v15, 6, v{aVB}")
        A(f"s_mul_i32 s{s_t0}, s{s_pair}, {2 * U_PITCH}")
        A(f"s_add_u32 s{s_t0}, s{s_t0}, {L_U + 448}")
        A(f"s_add_u32 s{s_t0}, s{s_t0}, s87")
        A(f"v_add_u32 v{aVB}, s{s_t0}, v{aVB}")
        A(f"v_bfe_u32 v21, v{VL}, 1, 4")
        A(f"v_mul_u32_u24 v{aPD}, 160, v21")
        A(f"s_lshl_b32 s{s_t0}, s31, 4")
        A(f"s_lshr_b32 s{s_t1}, s32, 1")
        A(f"s_add_u32 s{s_t1}, s{s_t1}, s{s_t0}")
        A(f"s_mul_i32 s{s_t1}, s{s_t1}, 20480")
        A(f"s_add_u32 s{s_t1}, s{s_t1}, {WS_UT}")
        A(f"v_add_u32 v{aPD}, s{s_t1}, v{aPD}")
        A(f"s_and_b32 s{s_t1}, s32, 1")
        A(f"s_lshl_b32 s{s_t1}, s{s_t1}, 1")
        A(f"s_add_u32 s{s_t1}, s{s_t1}, s{s_pair}")
        A(f"s_lshl_b32 s{s_t1}, s{s_t1}, 1")
        A(f"v_add_u32 v21, s{s_t1}, v14")
        A(f"v_lshl_add_u32 v{aPC}, v21, 2, v{aPD}")
        A(f"v_lshl_add_u32 v{aPD}, v21, 4, v{aPD}")
        A(f"s_mul_i32 s{s_t0}, s{s_t0}, 20480")
        A(f"s_mul_i32 s{s_t1}, s59, 160")
        A(f"s_add_u32 s{s_t0}, s{s_t0}, s{s_t1}")
        A(f"s_add_u32 s{s_t0}, s{s_t0}, {WS_UT}")
        A(f"v_mul_u32_u24 v{aYD}, 20480, v12")
        A(f"v_add_u32 v{aYD}, s{s_t0}, v{aYD}")
        A(f"v_lshl_add_u32 v{aYC}, v3, 2, v{aYD}")
        A(f"v_lshl_add_u32 v{aYD}, v3, 4, v{aYD}")
        A(f"v_lshl_add_u32 v{aFT}, v5, 3, v6")
        A(f"v_lshlrev_b32 v{aFT}, 5, v{aFT}")
        A(f"v_lshl_add_u32 v{aFT}, v4, 3, v{aFT}")
        A(f"v_add_u32 v{aFT}, s{s_scr}, v{aFT}")
        A(f"s_add_u32 s{s_t0}, s{s_scr}, 2048")
        A(f"v_mul_u32_u24 v{aGW}, {FP}, v13")
        A(f"v_lshl_add_u32 v{aGW}, v5, 4, v{aGW}")
        A(f"v_add_u32 v{aGW}, s{s_t0}, v{aGW}")
        A(f"v_mul_u32_u24 v{aGR}, {FP}, v12")
        A(f"v_lshl_add_u32 v{aGR}, v3, 4, v{aGR}")
        A(f"v_add_u32 v{aGR}, s{s_t0}, v{aGR}")
        A(f"s_mul_i32 s{s_t0}, s{s_a}, {U_PITCH}")
        A(f"s_add_u32 s{s_t0}, s{s_t0}, {L_U}")
        A(f"s_add_u32 s{s_t0}, s{s_t0}, s87")
        A(f"v_add_u32 v21, s{s_t0}, v2")
        for i in range(4):
            A(f"v_mov_b32 v{24 + i}, 0")
        A("s_mov_b32 exec_lo, 0x0fffffff")
        A("s_mov_b32 exec_hi, 0")
        A("ds_write_b128 v21, v[24:27]")
        A(f"s_lshl_b32 s{s_t0}, s{s_nh}, 28")
        A(f"s_or_b32 exec_lo, s{s_t0}, 1")
        A("ds_write_b64 v21, v[24:25]")
        A("s_mov_b64 exec, -1")
        A("v_mov_b32 v7, 0")
        TB = 84

        def publish_u(soff, flag, UO):
            for t in range(2):
                for k in range(4):
                    A(f"ds_read_b64_tr_b16 v[{UO + 10 * t + 2 * k}:{UO + 10 * t + 2 * k + 1}], v{aUT} offset:{2048 * t + k * 512}")
            for t in range(2):
                U_ = UO + 10 * t
                A(f"s_waitcnt lgkmcnt({4 - 4 * t})")
                A(f"buffer_store_dwordx4 v[{U_}:{U_ + 3}], v{aSD}, {WS}, {soff} offen offset:{640 * t}{flag}")
                A(f"buffer_store_dwordx4 v[{U_ + 4}:{U_ + 7}], v{aSD}, {WS}, {soff} offen offset:{640 * t + 64}{flag}")
                A(f"v_bitop3_b32 v{U_ + 8}, v{U_}, v{U_ + 1}, s33 bitop3:0x96")
                for i in range(3):
                    A(f"v_bitop3_b32 v{U_ + 8}, v{U_ + 8}, v{U_ + 2 + 2 * i}, v{U_ + 3 + 2 * i} bitop3:0x96")
                A(f"v_mov_b32 v{U_ + 9}, v{U_ + 8}")
                A(f"buffer_store_dwordx2 v[{U_ + 8}:{U_ + 9}], v{aSC}, {WS}, {soff} offen offset:{640 * t + 512}{flag}")
        def u_issue(lab):
            A("s_cmp_lt_u32 s30, 4")
            A(f"s_cbranch_scc0 {lab}")
            for k in range(4):
                A(f"s_add_u32 m0, s101, {1024 * k}")
                A(f"s_add_u32 s{s_t0}, s44, {(k & 1) * 8 * 896 + (k >> 1) * 64 * 896}")
                A(f"buffer_load_dwordx4 v62, s[52:55], s{s_t0} offen lds")
            A(f"v_lshlrev_b32 v22, 7, v{VL}")
            A("s_mov_b32 exec_hi, 0xff")
            A(f"buffer_load_dword v250, v22, {WS}, s88 offen sc1")
            A("s_mov_b32 exec_hi, -1")
            A.label(lab)
        A("s_waitcnt vmcnt(3) lgkmcnt(0)")
        A("s_mov_b32 s44, s56")
        A("s_cmp_lt_u32 s30, 4")
        A("s_cbranch_scc0 L_a_nl2")
        A("s_waitcnt vmcnt(0)")
        self.signal(F_NONCE, 21, 22, "0")
        A.label("L_a_nl2")
        A("s_waitcnt lgkmcnt(0)")
        self.stamp(1)
        AL, TH = 26, 28
        CC = 30
        W1, W8, W256 = 34, 38, 42
        tq = 46
        A(f"s_lshl_b32 s{s_t0}, s{s_pair}, 4")
        A(f"s_lshr_b32 s50, s50, s{s_t0}")
        A(f"s_lshl_b32 s50, s50, 16")
        A(f"s_lshr_b32 s51, s51, s{s_t0}")
        A(f"s_lshl_b32 s51, s51, 16")
        A(f"s_mov_b32 s{s_t1}, {f32(LOG2E)}")
        A(f"s_mov_b32 s{s_t2}, 0xffff0000")
        A(f"v_mov_b32 v{tq}, s50")
        A(f"v_mul_f32 v{tq}, s{s_t1}, v{tq}")
        A(f"v_lshlrev_b32 v{tq + 2}, 16, v8")
        A(f"v_and_b32 v{tq + 3}, s{s_t2}, v8")
        A(f"v_exp_f32 v{tq}, v{tq}")
        A(f"v_mul_f32 v{tq + 2}, s{s_t1}, v{tq + 2}")
        A(f"v_mul_f32 v{tq + 3}, s{s_t1}, v{tq + 3}")
        A(f"v_exp_f32 v{tq + 2}, v{tq + 2}")
        A(f"v_exp_f32 v{tq + 3}, v{tq + 3}")
        A(f"v_cvt_pk_bf16_f32 v{tq}, v{tq}, v{tq}")
        A(f"v_and_b32 v{tq}, s{s_t2}, v{tq}")
        A(f"v_cvt_pk_bf16_f32 v{tq + 2}, v{tq + 2}, v{tq + 3}")
        A(f"v_lshlrev_b32 v{TH}, 16, v9")
        A(f"v_and_b32 v{TH + 1}, s{s_t2}, v9")
        A(f"v_lshlrev_b32 v{AL}, 16, v{tq + 2}")
        A(f"v_and_b32 v{AL + 1}, s{s_t2}, v{tq + 2}")
        A(f"v_pk_mul_f32 v[{TH}:{TH + 1}], v[{TH}:{TH + 1}], v[{tq}:{tq + 1}] op_sel_hi:[1,0]")
        A(f"v_pk_mul_f32 v[{AL}:{AL + 1}], v[{AL}:{AL + 1}], v[{tq}:{tq + 1}] op_sel_hi:[1,0]")
        for i in range(2):
            A(f"v_mul_f32 v{TH + i}, {f32(INV2PI)}, v{TH + i}")
            A(f"v_mul_f32 v{AL + i}, {f32(-LOG2E)}, v{AL + i}")
        A(f"v_add_f32 v{tq}, v{tq}, v{tq}")
        A(f"v_lshlrev_b32 v{CC}, 16, v10")
        A(f"v_and_b32 v{CC + 2}, s{s_t2}, v10")
        A(f"v_lshlrev_b32 v{CC + 1}, 16, v11")
        A(f"v_and_b32 v{CC + 3}, s{s_t2}, v11")
        for i in range(2):
            A(f"v_pk_mul_f32 v[{CC + 2 * i}:{CC + 2 * i + 1}], v[{CC + 2 * i}:{CC + 2 * i + 1}], v[{tq}:{tq + 1}] op_sel_hi:[1,0] neg_hi:[1,0]")

        def wdirect(dst, m, conj):
            for i in range(2):
                a, t = tq + 4 * i, tq + 4 * i + 1
                if m == 1:
                    A(f"v_exp_f32 v{a}, v{AL + i}")
                    A(f"v_fract_f32 v{t}, v{TH + i}")
                else:
                    A(f"v_mul_f32 v{a}, {f32(float(m))}, v{AL + i}")
                    A(f"v_mul_f32 v{t}, {f32(float(m))}, v{TH + i}")
                    A(f"v_exp_f32 v{a}, v{a}")
                    A(f"v_fract_f32 v{t}, v{t}")
            for i in range(2):
                a, t = tq + 4 * i, tq + 4 * i + 1
                A(f"v_cos_f32 v{tq + 4 * i + 2}, v{t}")
                A(f"v_sin_f32 v{tq + 4 * i + 3}, v{t}")
            for i in range(2):
                a = tq + 4 * i
                neg = " neg_hi:[1,0]" if conj else ""
                A(f"v_pk_mul_f32 v[{dst + 2 * i}:{dst + 2 * i + 1}], v[{a + 2}:{a + 3}], v[{a}:{a + 1}] op_sel_hi:[1,0]{neg}")
        wdirect(W1, 1, True)
        wdirect(W256, 256, True)
        wdirect(W8, 8, False)
        if o.get("upos", 4) == 1:
            u_issue("L_a_nu")
        self.stamp(2)
        XS = 64
        PKB = 8
        tm = 16
        st = {"pend": None}

        def pack(psrc, prow):
            b = PKB + 4 * ((prow >> 1) & 1) + 2 * (prow & 1)
            A(f"v_cvt_pk_bf16_f32 v{b}, v{psrc}, v{psrc + 1}")
            A(f"v_cvt_pk_bf16_f32 v{b + 1}, v{psrc + 2}, v{psrc + 3}")

        def wr(prow):
            q = PKB + 4 * ((prow >> 1) & 1)
            return f"ds_write_b128 v{aSW}, v[{q}:{q + 3}] offset:{(prow >> 1) * SCR_P2}"

        def flush_val():
            if st["pend"] is None:
                return
            src, row = st["pend"]
            st["pend"] = None
            pack(src, row)
            A(wr(row))

        def emit_val(src, row):
            if st["pend"] is not None:
                psrc, prow = st["pend"]
                pack(psrc, prow)
                if prow & 1:
                    A(wr(prow))
            st["pend"] = (src, row)

        def cm2(dst, src, w):
            f0 = self.cmul(dst, src, w, tm)
            f1 = self.cmul(dst + 2, src + 2, w + 2, tm + 2)
            w_ = None
            if st["pend"] is not None:
                psrc, prow = st["pend"]
                assert psrc != dst
                st["pend"] = None
                pack(psrc, prow)
                if prow & 1:
                    w_ = wr(prow)
            A(f0)
            A(f1)
            if w_:
                A(w_)

        def frags(dst):
            flush_val()
            for k in range(8):
                A(f"ds_read2_b64 v[{dst + 4 * k}:{dst + 4 * k + 3}], v{aSR} offset0:{16 * k} offset1:{16 * k + 2}")
        AF0, AF1, BF = 128, 160, 192
        ACC = 112
        slot = lambda k: XS + 4 * k
        emit_val(CC, 0)
        prev = CC
        for c in range(1, 8):
            cm2(slot(c), prev, W1)
            emit_val(slot(c), c)
            prev = slot(c)
        src_of = {8: CC, 9: slot(2), 10: slot(4), 11: slot(6)}
        loc = {}
        free = [slot(1), slot(3), slot(5), slot(0), slot(8), slot(9), slot(10), slot(7)]
        for c in range(8, 12):
            loc[c] = free.pop(0)
            cm2(loc[c], src_of[c], W256)
            emit_val(loc[c], c)
        for c, s_ in ((12, 8), (13, 10), (14, 12), (15, 13)):
            loc[c] = free.pop(0)
            cm2(loc[c], loc[s_], W256)
            emit_val(loc[c], c)
        frags(AF0)
        if o.get("upos", 4) == 2:
            u_issue("L_a_nu")
        prev = loc[14]
        pp = [slot(2), slot(4)]
        for c in range(16, 21):
            dst = pp[c & 1]
            cm2(dst, prev, W256)
            emit_val(dst, c - 16)
            prev = dst
        frags(AF1)
        A("s_load_dword s33, s[26:27], 0")
        if o.get("upos", 4) == 3:
            u_issue("L_a_nu")
        A(f"v_mov_b32 v{PKB}, 0x3f80")
        A(f"v_mov_b32 v{PKB + 1}, 0x3f80")
        emit_val(W8, 1)
        prev = W8
        pp = [slot(0), slot(1)]

        def mf(ct):
            for k in range(8):
                for rt, af in ((0, AF0), (1, AF1)):
                    acc = ACC + 8 * rt + 4 * ct
                    c = "0" if k == 0 else f"v[{acc}:{acc + 3}]"
                    yield f"v_mfma_f32_16x16x32_bf16 v[{acc}:{acc + 3}], v[{af + 4 * k}:{af + 4 * k + 3}], v[{BF + 4 * k}:{BF + 4 * k + 3}], {c}"
        for j in range(2, 16):
            dst = pp[j & 1]
            cm2(dst, prev, W8)
            emit_val(dst, j)
            prev = dst
        frags(BF)
        A("s_waitcnt lgkmcnt(0)")
        A("s_cmp_lg_u32 s33, 0")
        A("s_cbranch_scc1 L_a_gn")
        self.get_nonce(249, 7, first_loaded=False, vm=0)
        A.label("L_a_gn")
        A(f"s_cmp_eq_u32 s30, 0")
        A("s_cbranch_scc0 L_a_nl")
        self.census_write(WS, 21, 22, s_t0)
        A.label("L_a_nl")
        if o.get("upos", 4) == 4:
            u_issue("L_a_nu")
        self.stamp(3)
        g0 = mf(0)
        for j in range(16, 32):
            dst = pp[j & 1]
            cm2(dst, prev, W8)
            emit_val(dst, j - 16)
            prev = dst
            A(next(g0))
        frags(BF)
        A(f"s_cmp_eq_u32 s{s_nh}, 0")
        A("s_cselect_b64 s[56:57], -1, 0")
        A(f"v_cmp_eq_u32 vcc, 0, v{VL}")
        A("s_and_b64 vcc, vcc, s[56:57]")
        A("v_mov_b32 v16, s51")
        A("v_cndmask_b32 v16, 0, v16, vcc")
        A(f"v_cmp_eq_u32 s[48:49], 16, v{VL}")
        A(f"s_lshl_b32 s58, s{s_pair}, 2")
        A(f"s_add_u32 s58, s58, s86")
        for k in range(8):
            A(f"s_waitcnt lgkmcnt({7 - k})")
            g = list(mf(1))
            A(g[2 * k])
            A(g[2 * k + 1])
        UD = 20
        self.stamp(4)
        if o.get("pexp", 2):
            A(f"s_setprio {o.get('pexp', 2)}")
        KP, GV = 64, 72
        for rt in range(2):
            for r in range(4):
                a0, a1 = ACC + 8 * rt + r, ACC + 8 * rt + 4 + r
                A(f"v_cndmask_b32 v{GV + 4 * rt + r}, v{a0}, v{a1}, s[56:57]")
        A(f"ds_write_b128 v{aSW}, v[{GV}:{GV + 3}]")
        A(f"ds_write_b128 v{aSW}, v[{GV + 4}:{GV + 7}] offset:1024")
        self.signal(F_AX0, 10, 11, "s58")
        for rt in range(2):
            for r in range(4):
                a0, a1 = ACC + 8 * rt + r, ACC + 8 * rt + 4 + r
                A(f"v_cndmask_b32 v{KP + 4 * rt + r}, v{a1}, v{a0}, s[56:57]")
        A(f"v_add_f32 v{KP}, v{KP}, v16")
        A("s_cmp_lt_u32 s30, 4")
        A("s_cbranch_scc0 L_a_np")
        A("s_waitcnt vmcnt(0)")
        publish_u("0", "", 192)
        A.label("L_a_np")
        GA = 128
        TBQ = 84
        self.wait_flag(F_NONCE, 4, 10, 11, "0")
        A(f"s_mul_i32 s{s_t0}, s{s_nh}, 3072")
        A(f"s_add_u32 s{s_t0}, s{s_t0}, {L_TAB}")
        A(f"v_add_u32 v10, s{s_t0}, v2")
        for i in range(3):
            A(f"ds_read_b128 v[{TBQ + 4 * i}:{TBQ + 4 * i + 3}], v10 offset:{i * 1024}")
        A(f"s_lshl_b32 s{s_t0}, s86, 5")
        A(f"s_lshl_b32 s{s_t1}, s{s_pair}, 11")
        A(f"s_add_u32 s{s_t0}, s{s_t0}, s{s_t1}")
        A(f"s_mul_i32 s{s_t0}, s{s_t0}, 0x10001")
        A("s_waitcnt lgkmcnt(0)")
        for i in range(12):
            A(f"v_add_u32 v{TBQ + i}, s{s_t0}, v{TBQ + i}")
        for i in range(12):
            A(f"v_and_b32 v{GA + 2 * i}, 0xffff, v{TBQ + i}")
            A(f"v_lshrrev_b32 v{GA + 2 * i + 1}, 16, v{TBQ + i}")
        self.wait_flag(F_AX0, 2, 10, 11, "s58")
        A(f"ds_read_b128 v[{GV}:{GV + 3}], v{aPR}")
        A(f"ds_read_b128 v[{GV + 4}:{GV + 7}], v{aPR} offset:1024")
        A("s_waitcnt lgkmcnt(0)")
        for i in range(4):
            A(f"v_pk_add_f32 v[{KP + 2 * i}:{KP + 2 * i + 1}], v[{KP + 2 * i}:{KP + 2 * i + 1}], v[{GV + 2 * i}:{GV + 2 * i + 1}]")
        A(f"v_cndmask_b32 v{KP + 7}, v{KP + 7}, 0, s[48:49]")
        for i in range(4):
            A(f"v_cvt_pk_bf16_f32 v{GV + i}, v{KP + 2 * i}, v{KP + 2 * i + 1}")
        A(f"ds_write_b64 v{aTW}, v[{GV}:{GV + 1}]")
        A("s_mov_b32 exec_hi, 0")
        A(f"ds_write_b64 v{aTW}, v[{GV + 2}:{GV + 3}] offset:32")
        A("s_mov_b32 exec_hi, -1")
        self.signal(F_AT0, 10, 11, "s58")
        self.wait_flag(F_AT0, 2, 10, 11, "s58")
        P = 64
        for r in range(2):
            for m in range(11):
                A(f"ds_read_u16 v{P + 12 * r + m}, v{GA + 12 * r + m}")
                if m == 7:
                    A("s_waitcnt lgkmcnt(6)")
        A(f"buffer_load_dwordx4 v[{UD}:{UD + 3}], v{aUD}, {WS}, 0 offen sc1")
        A(f"buffer_load_dwordx4 v[{UD + 4}:{UD + 7}], v{aUD}, {WS}, 0 offen offset:64 sc1")
        A(f"buffer_load_dword v{UD + 8}, v{aUC}, {WS}, 0 offen offset:512 sc1")
        self.census_load(WS, 29, 5, s_t0, 1)
        for i in range(4):
            A(f"v_mov_b32 v{12 + i}, 0")
        QQ = 88
        for r in range(2):
            p = P + 12 * r
            A(f"s_waitcnt lgkmcnt({11 if r == 0 else 4})")
            for sc in range(4):
                q = QQ + 16 * r + 4 * sc
                for k in range(4):
                    m = 3 - sc + 2 * k
                    A(f"v_lshl_or_b32 v{q + k}, v{p + m + 1}, 16, v{p + m}")
                if r == 1:
                    A(f"ds_write_b128 v{aKW}, v[{q}:{q + 3}] offset:{r * 1024 + sc * KC_PITCH}")
            if r == 0:
                for sc in range(4):
                    q = QQ + 16 * r + 4 * sc
                    A(f"ds_write_b128 v{aKW}, v[{q}:{q + 3}] offset:{r * 1024 + sc * KC_PITCH}")
        A("s_mov_b64 exec, 0xffff")
        A(f"ds_write_b128 v{aZT}, v[12:15] offset:4096")
        A("s_mov_b64 exec, -1")
        A("s_waitcnt vmcnt(0)")
        self.census_eval(29, 95, s_t0)
        A("s_cmp_ge_u32 s30, 4")
        A("s_cselect_b32 s95, 1, s95")
        A("s_cmp_eq_u32 s95, 1")
        A("s_cbranch_scc1 L_a_nug")
        A(f"s_mov_b32 s94, {G_DELTA}")
        publish_u("s94", " sc1", 192)
        A.label("L_a_nug")
        A("s_mov_b32 s92, 0")
        A("s_mov_b32 s94, 0")
        A("s_branch L_a_uchk")
        A.label("L_a_upoll")
        self.poll_next(92, 94, G_DELTA, "L_a_udone")
        A(f"buffer_load_dwordx4 v[{UD}:{UD + 3}], v{aUD}, {WS}, s94 offen sc1")
        A(f"buffer_load_dwordx4 v[{UD + 4}:{UD + 7}], v{aUD}, {WS}, s94 offen offset:64 sc1")
        A(f"buffer_load_dword v{UD + 8}, v{aUC}, {WS}, s94 offen offset:512 sc1")
        A("s_waitcnt vmcnt(0)")
        A.label("L_a_uchk")
        A(f"v_bitop3_b32 v10, v{UD}, v{UD + 1}, v{UD + 2} bitop3:0x96")
        A(f"v_bitop3_b32 v10, v10, v{UD + 3}, v{UD + 4} bitop3:0x96")
        A(f"v_bitop3_b32 v10, v10, v{UD + 5}, v{UD + 6} bitop3:0x96")
        A(f"v_bitop3_b32 v10, v10, v{UD + 7}, v{UD + 8} bitop3:0x96")
        A("v_cmp_ne_u32 vcc, s33, v10")
        A("s_cbranch_vccnz L_a_upoll")
        A.label("L_a_udone")
        A("s_waitcnt vmcnt(0)")
        self.stamp(5)
        self.census_load(WS, 251, 5, s_t0, 1)
        A(f"ds_write_b128 v{aUW}, v[{UD}:{UD + 3}]")
        A(f"ds_write_b128 v{aUW}, v[{UD + 4}:{UD + 7}] offset:16")
        A(f"ds_write2_b64 v{aUW}, v[{UD}:{UD + 1}], v[{UD + 2}:{UD + 3}] offset0:0 offset1:0" if False else f"v_add_u32 v10, {U_PITCH + 8}, v{aUW}")
        A(f"ds_write2_b64 v10, v[{UD}:{UD + 1}], v[{UD + 2}:{UD + 3}] offset0:0 offset1:1")
        A(f"ds_write2_b64 v10, v[{UD + 4}:{UD + 5}], v[{UD + 6}:{UD + 7}] offset0:2 offset1:3")
        self.signal(F_AK0, 10, 11)
        CA = 64
        for i in range(20):
            A(f"v_mov_b32 v{CA + i}, 0")
        self.wait_flag(F_AK0, 4, 10, 11)
        self.stamp(6)
        if o.get("pexp", 2):
            A(f"s_setprio {o.get('pcv', 1)}")
        regs = dict(aYS=aYS, aYR=aYR, aPD=aPD, aPC=aPC)
        A(f"s_cmp_eq_u32 s{s_nh}, 0")
        A("s_cbranch_scc0 L_a_conv1")
        self.conv("c0", [7, 6, 2], aVA, aVB, CA, regs)
        A("s_branch L_a_convd")
        A.label("L_a_conv1")
        self.conv("c1", [5, 4, 3, 1, 0], aVA, aVB, CA, regs)
        A.label("L_a_convd")
        self.stamp(8)
        A("s_setprio 0")
        self.signal(F_ACV, 10, 11)
        if o.get("wb1", 0):
            A("s_lshl_b32 s90, s3, 3")
            A("s_or_b32 s90, s90, s30")
            A(f"s_cmp_eq_u32 s90, {128 + o.get('wbw', 0)}")
            A("s_cbranch_scc0 L_a_nwb")
            A("buffer_wbl2 sc1")
            A.label("L_a_nwb")
        A(f"s_mov_b32 s{s_t0}, {8 * 1792}")
        self.wait_flag(F_ACV, 4, 10, 11)
        A("s_mov_b32 s92, 0")
        A("s_mov_b32 s94, 0")
        A.label("L_a_ypoll")
        self.poll_next(92, 94, YT_G, "L_a_ydone")
        A(f"s_add_u32 s95, s94, {8 * 20480}")
        A(f"buffer_load_dwordx4 v[20:23], v{aYD}, {WS}, s94 offen sc1")
        A(f"buffer_load_dwordx4 v[24:27], v{aYD}, {WS}, s95 offen sc1")
        A(f"buffer_load_dword v28, v{aYC}, {WS}, s94 offen offset:128 sc1")
        A(f"buffer_load_dword v30, v{aYC}, {WS}, s95 offen offset:128 sc1")
        A("s_waitcnt vmcnt(0)")
        A("v_bitop3_b32 v10, v20, v21, v22 bitop3:0x96")
        A("v_bitop3_b32 v11, v24, v25, v26 bitop3:0x96")
        A("v_bitop3_b32 v10, v10, v23, v28 bitop3:0x96")
        A("v_bitop3_b32 v11, v11, v27, v30 bitop3:0x96")
        A("v_xor_b32 v10, s89, v10")
        A("v_xor_b32 v11, s89, v11")
        A("v_or_b32 v10, v10, v11")
        A("v_cmp_ne_u32 vcc, 0, v10")
        A("s_cbranch_vccnz L_a_ypoll")
        A.label("L_a_ydone")
        A("s_waitcnt vmcnt(0)")
        self.stamp(9)
        A(f"ds_write_b128 v{aSW}, v[20:23]")
        A(f"ds_write_b128 v{aSW}, v[24:27] offset:1024")
        A(f"ds_read_b64_tr_b16 v[20:21], v{aFT}")
        A(f"ds_read_b64_tr_b16 v[22:23], v{aFT} offset:128")
        A(f"ds_read_b64_tr_b16 v[24:25], v{aFT} offset:1024")
        A(f"ds_read_b64_tr_b16 v[26:27], v{aFT} offset:1152")
        A("s_waitcnt lgkmcnt(2)")
        A(f"ds_write_b128 v{aGW}, v[20:23]")
        A("s_waitcnt lgkmcnt(1)")
        A(f"ds_write_b128 v{aGW}, v[24:27] offset:64")
        A(f"ds_read_b128 v[28:31], v{aGR}")
        A(f"ds_read_b128 v[32:35], v{aGR} offset:{8 * FP}")
        A("s_waitcnt lgkmcnt(1)")
        A(f"buffer_store_dwordx4 v[28:31], v{aOUT}, s[96:99], 0 offen")
        A("s_waitcnt lgkmcnt(0)")
        A(f"buffer_store_dwordx4 v[32:35], v{aOUT}, s[96:99], s{s_t0} offen")
        self.stamp(10)
        self.dump_stamps(11)
        A("s_endpgm")

    def prefetch_late(self, va, vb, vc, sa, wp, xp, c0=4, with_q=True):
        A = self.A
        do_kv = self.o.get("pfe" if c0 == 0 else "pfl", 1)
        with_q = with_q and self.o.get("pfq", 1)
        if not do_kv and not with_q:
            return
        A(f"s_and_b32 s{sa}, s3, 15")
        A(f"s_and_b32 s{sa + 2}, s30, 3")
        A(f"s_add_u32 s{sa + 2}, s{sa + 2}, {c0}")
        A(f"s_min_u32 s{sa + 2}, s{sa + 2}, 6")
        A(f"v_mul_u32_u24 v{vc}, 37, v1")
        A(f"v_lshrrev_b32 v{vb}, 9, v{vc}")
        A(f"v_mad_u32_u24 v{va}, v{vb}, 7, v1")
        A(f"v_lshlrev_b32 v{va}, 7, v{va}")
        A(f"s_lshl_b32 s{sa + 1}, s{sa + 2}, 4")
        A(f"s_add_u32 s{sa + 1}, s{sa + 1}, s{sa}")
        A(f"s_mul_i32 s{sa + 1}, s{sa + 1}, {4 * 2688}")
        A(f"v_add_u32 v{va}, s{sa + 1}, v{va}")
        A("s_mov_b32 exec_hi, 0xffffff")
        if do_kv:
            A(f"global_load_dword v254, v{va}, {wp} offset:896")
        A("s_mov_b64 exec, -1")
        A(f"v_mul_u32_u24 v{vb}, 896, v1")
        A(f"s_lshl_b32 s{sa + 1}, s31, 4")
        A(f"s_add_u32 s{sa + 1}, s{sa + 1}, s{sa}")
        A(f"s_mul_i32 s{sa + 1}, s{sa + 1}, {16 * 896}")
        A(f"s_lshl_b32 s{sa + 2}, s{sa + 2}, 7")
        A(f"s_add_u32 s{sa + 1}, s{sa + 1}, s{sa + 2}")
        A(f"v_add_u32 v{vb}, s{sa + 1}, v{vb}")
        A("s_mov_b64 exec, 0xffff")
        if do_kv:
            A(f"global_load_dword v254, v{vb}, {xp}")
        A("s_mov_b64 exec, -1")
        if not with_q:
            return
        A(f"v_lshrrev_b32 v{vb}, 8, v{vc}")
        A(f"v_mad_u32_u24 v{va}, v{vb}, 14, v1")
        A(f"v_lshlrev_b32 v{va}, 7, v{va}")
        A(f"s_lshl_b32 s{sa}, s{sa}, 2")
        A(f"s_and_b32 s{sa + 2}, s30, 3")
        A(f"s_add_u32 s{sa}, s{sa}, s{sa + 2}")
        A(f"s_mul_i32 s{sa}, s{sa}, {7 * 2688}")
        A(f"v_add_u32 v{va}, s{sa}, v{va}")
        A("s_mov_b32 exec_hi, 0x1ffff")
        A(f"global_load_dword v254, v{va}, {wp}")
        A("s_mov_b64 exec, -1")

    def packer(self):
        A = self.A
        VL = 1
        WS = "s[20:23]"
        A.label("L_pack")
        A("s_cmp_ge_u32 s30, 4")
        A("s_cbranch_scc0 L_p_p1")
        self.prefetch_late(12, 13, 14, 45, "s[20:21]", "s[18:19]")
        A.label("L_p_p1")
        self.srd(12, 22, 448 * 896)
        self.srd(20, 28, 0x10000000)
        A("s_and_b32 s45, s3, 15")
        A("s_lshl_b32 s45, s45, 3")
        A("s_add_u32 s45, s45, s30")
        A(f"v_lshlrev_b32 v2, 4, v{VL}")
        A(f"v_lshlrev_b32 v3, 2, v{VL}")
        A(f"v_and_b32 v4, 3, v{VL}")
        A(f"v_bfe_u32 v6, v{VL}, 2, 2")
        A(f"v_lshrrev_b32 v16, 5, v{VL}")
        A(f"v_bfe_u32 v17, v{VL}, 4, 1")
        A(f"v_lshl_add_u32 v20, v16, 2, v6")
        A(f"v_lshlrev_b32 v20, 6, v20")
        A(f"v_lshl_add_u32 v20, v17, 5, v20")
        A(f"v_lshl_add_u32 v20, v4, 3, v20")
        A(f"v_add_u32 v20, s101, v20")
        for rnd in range(2):
            A("s_mul_hi_u32 s58, s45, 0x12492493")
            A("s_mul_i32 s41, s58, 14")
            A("s_sub_u32 s41, s45, s41")
            A("s_lshl_b32 s41, s41, 2")
            A("s_lshl_b32 s58, s58, 6")
            A(f"s_mul_i32 s{46 + rnd}, s45, {WOP_U}")
            A(f"s_add_u32 s{46 + rnd}, s{46 + rnd}, {WS_WOP}")
            A("s_cmp_lt_u32 s45, 196")
            A("s_cselect_b32 s58, s58, 0x7f000000")
            A(f"s_cselect_b32 s{46 + rnd}, s{46 + rnd}, 0x7f000000")
            for f in range(2):
                A(f"v_add_u32 v24, s41, v16")
                if f:
                    A(f"v_add_u32 v24, 2, v24")
                A(f"v_mul_u32_u24 v25, 37, v24")
                A(f"v_lshrrev_b32 v25, 8, v25")
                A(f"v_mul_u32_u24 v26, 7, v25")
                A(f"v_sub_u32 v24, v24, v26")
                A(f"v_lshlrev_b32 v26, 2, v17")
                A(f"v_mul_u32_u24 v27, 28, v17")
                A(f"v_sub_u32 v28, 0, v26")
                A(f"v_cmp_eq_u32 vcc, 3, v24")
                A(f"v_cndmask_b32 v26, v26, v27, vcc")
                A(f"v_cmp_lt_u32 vcc, 3, v24")
                A(f"v_cndmask_b32 v26, v26, v28, vcc")
                A(f"v_lshl_add_u32 v26, v24, 3, v26")
                A(f"v_mad_u32_u24 v26, v25, 56, v26")
                A(f"v_add_u32 v26, v26, v6")
                A(f"v_mul_u32_u24 v26, 896, v26")
                A(f"v_lshl_add_u32 v26, v4, 4, v26")
                A(f"s_add_u32 m0, s101, {2048 * rnd + 1024 * f}")
                A(f"buffer_load_dwordx4 v26, s[12:15], s58 offen lds")
            A("s_add_u32 s45, s45, 128")
        A("s_waitcnt vmcnt(0)")
        self.get_nonce(24, 7, first_loaded=False, vm=0)
        for k in range(8):
            A(f"ds_read_b64_tr_b16 v[{32 + 2 * k}:{33 + 2 * k}], v20 offset:{k * 512}")
        A("s_waitcnt lgkmcnt(0)")
        for rnd in range(2):
            b = 32 + 8 * rnd
            A(f"buffer_store_dwordx4 v[{b}:{b + 3}], v2, {WS}, s{46 + rnd} offen sc1")
            A(f"buffer_store_dwordx4 v[{b + 4}:{b + 7}], v2, {WS}, s{46 + rnd} offen offset:1024 sc1")
            A(f"v_bitop3_b32 v{50 + rnd}, v{b}, v{b + 1}, s33 bitop3:0x96")
            for i in range(3):
                A(f"v_bitop3_b32 v{50 + rnd}, v{50 + rnd}, v{b + 2 + 2 * i}, v{b + 3 + 2 * i} bitop3:0x96")
            A(f"buffer_store_dword v{50 + rnd}, v3, {WS}, s{46 + rnd} offen offset:2048 sc1")
        A("s_endpgm")

    def get_nonce(self, vd, vzero, first_loaded, vm):
        A = self.A
        L, Lc, Ld = A.uid("Ln"), A.uid("Lnc"), A.uid("Lnd")
        A("s_mov_b32 s91, 0")
        if first_loaded:
            A(f"s_waitcnt vmcnt({vm})")
            A(f"s_branch {Lc}")
        A.label(L)
        A(f"global_load_dword v{vd}, v{vzero}, s[26:27] sc1")
        A("s_waitcnt vmcnt(0)")
        A.label(Lc)
        A(f"v_readfirstlane_b32 s33, v{vd}")
        A("s_add_u32 s91, s91, 1")
        A("s_cmp_gt_u32 s91, 0x4000")
        A(f"s_cbranch_scc1 {Ld}")
        A("s_cmp_eq_u32 s33, 0")
        A(f"s_cbranch_scc1 {L}")
        A.label(Ld)
        A("s_or_b32 s33, s33, 1")

    def conv(self, name, tiles, vA, vB, CA, R):
        A = self.A
        VL = 1
        s_a, s_pair, s_nh = 36, 37, 38
        s_t0, s_t1 = 41, 42
        nmax = max(tiles) + 1
        FA, FB = 96, 160
        def loads(st):
            out = []
            for k in range(nmax):
                out.append(f"ds_read_b128 v[{FB + 32 * st + 4 * k}:{FB + 32 * st + 4 * k + 3}], v{vB} offset:{512 * k}")
                out.append(f"ds_read_b128 v[{FA + 32 * st + 4 * k}:{FA + 32 * st + 4 * k + 3}], v{vA} offset:{512 * (7 - k)}")
            return out
        def mfmas(st):
            out = []
            units = [(a, c - a, ti) for ti, c in enumerate(tiles) for a in range(c + 1)]
            units.sort(key=lambda u: (max(u[0], u[1]), u[2]))
            for a, cp, ti in units:
                acc = CA + 4 * ti
                fa = FA + 32 * st + 4 * a
                fb = FB + 32 * st + 4 * cp
                out.append(f"v_mfma_f32_16x16x32_bf16 v[{acc}:{acc + 3}], v[{fa}:{fa + 3}], v[{fb}:{fb + 3}], v[{acc}:{acc + 3}]")
            return out
        for l_ in loads(0):
            A(l_)
        A(f"v_subrev_u32 v{vA}, 64, v{vA}")
        A(f"v_subrev_u32 v{vB}, 64, v{vB}")
        A("s_mov_b32 s91, 0")
        A.label(f"L_{name}_loop")
        for st in range(2):
            ld = loads(1 - st)
            mf = mfmas(st)
            A("s_waitcnt lgkmcnt(0)")
            last = (st == 1)
            if last:
                A("s_cmp_eq_u32 s91, 3")
                A(f"s_cbranch_scc1 L_{name}_tail")
            for i, m_ in enumerate(mf):
                if i < len(ld):
                    A(ld[i])
                A(m_)
            A(f"v_subrev_u32 v{vA}, 64, v{vA}")
            A(f"v_subrev_u32 v{vB}, 64, v{vB}")
        A("s_add_u32 s91, s91, 1")
        A(f"s_branch L_{name}_loop")
        A.label(f"L_{name}_tail")
        for m_ in mfmas(1):
            A(m_)
        self.stamp(7)
        TS = 16 * 160
        A("s_xor_b32 s89, s33, 0x5a5a0000")
        A("s_xor_b32 s92, s86, 128")
        self.wait_flag(F_AK0, 4, 10, 11, "s92")
        A(f"v_cmp_lt_u32 s[56:57], 31, v{VL}")
        A("s_waitcnt vmcnt(0)")
        self.census_eval(251, 93, s_t0)
        A(f"s_mov_b32 s94, {YT_G}")
        stores = []
        for k in range(0, len(tiles), 2):
            grp = list(range(k, min(k + 2, len(tiles))))
            for q, ti in enumerate(grp):
                acc = CA + 4 * ti
                A(f"v_cvt_pk_bf16_f32 v{12 + 2 * q}, v{acc}, v{acc + 1}")
                A(f"v_cvt_pk_bf16_f32 v{13 + 2 * q}, v{acc + 2}, v{acc + 3}")
                A(f"ds_write_b64 v{R['aYS']}, v[{12 + 2 * q}:{13 + 2 * q}] offset:{q * 512}")
            D = 20 + 8 * (k // 2)
            A(f"ds_read_b128 v[{D}:{D + 3}], v{R['aYR']}")
            c0 = tiles[grp[0]]
            c1 = tiles[grp[-1]]
            A(f"v_mov_b32 v9, {c0 * TS}")
            A(f"v_mov_b32 v10, {c1 * TS}")
            A(f"v_cndmask_b32 v9, v9, v10, s[56:57]")
            A(f"v_add_u32 v{D + 6}, v9, v{R['aPD']}")
            A(f"v_add_u32 v{D + 7}, v9, v{R['aPC']}")
            A("s_waitcnt lgkmcnt(0)")
            A(f"v_bitop3_b32 v{D + 4}, v{D}, v{D + 1}, v{D + 2} bitop3:0x96")
            A(f"v_bitop3_b32 v{D + 4}, v{D + 4}, v{D + 3}, s89 bitop3:0x96")
            stores.append((D, len(grp) == 1))
            if len(grp) == 1:
                A("s_mov_b32 exec_hi, 0")
            A(f"buffer_store_dwordx4 v[{D}:{D + 3}], v{D + 6}, s[20:23], 0 offen")
            A(f"buffer_store_dword v{D + 4}, v{D + 7}, s[20:23], 0 offen offset:128")
            if len(grp) == 1:
                A("s_mov_b32 exec_hi, -1")
        A("s_cmp_eq_u32 s93, 1")
        A(f"s_cbranch_scc1 L_{name}_nog")
        for D, half in stores:
            if half:
                A("s_mov_b32 exec_hi, 0")
            A(f"buffer_store_dwordx4 v[{D}:{D + 3}], v{D + 6}, s[20:23], s94 offen sc1")
            A(f"buffer_store_dword v{D + 4}, v{D + 7}, s[20:23], s94 offen offset:128 sc1")
            if half:
                A("s_mov_b32 exec_hi, -1")
        A.label(f"L_{name}_nog")

    def build(self):
        A = self.A
        self.prologue()
        self.teamB()
        self.teamA()
        self.packer()
        A.label("L_end")
        A("s_endpgm")
        body = A.finalize(verbose=True)
        tab = gather_table().reshape(-1).view(np.uint32)
        tab = np.concatenate([tab, np.zeros(512 + 1024, np.uint32)])
        tabtxt = "\n".join(".long " + ", ".join("0x%08x" % x for x in tab[i:i + 8]) for i in range(0, len(tab), 8))
        hdr = open(os.path.join(os.path.dirname(os.path.abspath(__file__)), "header.txt")).read()
        txt = hdr + f"""; @launch grid=(256,1,1) block=(512,1,1) lds={LDS_TOTAL}
.amdgcn_target "amdgcn-amd-amdhsa--gfx950"
.text
.globl {KNAME}
.p2align 8
.type {KNAME},@function
{KNAME}:
{body}
L_code_end:
.p2align 8
.type gather_tab,@object
gather_tab:
{tabtxt}
.size gather_tab, {len(tab) * 4}
.section .rodata,"a"
.p2align 6
.amdhsa_kernel {KNAME}
  .amdhsa_next_free_vgpr 256
  .amdhsa_next_free_sgpr 102
  .amdhsa_accum_offset 256
  .amdhsa_group_segment_fixed_size 0
  .amdhsa_kernarg_size 104
  .amdhsa_user_sgpr_count 2
  .amdhsa_user_sgpr_kernarg_segment_ptr 1
  .amdhsa_system_sgpr_workgroup_id_x 1
.end_amdhsa_kernel
"""
        return txt


if __name__ == "__main__":
    import argparse
    ap = argparse.ArgumentParser()
    ap.add_argument("-o", default="concat_heads__ssm_conv_s4d__linear_attn_block__prompt.s")
    ap.add_argument("--stamps", action="store_true")
    ap.add_argument("--pf", type=int, default=6)
    ap.add_argument("--dumpA", action="store_true")
    ap.add_argument("--noA", action="store_true")
    ap.add_argument("--noB", action="store_true")
    ap.add_argument("--endstamp", action="store_true")
    ap.add_argument("--spin", type=int, default=0)
    ap.add_argument("--opt", action="append", default=[])
    a = ap.parse_args()
    g = Gen({"stamps": a.stamps, "pf_n": a.pf + (1 if a.stamps or a.dumpA else 0), "dumpA": a.dumpA, "noA": a.noA, "noB": a.noB, "endstamp": a.endstamp, "spin": a.spin})
    for kv in a.opt:
        k_, v_ = kv.split("=")
        g.o[k_] = int(v_)
    open(a.o, "w").write(g.build())
```

```python
import sys, os, struct
sys.path.insert(0, os.path.dirname(os.path.abspath(__file__)))
from asmdsl import Asm
import numpy as np

KNAME = "concat_heads__ssm_conv_s4d__linear_attn_block__prompt_kernel"

WS_PART = 0x000000
WS_KV = 0x080000
G_DELTA = 0x1000000
KV_G = G_DELTA
WS_PQ = 0x100000
WS_UT = 0x300000
WS_YT = 0x600000
YT_G = 2 * G_DELTA
T_PITCH = 56
POLL_LOCAL = 48
WS_CEN = 0x5C0000
WS_WOP = 0x540000
WOP_U = 2304
WS_DBG = 0x3000000

SCR_P2 = 1040
SCR_SZ = 8704
KC_PITCH = 4160
U_PITCH = 4576
L_FLAG = 0
L_T = 256
L_TEAM = 8448
TEAM_SZ = 53248
L_U = 34816
L_STG = L_TEAM + 2 * TEAM_SZ
L_TAB = L_STG + 4 * 4096
SLOT = 32768
L_EX = 4 * SLOT
LDS_TOTAL = 163840

F_W, F_WQ, F_RED, F_WO0, F_WO0R, F_WO1, F_OX, F_NONCE = 0, 1, 2, 3, 4, 5, 6, 7
F_AX0, F_AT0, F_AK0, F_ACV, F_AF = 8, 10, 12, 14, 15
F_WS = 16

TBR = (54, 58, 108)
LOG2E = 1.4426950408889634
INV2PI = 0.15915494309189535


def f32(x):
    return "0x%08x" % struct.unpack("<I", struct.pack("<f", x))[0]


ROWS = list(range(8)) + [256, 258, 260, 262, 512, 516, 768, 772, 1024, 1280, 1536, 1792, 2048]


def bf16_round_int(x):
    if x < 256:
        return x
    e = x.bit_length() - 8
    step = 1 << e
    lo = (x >> e) << e
    rem = x - lo
    if rem * 2 < step:
        return lo
    if rem * 2 > step:
        return lo + step
    return lo if ((lo >> e) & 1) == 0 else lo + step


def t_index(p):
    for c, r in enumerate(ROWS):
        if p >= r and (p - r) % 8 == 0 and (p - r) // 8 < 32:
            if p < 256 and c < 8:
                return c, (p - r) // 8
            if 256 <= p < 512 and 8 <= c < 12:
                return c, (p - r) // 8
            if 512 <= p < 1024 and 12 <= c < 16:
                return c, (p - r) // 8
            if 1024 <= p < 2048 and 16 <= c < 20:
                return c, (p - r) // 8
            if p == 2048 and c == 20:
                return c, 0
    raise ValueError(p)


def gather_table():
    tab = np.zeros((2, 3, 64, 8), np.uint16)
    for a in range(2):
        tb = L_T + 2048 * (a >> 1)
        zero_addr = tb + 23 * 2
        for r in range(2):
            rho = 2 * (a & 1) + r
            for l in range(64):
                y0 = 512 * rho + 8 * l
                for m in range(12):
                    idx = 2047 - y0 - m
                    if idx < 0:
                        ad = zero_addr
                    else:
                        c, j = t_index(bf16_round_int(idx))
                        ad = tb + j * T_PITCH + c * 2
                    k = r * 12 + m
                    tab[a, k // 8, l, k % 8] = ad
    return tab


class Gen:
    def __init__(self, opts):
        self.A = Asm()
        self.o = opts

    def signal(self, flag, vtmp_addr, vtmp_one, sbase="s86"):
        A = self.A
        A(f"v_mov_b32 v{vtmp_addr}, {sbase}")
        A(f"v_mov_b32 v{vtmp_one}, 1")
        A("s_mov_b64 exec, 1")
        A(f"ds_add_u32 v{vtmp_addr}, v{vtmp_one} offset:{4 * flag}")
        A("s_mov_b64 exec, -1")

    def wait_flag(self, flag, count, vtmp_addr, vtmp, sbase="s86", stmp=90):
        A = self.A
        L = A.uid("Lw")
        Ld = A.uid("Lwd")
        A(f"v_mov_b32 v{vtmp_addr}, {sbase}")
        A(f"s_mov_b32 s{stmp + 1}, 0")
        A.label(L)
        A(f"ds_read_b32 v{vtmp}, v{vtmp_addr} offset:{4 * flag}")
        A(f"s_add_u32 s{stmp + 1}, s{stmp + 1}, 1")
        A(f"s_cmp_gt_u32 s{stmp + 1}, 0x40000")
        A(f"s_cbranch_scc1 {Ld}")
        A("s_waitcnt lgkmcnt(0)")
        A(f"v_readfirstlane_b32 s{stmp}, v{vtmp}")
        A(f"s_cmp_ge_u32 s{stmp}, {count}")
        A(f"s_cbranch_scc1 {Ld}")
        if self.o.get("slp", 1):
            A(f"s_sleep {self.o.get('slp', 1)}")
        A(f"s_branch {L}")
        A.label(Ld)
        A("s_waitcnt lgkmcnt(0)")

    def spec_wait(self, flag, count, vtmp_addr, vtmp, reads, sbase="s86", stmp=90):
        A = self.A
        assert len(reads) <= 14
        L = A.uid("Ls")
        Ld = A.uid("Lsd")
        A(f"v_mov_b32 v{vtmp_addr}, {sbase}")
        A(f"s_mov_b32 s{stmp + 1}, 0")
        A.label(L)
        A(f"ds_read_b32 v{vtmp}, v{vtmp_addr} offset:{4 * flag}")
        for r in reads:
            A(r)
        A(f"s_add_u32 s{stmp + 1}, s{stmp + 1}, 1")
        A(f"s_cmp_gt_u32 s{stmp + 1}, 0x40000")
        A(f"s_cbranch_scc1 {Ld}")
        A(f"s_waitcnt lgkmcnt({len(reads)})")
        A(f"v_readfirstlane_b32 s{stmp}, v{vtmp}")
        A(f"s_cmp_lt_u32 s{stmp}, {count}")
        A(f"s_cbranch_scc1 {L}")
        A.label(Ld)

    def srd(self, sd, sptr, nbytes):
        A = self.A
        A(f"s_mov_b32 s{sd}, s{sptr}")
        A(f"s_and_b32 s{sd + 1}, s{sptr + 1}, 0xffff")
        A(f"s_mov_b32 s{sd + 2}, {nbytes}")
        A(f"s_mov_b32 s{sd + 3}, 0x00020000")

    def stamp(self, i, fine=False):
        if self.o.get("fine") and self.inB and not fine and i >= 3:
            return
        if fine and not self.o.get("fine"):
            return
        if self.o.get("stamps"):
            self.A(f"s_memtime s[{64 + 2 * i}:{65 + 2 * i}]")

    def dump_stamps(self, n):
        if self.o.get("endstamp"):
            A = self.A
            A("s_waitcnt vmcnt(0)")
            A("s_memrealtime s[90:91]")
            A("s_and_b32 s92, s30, 4")
            A("s_add_u32 s92, s92, 4")
            A("v_mov_b32 v2, s92")
            A("s_waitcnt lgkmcnt(0)")
            A("v_mov_b32 v3, s90")
            A("s_mov_b64 exec, 1")
            A("global_atomic_umax v2, v3, s[26:27]")
            A("s_mov_b64 exec, -1")
        if not self.o.get("stamps"):
            return
        A = self.A
        A("s_waitcnt lgkmcnt(0)")
        A("s_lshl_b32 s90, s2, 3")
        A("s_add_u32 s90, s90, s30")
        A("s_lshl_b32 s90, s90, 7")
        A(f"s_add_u32 s90, s90, {WS_DBG}")
        A("v_mov_b32 v2, s90")
        A("s_mov_b64 exec, 1")
        for i in range(n):
            A(f"s_sub_u32 s91, s{64 + 2 * i}, s62")
            A("v_mov_b32 v3, s91")
            A(f"global_store_dword v2, v3, s[28:29] offset:{4 * i}")
        A("v_mov_b32 v3, s60")
        A(f"global_store_dword v2, v3, s[28:29] offset:{4 * 15}")
        A("s_mov_b64 exec, -1")

    def census_write(self, srd, v0_, v1_, st):
        A = self.A
        A(f"s_getreg_b32 s{st}, hwreg(HW_REG_XCC_ID)")
        A(f"s_and_b32 s{st}, s{st}, 15")
        A(f"s_lshl_b32 s{st}, s{st}, 4")
        A(f"s_xor_b32 s{st}, s{st}, s33")
        A(f"v_mov_b32 v{v1_}, s{st}")
        A(f"s_lshl_b32 s{st}, s31, 5")
        A(f"s_add_u32 s{st}, s{st}, s3")
        A(f"s_lshl_b32 s{st}, s{st}, 3")
        A(f"s_add_u32 s{st}, s{st}, {WS_CEN}")
        A(f"v_mov_b32 v{v0_}, s{st}")
        A(f"v_mov_b32 v{v1_ + 1}, v{v1_}")
        A("s_mov_b64 exec, 1")
        A(f"buffer_store_dwordx2 v[{v1_}:{v1_ + 1}], v{v0_}, {srd}, 0 offen")
        A("s_mov_b64 exec, -1")

    def census_load(self, srd, vd, vt, st, half):
        A = self.A
        A(f"v_and_b32 v{vt}, 15, v1")
        A(f"v_lshlrev_b32 v{vt}, 3, v{vt}")
        A(f"s_lshl_b32 s{st}, s31, 8")
        A(f"s_add_u32 s{st}, s{st}, {WS_CEN + 128 * half}")
        A(f"buffer_load_dword v{vd}, v{vt}, {srd}, s{st} offen sc1")

    def census_eval(self, vd, sdst, st):
        A = self.A
        A(f"s_getreg_b32 s{st}, hwreg(HW_REG_XCC_ID)")
        A(f"s_and_b32 s{st}, s{st}, 15")
        A(f"s_lshl_b32 s{st}, s{st}, 4")
        A(f"s_xor_b32 s{st}, s{st}, s33")
        A(f"v_cmp_ne_u32 vcc, s{st}, v{vd}")
        A("s_cmp_eq_u64 vcc, 0")
        A(f"s_cselect_b32 s{sdst}, 1, 0")

    def poll_next(self, scnt, soff, delta, Ldone):
        A = self.A
        A(f"s_add_u32 s{scnt}, s{scnt}, 1")
        A(f"s_cmp_gt_u32 s{scnt}, 0x4000")
        A(f"s_cbranch_scc1 {Ldone}")
        A(f"s_cmp_gt_u32 s{scnt}, {POLL_LOCAL}")
        A(f"s_cselect_b32 s{scnt + 1}, {delta}, 0")
        A(f"s_xor_b32 s{soff}, s{soff}, s{scnt + 1}")
        if self.o.get("pslp", 2):
            A(f"s_sleep {self.o.get('pslp', 2)}")

    def cmul(self, d, z, w, t):
        A = self.A
        if self.scalar_cmul:
            A(f"v_mul_f32 v{t}, v{z}, v{w}")
            A(f"v_mul_f32 v{t + 1}, v{z}, v{w + 1}")
            return f"v_fma_f32 v{d}, -v{z + 1}, v{w + 1}, v{t}\nv_fma_f32 v{d + 1}, v{z + 1}, v{w}, v{t + 1}"
        A(f"v_pk_mul_f32 v[{t}:{t + 1}], v[{z}:{z + 1}], v[{w}:{w + 1}] op_sel:[0,0] op_sel_hi:[0,1]")
        return f"v_pk_fma_f32 v[{d}:{d + 1}], v[{z}:{z + 1}], v[{w}:{w + 1}], v[{t}:{t + 1}] op_sel:[1,1,0] op_sel_hi:[1,0,1] neg_lo:[0,1,0]"

    def prologue(self):
        A = self.A
        o = self.o
        VL = 1
        A("s_cmp_ge_u32 s2, 256")
        A("s_cbranch_scc1 L_end")
        if o.get("stamps"):
            A("s_memtime s[62:63]")
            A("s_memrealtime s[60:61]")
        if o.get("spin"):
            A("s_memtime s[36:37]")
            A("s_waitcnt lgkmcnt(0)")
            A.label("L_spin")
            A("s_memtime s[38:39]")
            A("s_waitcnt lgkmcnt(0)")
            A("s_sub_u32 s40, s38, s36")
            A(f"s_cmp_lt_u32 s40, {o['spin']}")
            A("s_cbranch_scc1 L_spin")
        A("s_load_dwordx16 s[4:19], s[0:1], 0")
        A("s_load_dwordx8 s[20:27], s[0:1], 64")
        A("s_load_dwordx2 s[28:29], s[0:1], 96")
        A("s_getpc_b64 s[34:35]")
        A("s_lshr_b32 s3, s2, 3")
        A("s_and_b32 s34, s34, 0xffffff00")
        A("s_and_b32 s33, s3, 3")
        A("s_lshl_b32 s33, s33, 13")
        A("v_lshlrev_b32 v2, 4, v0")
        A("v_add_u32 v2, s33, v2")
        A("global_load_dword v255, v2, s[34:35]")
        A("v_and_b32 v1, 63, v0")
        A("v_lshrrev_b32 v2, 6, v0")
        A("s_and_b32 s31, s2, 7")
        A("v_readfirstlane_b32 s30, v2")
        A("s_cmp_lt_u32 s3, 16")
        A("s_cbranch_scc1 L_teamB")
        s_a, s_pair, s_nh, s_scr, s_d = 36, 37, 38, 39, 40
        s_t0, s_t1, s_t2 = 41, 42, 43
        A(f"s_lshr_b32 s{s_t2}, s30, 2")
        A(f"s_and_b32 s32, s3, 15")
        A(f"s_lshl_b32 s32, s32, 1")
        A(f"s_add_u32 s32, s32, s{s_t2}")
        A(f"s_and_b32 s{s_a}, s30, 3")
        A(f"s_lshr_b32 s{s_pair}, s{s_a}, 1")
        A(f"s_and_b32 s{s_nh}, s{s_a}, 1")
        A(f"s_lshl_b32 s{s_d}, s31, 5")
        A(f"s_add_u32 s{s_d}, s{s_d}, s32")
        A(f"s_lshl_b32 s44, s{s_d}, 2")
        A(f"s_lshl_b32 s{s_d}, s{s_d}, 1")
        A(f"s_add_u32 s{s_d}, s{s_d}, s{s_pair}")
        A(f"s_lshl_b32 s{s_t0}, s{s_d}, 9")
        A(f"s_lshl_b32 s{s_t1}, s{s_nh}, 8")
        A(f"s_add_u32 s{s_t0}, s{s_t0}, s{s_t1}")
        A(f"v_lshlrev_b32 v5, 2, v{VL}")
        A(f"v_add_u32 v6, s{s_t0}, v5")
        A("v_mov_b32 v7, 0")
        A(f"s_lshl_b32 s86, s{s_t2}, 7")
        A(f"s_mul_i32 s87, s{s_t2}, {TEAM_SZ}")
        A(f"s_add_u32 s87, s87, {L_TEAM}")
        A(f"s_lshl_b32 s100, s{s_t2}, 12")
        A(f"s_add_u32 s100, s100, {L_T}")
        A(f"s_mul_i32 s{s_scr}, s{s_a}, {SCR_SZ}")
        A(f"s_add_u32 s{s_scr}, s{s_scr}, s87")
        A("ds_write_b32 v5, v7")
        A(f"v_lshrrev_b32 v62, 3, v{VL}")
        A(f"v_mul_u32_u24 v62, 896, v62")
        A(f"v_and_b32 v4, 7, v{VL}")
        A(f"v_lshl_add_u32 v62, v4, 4, v62")
        A(f"s_lshl_b32 s59, s32, 2")
        A(f"s_add_u32 s59, s59, s{s_a}")
        A(f"s_mul_i32 s56, s59, {16 * 896}")
        A(f"s_lshl_b32 s57, s31, 7")
        A(f"s_add_u32 s56, s56, s57")
        A(f"s_add_u32 s57, s56, {8 * 896}")
        A(f"s_lshl_b32 s101, s30, 12")
        A(f"s_add_u32 s101, s101, {L_STG}")
        A(f"s_add_u32 s46, s34, gather_tab-{KNAME}")
        A(f"s_addc_u32 s47, s35, 0")
        A(f"s_lshl_b32 s45, s{s_a}, 11")
        A(f"v_lshl_add_u32 v63, v{VL}, 4, s45")
        A("s_waitcnt lgkmcnt(0)")
        A("s_barrier")
        A("s_cmp_ge_u32 s30, 4")
        A("s_cbranch_scc0 L_a_pf0")
        self.prefetch_late(12, 13, 14, 90, "s[20:21]", "s[18:19]", c0=0, with_q=False)
        A.label("L_a_pf0")
        A("s_cmp_eq_u32 s31, 7")
        A("s_cbranch_scc1 L_pack")
        if o.get("noA"):
            A("s_endpgm")
        A("global_load_dword v8, v6, s[6:7]")
        A("global_load_dword v9, v6, s[8:9]")
        A("global_load_dword v10, v6, s[10:11]")
        A("global_load_dword v11, v6, s[12:13]")
        A("s_load_dword s50, s[14:15], s44")
        A("s_load_dword s51, s[16:17], s44")
        self.srd(52, 4, 2048 * 896)
        A("s_cmp_lt_u32 s30, 4")
        A("s_cbranch_scc0 L_a_p0")
        A("s_setprio 1")
        A(f"s_add_u32 m0, s45, {L_TAB}")
        A("s_nop 0")
        A("global_load_lds_dwordx4 v63, s[46:47]")
        A("global_load_lds_dwordx4 v63, s[46:47] offset:1024")
        if o.get("upos", 4) == 0:
            for k in range(4):
                A(f"s_add_u32 m0, s101, {1024 * k}")
                A(f"s_add_u32 s57, s56, {(k & 1) * 8 * 896 + (k >> 1) * 64 * 896}")
                A(f"buffer_load_dwordx4 v62, s[52:55], s57 offen lds")
        A("s_branch L_a_p1")
        A.label("L_a_p0")
        self.prefetch_late(12, 13, 14, 90, "s[20:21]", "s[18:19]")
        A.label("L_a_p1")
        A("s_branch L_teamA")

    def teamB(self):
        A = self.A
        o = self.o
        VL = 1
        vW, vX, vXR, vTR = 2, 3, 7, 11
        XF, AK, AV, AQ, WF = 16, 128, 144, 160, 176
        T = 192
        TT = 240
        sX, sW = 36, 40
        s_rb, s_h, s_rot, s_xo, s_wo_, s_rg = 48, 49, 50, 51, 52, 53
        s_t0, s_t1, s_t2, s_hd = 54, 55, 56, 57
        A.label("L_teamB")
        self.inB = True
        if o.get("noB"):
            A("s_cmp_eq_u32 s2, 0")
            A("s_cbranch_scc0 L_end")
        vm = []

        def VM(text, tag):
            A(text)
            vm.append(tag)

        def wait_vm(tag):
            last = max(i for i, t in enumerate(vm) if t == tag)
            n = len(vm) - 1 - last
            assert n <= 63
            A(f"s_waitcnt vmcnt({n})")
        A("s_memrealtime s[44:45]")
        A(f"s_lshl_b32 s{s_rb}, s31, 1")
        A(f"s_and_b32 s{s_t0}, s3, 1")
        A(f"s_add_u32 s{s_rb}, s{s_rb}, s{s_t0}")
        A(f"s_and_b32 s{s_rg}, s30, 3")
        A(f"s_lshr_b32 s{s_hd}, s30, 2")
        A(f"s_and_b32 s{s_h}, s3, 14")
        A(f"s_mul_i32 s{s_wo_}, s{s_h}, 56")
        A(f"s_add_u32 s{s_h}, s{s_h}, s{s_hd}")
        A(f"s_add_u32 s{s_rot}, s3, s31")
        A(f"s_mul_hi_u32 s{s_t0}, s{s_rot}, 0x24924925")
        A(f"s_mul_i32 s{s_t0}, s{s_t0}, 7")
        A(f"s_sub_u32 s{s_rot}, s{s_rot}, s{s_t0}")
        if not o.get("rot", 0):
            A(f"s_mov_b32 s{s_rot}, 0")
        A(f"v_lshrrev_b32 v{TT}, 3, v{VL}")
        A(f"v_mul_u32_u24 v{vW}, 2688, v{TT}")
        A(f"v_and_b32 v{TT + 2}, 7, v{VL}")
        A(f"v_bfe_u32 v{TT + 1}, v{VL}, 4, 1")
        A(f"v_lshlrev_b32 v{TT + 1}, 2, v{TT + 1}")
        A(f"v_xor_b32 v{TT + 1}, v{TT + 1}, v{TT + 2}")
        A(f"v_min_u32 v{TT + 1}, 6, v{TT + 1}")
        A(f"v_lshl_add_u32 v{vW}, v{TT + 1}, 4, v{vW}")
        A(f"v_mul_u32_u24 v{TT}, 896, v{TT}")
        A(f"v_lshrrev_b32 v{TT + 1}, 4, v{VL}")
        A(f"v_xor_b32 v{TT + 1}, v{TT + 1}, v{TT + 2}")
        A(f"v_lshl_add_u32 v{vX}, v{TT + 1}, 4, v{TT}")
        A(f"v_xor_b32 v{TT + 1}, 4, v{TT + 1}")
        A(f"v_lshl_add_u32 v{vX + 1}, v{TT + 1}, 4, v{TT}")
        A(f"v_add_u32 v{vX + 1}, {8 * 896}, v{vX + 1}")
        s_xb, s_wb, s_lx, s_lw = 96, 59, 97, 58
        A(f"s_lshl_b32 s{s_t0}, s{s_rb}, 3")
        A(f"s_add_u32 s{s_t0}, s{s_t0}, s30")
        A(f"s_mul_i32 s{s_xb}, s{s_t0}, {16 * 896}")
        A(f"s_mul_i32 s{s_wb}, s{s_rg}, {16 * 2688}")
        A(f"s_add_u32 s{s_t0}, s{s_hd}, 1")
        A(f"s_mul_i32 s{s_t0}, s{s_t0}, 896")
        A(f"s_add_u32 s{s_wb}, s{s_wb}, s{s_t0}")
        A(f"s_add_u32 s{s_wb}, s{s_wb}, s{s_wo_}")
        A(f"s_lshl_b32 s{s_lx}, s30, 11")
        A(f"s_mov_b32 s{s_xo}, s{s_rot}")
        A("s_lshl_b32 s46, s2, 3")
        A("s_or_b32 s46, s46, s30")
        A("v_mov_b32 v6, 0")
        A(f"v_mul_u32_u24 v14, 37, v{VL}")
        A(f"v_lshrrev_b32 v14, 8, v14")
        A(f"v_mul_u32_u24 v15, {(64 * 2688 - 7 * 128) // 128}, v14")
        A(f"v_add_lshl_u32 v15, v15, v{VL}, 7")
        A(f"v_and_b32 v13, 1, v{VL}")
        A(f"v_mul_u32_u24 v13, {896 - 64}, v13")
        A(f"v_lshl_add_u32 v13, v{VL}, 6, v13")
        A("s_waitcnt lgkmcnt(0)")
        self.srd(sW, 20, 448 * 2688)
        self.srd(sX, 18, 2048 * 896)
        A("s_cmp_eq_u32 s46, 0")
        A("s_cbranch_scc0 L_b_nn")
        A("s_or_b32 s44, s44, 1")
        A("v_mov_b32 v5, s44")
        A("s_mov_b64 exec, 1")
        A("global_store_dword v6, v5, s[26:27] sc1")
        A("s_mov_b64 exec, -1")
        A.label("L_b_nn")
        if o.get("noB"):
            A("s_endpgm")

        def next_chunk():
            A(f"s_add_u32 s{s_xo}, s{s_xo}, 1")
            A(f"s_cmp_ge_u32 s{s_xo}, 7")
            A(f"s_cselect_b32 s{s_xo}, 0, s{s_xo}")

        def issue_stage(p):
            base = (p % 4) * SLOT
            A(f"s_mul_i32 s{s_t2}, s{s_xo}, {64 * 2688}")
            A(f"s_add_u32 s{s_t2}, s{s_t2}, s{s_wb}")
            A(f"s_add_u32 m0, s{s_lx}, {base + 16384}")
            A(f"s_lshl_b32 s{s_t1}, s{s_xo}, 7")
            VM(f"buffer_load_dwordx4 v{vW}, s[{sW}:{sW + 3}], s{s_t2} offen lds", f"s{p}")
            A(f"s_add_u32 m0, s{s_lx}, {base + 16384 + 1024}")
            A(f"s_add_u32 s{s_t2}, s{s_t2}, {8 * 2688}")
            VM(f"buffer_load_dwordx4 v{vW}, s[{sW}:{sW + 3}], s{s_t2} offen lds", f"s{p}")
            A(f"s_add_u32 m0, s{s_lx}, {base}")
            A(f"s_add_u32 s{s_t1}, s{s_t1}, s{s_xb}")
            VM(f"buffer_load_dwordx4 v{vX}, s[{sX}:{sX + 3}], s{s_t1} offen lds", f"s{p}")
            A(f"s_add_u32 m0, s{s_lx}, {base + 1024}")
            next_chunk()
            VM(f"buffer_load_dwordx4 v{vX + 1}, s[{sX}:{sX + 3}], s{s_t1} offen lds", f"s{p}")
        if o.get("bpf"):
            A("s_lshl_b32 s46, s3, 3")
            A("s_add_u32 s46, s46, s30")
            A("s_lshr_b32 s44, s46, 1")
            A("s_mul_i32 s44, s44, 2688")
            A("s_and_b32 s45, s46, 1")
            A("s_add_u32 s45, s45, 1")
            A("s_mul_i32 s45, s45, 896")
            A("s_add_u32 s45, s45, s44")
            A("s_mov_b64 exec, 0x1fffff")
            VM(f"buffer_load_dword v254, v15, s[{sW}:{sW + 3}], s45 offen", "pf")
            A("s_lshl_b32 s44, s31, 7")
            A("s_add_u32 s44, s44, s46")
            A(f"s_mul_i32 s44, s44, {2 * 896}")
            A("s_mov_b64 exec, 0x3f")
            VM(f"buffer_load_dword v254, v13, s[{sX}:{sX + 3}], s44 offen", "pf")
            A("s_mov_b64 exec, -1")
        D0 = o.get("d0", 2)
        for p in range(D0):
            issue_stage(p)
        self.stamp(0)
        self.srd(4, 28, 0x10000000)
        self.srd(8, 24, 2048 * 1792)
        A(f"v_and_b32 v{TT}, 31, v{VL}")
        A(f"v_lshlrev_b32 v{TT + 1}, 7, v{TT}")
        A(f"s_lshl_b32 s{s_t0}, s{s_rg}, 12")
        A(f"v_add_u32 v{TT + 1}, s{s_t0}, v{TT + 1}")
        A(f"v_bfe_u32 v{TT + 2}, v{TT}, 1, 3")
        A(f"v_lshrrev_b32 v{TT + 3}, 5, v{VL}")
        A(f"v_xor_b32 v{TT + 2}, v{TT + 2}, v{TT + 3}")
        for t in range(4):
            A(f"v_xor_b32 v{TT + 4}, {2 * t}, v{TT + 2}")
            A(f"v_lshl_add_u32 v{vXR + t}, v{TT + 4}, 4, v{TT + 1}")
        A(f"v_bfe_u32 v{TT}, v{VL}, 2, 2")
        A(f"v_lshl_add_u32 v{TT + 1}, v{TT + 3}, 3, v{TT}")
        A(f"v_lshlrev_b32 v{TT + 1}, 7, v{TT + 1}")
        A(f"v_bfe_u32 v{TT + 2}, v{VL}, 4, 1")
        A(f"v_lshlrev_b32 v{TT + 2}, 5, v{TT + 2}")
        A(f"v_and_b32 v{TT + 4}, 3, v{VL}")
        A(f"v_lshl_add_u32 v{TT + 2}, v{TT + 4}, 3, v{TT + 2}")
        A(f"s_mul_i32 s{s_t0}, s{s_hd}, 56")
        A(f"v_add_u32 v{TT + 2}, s{s_t0}, v{TT + 2}")
        A(f"v_bfe_u32 v{TT + 4}, v{VL}, 3, 1")
        A(f"v_lshlrev_b32 v{TT + 4}, 6, v{TT + 4}")
        A(f"v_xor_b32 v{TT + 2}, v{TT + 2}, v{TT + 4}")
        A(f"v_add_u32 v{vTR}, v{TT + 1}, v{TT + 2}")
        A(f"v_add_u32 v12, {2 * SLOT}, v{vTR}")
        for t in range(4):
            A(f"v_add_u32 v{TT + 8 + t}, {2 * SLOT}, v{vXR + t}")
        A(f"v_lshlrev_b32 v14, 4, v{VL}")
        A(f"v_lshlrev_b32 v13, 2, v{VL}")
        A(f"s_mov_b32 s{s_t0}, {f32(1e-6)}")
        for i in range(16):
            A(f"v_mov_b32 v{AK + i}, s{s_t0}")
            A(f"v_mov_b32 v{AQ + i}, s{s_t0}")
        A(f"s_mul_i32 s{s_lw}, s30, {8 * 2688}")
        A(f"s_add_u32 s{s_lw}, s{s_lw}, s{s_wo_}")
        A(f"s_lshl_b32 s47, s30, 10")

        def wq_lds(p):
            return (3 * SLOT + p * 8192) if p < 4 else ((p - 4) * 8192)

        def issue_wq(lo, hi):
            for p in range(lo, hi):
                A(f"s_mul_i32 s{s_t2}, s{s_xo}, {64 * 2688}")
                A(f"s_add_u32 s{s_t2}, s{s_t2}, s{s_lw}")
                A(f"s_add_u32 m0, s47, {wq_lds(p)}")
                next_chunk()
                VM(f"buffer_load_dwordx4 v{vW}, s[{sW}:{sW + 3}], s{s_t2} offen lds", "wq")

        def lds_ref(addr, lo, hi):
            return (lo, addr) if addr < 2 * SLOT else (hi, addr - 2 * SLOT)

        def reads(j):
            out = []
            base = (j % 4) * SLOT
            for t in range(4):
                r = XF + 4 * (4 * j + t)
                v_, off = lds_ref(base, vXR + t, TT + 8 + t)
                out.append(f"ds_read_b128 v[{r}:{r + 3}], v{v_} offset:{off}")
                b = WF + 32 * (j & 1) + 8 * t
                v_, off = lds_ref(base + 16384 + t * 2048, vTR, 12)
                out.append(f"ds_read_b64_tr_b16 v[{b}:{b + 1}], v{v_} offset:{off}")
                out.append(f"ds_read_b64_tr_b16 v[{b + 2}:{b + 3}], v{v_} offset:{off + 512}")
                out.append(f"ds_read_b64_tr_b16 v[{b + 4}:{b + 5}], v{v_} offset:{off + 8192}")
                out.append(f"ds_read_b64_tr_b16 v[{b + 6}:{b + 7}], v{v_} offset:{off + 8192 + 512}")
            return out

        def mfmas(j):
            out = []
            for t in range(4):
                ks = 4 * j + t
                x = XF + 4 * ks
                b = WF + 32 * (j & 1) + 8 * t
                out.append(f"v_mfma_f32_32x32x16_bf16 v[{AK}:{AK + 15}], v[{x}:{x + 3}], v[{b}:{b + 3}], v[{AK}:{AK + 15}]")
                cv = "0" if ks == 0 else f"v[{AV}:{AV + 15}]"
                out.append(f"v_mfma_f32_32x32x16_bf16 v[{AV}:{AV + 15}], v[{x}:{x + 3}], v[{b + 4}:{b + 7}], {cv}")
            return out
        s_q4, s_rb2 = 92, 93
        nxt = [D0]
        for j in range(8):
            if j <= 6:
                wait_vm(f"s{j}")
                A("s_barrier")
                self.stamp(2 + j, fine=True)
            rd = reads(j) if j <= 6 else []
            mm = mfmas(j - 1) if j >= 1 else []
            if j == 7:
                mm = mm[0::2] + mm[1::2]
            if mm and rd:
                for i, m_ in enumerate(mm):
                    A(m_)
                    for r_ in (rd[o["rpm"] * i:o["rpm"] * (i + 1)] if o.get("rpm") else rd[(20 * i) // 8:(20 * (i + 1)) // 8]):
                        A(r_)
            else:
                for x_ in rd + mm:
                    A(x_)
            if rd:
                A("s_waitcnt lgkmcnt(0)")
            if j <= 6:
                if j == 1:
                    VM("global_load_dword v252, v6, s[26:27] sc1", "nonce")
                while nxt[0] <= min(j + 3, 6) and nxt[0] <= j + D0 + (1 if j >= o.get("dj", 1) else 0):
                    issue_stage(nxt[0])
                    nxt[0] += 1
                if j == 4:
                    issue_wq(0, 4)
                elif j == 5:
                    issue_wq(4, 7)
                    self.get_nonce(252, 6, first_loaded=True, vm=63)
                    A("s_cmp_eq_u32 s30, 0")
                    A("s_cbranch_scc0 L_b_nc")
                    self.census_write("s[4:7]", TT, TT + 2, s_t2)
                    A.label("L_b_nc")
                elif j == 6:
                    if o.get("atouch", 1):
                        A(f"s_lshl_b32 s88, s{s_rb}, 2")
                        A(f"s_add_u32 s88, s88, s{s_rg}")
                        A(f"s_lshl_b32 s88, s88, 4")
                        A(f"s_add_u32 s88, s88, s{s_h}")
                        A(f"s_lshl_b32 s88, s88, 11")
                        A(f"s_add_u32 s88, s88, {WS_PQ}")
                    else:
                        A(f"s_lshl_b32 s{s_t1}, s3, 3")
                        A(f"s_add_u32 s{s_t1}, s{s_t1}, s30")
                        A(f"s_mul_i32 s{s_t2}, s{s_t1}, {28 * 128}")
                        A(f"s_add_u32 s{s_t2}, s{s_t2}, {WS_WOP}")
                        A(f"v_lshlrev_b32 v{TT}, 7, v{VL}")
                        A("s_mov_b64 exec, 0xfffffff")
                        VM(f"buffer_load_dword v253, v{TT}, s[4:7], s{s_t2} offen sc1", "t")
                        A("s_mov_b64 exec, 3")
                        A(f"s_lshl_b32 s{s_t1}, s{s_t1}, 8")
                        A(f"s_lshl_b32 s{s_t2}, s31, 15")
                        A(f"s_add_u32 s{s_t1}, s{s_t1}, s{s_t2}")
                        A(f"s_add_u32 s{s_t1}, s{s_t1}, {WS_KV}")
                        VM(f"buffer_load_dword v253, v{TT}, s[4:7], s{s_t1} offen sc1", "t")
                        A("s_mov_b64 exec, 0xffff")
                        A(f"s_lshl_b32 s88, s{s_rb}, 2")
                        A(f"s_add_u32 s88, s88, s{s_rg}")
                        A(f"s_lshl_b32 s88, s88, 4")
                        A(f"s_add_u32 s88, s88, s{s_h}")
                        A(f"s_lshl_b32 s88, s88, 11")
                        A(f"s_add_u32 s88, s88, {WS_PQ}")
                        VM(f"buffer_load_dword v253, v{TT}, s[4:7], s88 offen sc1", "t")
                        A("s_mov_b64 exec, -1")
            if j == 0:
                self.stamp(1)
            if j == 2 and not o.get("fine"):
                self.stamp(2)
        self.stamp(3)
        self.stamp(9, fine=True)
        PK, PV = T, T + 8
        E = T + 16
        A(f"s_mov_b32 s{s_t0}, {f32(LOG2E)}")
        A(f"s_mov_b32 s{s_t1}, {f32(1e-6)}")

        def phi(acc, dst):
            for i in range(16):
                A(f"v_mul_f32 v{E + i}, s{s_t0}, v{acc + i}")
            for i in range(16):
                A(f"v_exp_f32 v{E + i}, v{E + i} clamp")
                A(f"v_max_f32 v{acc + i}, s{s_t1}, v{acc + i}")
            for i in range(8):
                A(f"v_pk_add_f32 v[{acc + 2 * i}:{acc + 2 * i + 1}], v[{acc + 2 * i}:{acc + 2 * i + 1}], v[{E + 2 * i}:{E + 2 * i + 1}]")
            for i in range(8):
                A(f"v_cvt_pk_bf16_f32 v{dst + i}, v{acc + 2 * i}, v{acc + 2 * i + 1}")
        A(f"v_and_b32 v{E}, 31, v{VL}")
        A(f"v_cmp_eq_u32 vcc, 28, v{E}")
        phi(AK, PK)
        A(f"v_mov_b32 v{E}, 0x3f803f80")
        for i in range(8):
            A(f"v_cvt_pk_bf16_f32 v{PV + i}, v{AV + 2 * i}, v{AV + 2 * i + 1}")
        for i in range(8):
            A(f"v_cndmask_b32 v{PV + i}, v{PV + i}, v{E}, vcc")
        A(f"v_mfma_f32_32x32x16_bf16 v[{AK}:{AK + 15}], v[{PK}:{PK + 3}], v[{PV}:{PV + 3}], 0")
        A(f"v_mfma_f32_32x32x16_bf16 v[{AK}:{AK + 15}], v[{PK + 4}:{PK + 7}], v[{PV + 4}:{PV + 7}], v[{AK}:{AK + 15}]")
        A(f"s_lshl_b32 s{s_t2}, s30, 12")
        A(f"s_add_u32 s{s_t2}, s{s_t2}, {L_EX}")
        A(f"v_add_u32 v{E}, s{s_t2}, v14")
        A(f"v_lshrrev_b32 v{E + 1}, 3, v{VL}")
        A(f"s_lshl_b32 s{s_t2}, s{s_rg}, 3")
        A(f"v_add_u32 v{E + 1}, s{s_t2}, v{E + 1}")
        A(f"v_bfe_u32 v{E + 2}, v{VL}, 2, 1")
        A(f"v_lshl_add_u32 v{E + 2}, v{E + 2}, 5, v{E + 1}")
        A(f"v_lshlrev_b32 v{E + 2}, 4, v{E + 2}")
        A(f"v_and_b32 v{E + 3}, 3, v{VL}")
        A(f"v_lshl_add_u32 v{E + 2}, v{E + 3}, 10, v{E + 2}")
        A(f"s_lshl_b32 s{s_t2}, s{s_hd}, 14")
        A(f"s_add_u32 s{s_t2}, s{s_t2}, {L_EX}")
        A(f"v_add_u32 v{E + 2}, s{s_t2}, v{E + 2}")
        for g in range(4):
            A(f"ds_write_b128 v{E}, v[{AK + 4 * g}:{AK + 4 * g + 3}] offset:{g * 1024}")
        A("s_waitcnt lgkmcnt(0)")
        self.stamp(10, fine=True)
        A("s_barrier")
        for w in range(4):
            A(f"ds_read_b128 v[{AV + 4 * w}:{AV + 4 * w + 3}], v{E + 2} offset:{w * 4096}")
        A(f"s_and_b32 s{s_q4}, s3, 3")
        A(f"s_lshl_b32 s{s_rb2}, s31, 3")
        A(f"s_lshr_b32 s{s_t2}, s3, 2")
        A(f"s_lshl_b32 s{s_t2}, s{s_t2}, 1")
        A(f"s_add_u32 s{s_rb2}, s{s_rb2}, s{s_t2}")
        A(f"s_lshl_b32 s94, s{s_q4}, 2")
        A(f"s_add_u32 s94, s94, s{s_rg}")
        A(f"s_mul_i32 s95, s94, {14 * WOP_U}")
        A(f"s_add_u32 s95, s95, {WS_WOP}")
        A(f"s_cmp_lt_u32 s94, 14")
        A(f"s_cselect_b32 s89, s{s_hd}, 1")
        A(f"s_cmp_eq_u32 s89, 0")
        A(f"s_cselect_b32 s94, s95, 0x7f000000")
        WC = 232

        def wop_load(ks):
            r = XF + 4 * ks
            if ks % 2 == 0:
                A(f"s_add_u32 s95, s94, {(ks // 2) * WOP_U}")
            fl = "" if o.get("wplain") else " sc1"
            A(f"buffer_load_dwordx4 v[{r}:{r + 3}], v14, s[4:7], s95 offen offset:{(ks % 2) * 1024}{fl}")
            if ks % 2 == 1:
                A(f"buffer_load_dword v{WC + ks // 2}, v13, s[4:7], s95 offen offset:2048{fl}")
        A("s_waitcnt lgkmcnt(0)")
        for k in range(2):
            A(f"v_pk_add_f32 v[{AV + 2 * k}:{AV + 2 * k + 1}], v[{AV + 2 * k}:{AV + 2 * k + 1}], v[{AV + 4 + 2 * k}:{AV + 5 + 2 * k}]")
            A(f"v_pk_add_f32 v[{AV + 8 + 2 * k}:{AV + 9 + 2 * k}], v[{AV + 8 + 2 * k}:{AV + 9 + 2 * k}], v[{AV + 12 + 2 * k}:{AV + 13 + 2 * k}]")
        for k in range(2):
            A(f"v_pk_add_f32 v[{AV + 2 * k}:{AV + 2 * k + 1}], v[{AV + 2 * k}:{AV + 2 * k + 1}], v[{AV + 8 + 2 * k}:{AV + 9 + 2 * k}]")
        A(f"v_and_b32 v{E + 4}, 7, v{VL}")
        A(f"v_cmp_eq_u32 vcc, 7, v{E + 4}")
        A(f"v_cvt_pk_bf16_f32 v{E + 6}, v{AV}, v{AV + 1}")
        A(f"v_cvt_pk_bf16_f32 v{E + 7}, v{AV + 2}, v{AV + 3}")
        A(f"v_cndmask_b32 v{E + 6}, v{E + 6}, 0, vcc")
        A(f"v_cndmask_b32 v{E + 7}, v{E + 7}, 0, vcc")
        A(f"v_xor_b32 v{E + 4}, v{E + 6}, v{E + 7}")
        A(f"v_xor_b32_dpp v{E + 4}, v{E + 4}, v{E + 4} quad_perm:[1,0,3,2] row_mask:0xf bank_mask:0xf")
        A(f"v_xor_b32_dpp v{E + 4}, v{E + 4}, v{E + 4} quad_perm:[2,3,0,1] row_mask:0xf bank_mask:0xf")
        A(f"v_xor_b32_dpp v{E + 4}, v{E + 4}, v{E + 4} row_half_mirror row_mask:0xf bank_mask:0xf")
        A(f"v_xor_b32 v{E + 4}, s33, v{E + 4}")
        A(f"v_cndmask_b32 v{E + 6}, v{E + 6}, v{E + 4}, vcc")
        A(f"s_lshl_b32 s{s_t2}, s{s_h}, 4")
        A(f"s_add_u32 s{s_t2}, s{s_t2}, s{s_rb}")
        A(f"s_lshl_b32 s{s_t2}, s{s_t2}, 2")
        A(f"s_add_u32 s{s_t2}, s{s_t2}, s{s_rg}")
        A(f"s_lshl_b32 s{s_t2}, s{s_t2}, 9")
        A(f"v_lshlrev_b32 v{E + 5}, 3, v{VL}")
        A(f"buffer_store_dwordx2 v[{E + 6}:{E + 7}], v{E + 5}, s[4:7], s{s_t2} offen sc1")
        self.stamp(4)
        self.stamp(11, fine=True)
        vm.append("part")
        wait_vm("wq")
        A("s_barrier")
        self.census_load("s[4:7]", 252, E, 91, 0)
        A(f"v_cmp_lt_u32 s[98:99], 31, v{VL}")
        A(f"s_cmp_eq_u32 s{s_hd}, 0")
        A("s_cbranch_scc1 L_b_lo")
        AQ2 = AK
        A(f"s_setprio {o.get('pq', 2)}")
        A(f"v_bfe_u32 v{E + 1}, v{VL}, 3, 1")
        A(f"v_lshlrev_b32 v{E + 1}, 6, v{E + 1}")
        A(f"v_xor_b32 v2, v{vTR}, v{E + 1}")
        A(f"v_subrev_u32 v2, 56, v2")
        A(f"v_xor_b32 v2, v2, v{E + 1}")
        A(f"v_add_u32 v3, {2 * SLOT}, v2")
        for i in range(16):
            A(f"v_mov_b32 v{AQ2 + i}, s{s_t1}")

        def rd_q(ks, buf):
            b = WF + 8 * buf
            ad = wq_lds(ks >> 2) + (ks & 3) * 2048
            v_, off = lds_ref(ad, vTR, 12)
            A(f"ds_read_b64_tr_b16 v[{b}:{b + 1}], v{v_} offset:{off}")
            A(f"ds_read_b64_tr_b16 v[{b + 2}:{b + 3}], v{v_} offset:{off + 512}")
            v_, off = lds_ref(ad, 2, 3)
            A(f"ds_read_b64_tr_b16 v[{b + 4}:{b + 5}], v{v_} offset:{off}")
            A(f"ds_read_b64_tr_b16 v[{b + 6}:{b + 7}], v{v_} offset:{off + 512}")
        for ks in range(2):
            rd_q(ks, ks)
        for ks in range(28):
            if ks + 2 < 28:
                rd_q(ks + 2, (ks + 2) % 3)
                A("s_waitcnt lgkmcnt(8)")
            else:
                A(f"s_waitcnt lgkmcnt({4 * (27 - ks)})")
            b = WF + 8 * (ks % 3)
            x = XF + 4 * ks
            A(f"v_mfma_f32_32x32x16_bf16 v[{AQ}:{AQ + 15}], v[{b}:{b + 3}], v[{x}:{x + 3}], v[{AQ}:{AQ + 15}]")
            A(f"v_mfma_f32_32x32x16_bf16 v[{AQ2}:{AQ2 + 15}], v[{b + 4}:{b + 7}], v[{x}:{x + 3}], v[{AQ2}:{AQ2 + 15}]")
        A("s_waitcnt vmcnt(0)")
        self.census_eval(252, 47, s_t2)

        def xor8(dst, src):
            A(f"v_bitop3_b32 v{dst}, v{src}, v{src + 1}, v{src + 2} bitop3:0x96")
            A(f"v_bitop3_b32 v{dst}, v{dst}, v{src + 3}, v{src + 4} bitop3:0x96")
            A(f"v_bitop3_b32 v{dst}, v{dst}, v{src + 5}, v{src + 6} bitop3:0x96")
            A(f"v_xor_b32 v{dst}, v{dst}, v{src + 7}")
        A(f"s_sub_u32 s88, s88, 2048")
        for (acc, pk, off) in ((AQ, PK, 2048), (AQ2, PV, 0)):
            phi(acc, pk)
            A(f"v_cndmask_b32 v{pk + 6}, v{pk + 6}, 0, s[98:99]")
            A(f"v_cndmask_b32 v{pk + 7}, v{pk + 7}, 0, s[98:99]")
            xor8(E, pk)
            A(f"v_mov_b32 v{E + 1}, v{E}")
            A(f"v_permlane32_swap_b32 v{E}, v{E + 1}")
            A(f"v_bitop3_b32 v{E}, v{E}, v{E + 1}, s33 bitop3:0x96")
            A(f"v_cndmask_b32 v{pk + 6}, v{pk + 6}, v{E}, s[98:99]")
            A(f"buffer_store_dwordx4 v[{pk}:{pk + 3}], v14, s[4:7], s88 offen offset:{off}")
            A(f"buffer_store_dwordx4 v[{pk + 4}:{pk + 7}], v14, s[4:7], s88 offen offset:{off + 1024}")
        A("s_cmp_eq_u32 s47, 1")
        A("s_cbranch_scc1 L_b_npq")
        A(f"s_add_u32 s88, s88, {G_DELTA}")
        for (pk, off) in ((PK, 2048), (PV, 0)):
            A(f"buffer_store_dwordx4 v[{pk}:{pk + 3}], v14, s[4:7], s88 offen offset:{off} sc1")
            A(f"buffer_store_dwordx4 v[{pk + 4}:{pk + 7}], v14, s[4:7], s88 offen offset:{off + 1024} sc1")
        A.label("L_b_npq")
        self.stamp(5)
        A("s_waitcnt vmcnt(0)")
        A(f"s_setprio {o.get('ph', 2)}")
        PQ, KV, PQ1 = 128, 160, 64
        A(f"s_lshl_b32 s{s_t2}, s{s_rb2}, 4")
        A(f"s_lshl_b32 s{s_t1}, s{s_rg}, 2")
        A(f"s_add_u32 s{s_t2}, s{s_t2}, s{s_t1}")
        A(f"s_lshl_b32 s{s_t2}, s{s_t2}, 11")
        A(f"s_add_u32 s{s_t2}, s{s_t2}, {WS_PQ}")
        A(f"v_add_u32 v8, s{s_t2}, v14")
        A(f"v_add_u32 v9, 4096, v8")
        A(f"v_add_u32 v10, 32768, v8")
        A(f"v_add_u32 v11, 32768, v9")

        A(f"s_lshl_b32 s{s_t2}, s31, 15")
        A(f"s_lshl_b32 s{s_t1}, s{s_rg}, 13")
        A(f"s_add_u32 s{s_t2}, s{s_t2}, s{s_t1}")
        A(f"s_add_u32 s{s_t2}, s{s_t2}, {WS_KV}")
        A(f"v_add_u32 v2, s{s_t2}, v14")
        A(f"v_add_u32 v3, 4096, v2")
        A(f"v_xor_b32 v4, 64, v2")
        A(f"v_xor_b32 v7, 64, v3")

        def loads8(base, vs, soff):
            for hh in range(4):
                for st in range(2):
                    r = base + 8 * hh + 4 * st
                    A(f"buffer_load_dwordx4 v[{r}:{r + 3}], v{vs[hh]}, s[4:7], {soff} offen offset:{(hh & 1) * 2048 + st * 1024} sc1")

        def check8(base, younger):
            for hh in range(4):
                A(f"s_waitcnt vmcnt({younger + 6 - 2 * hh})")
                xor8(E + 2 * hh, base + 8 * hh)
                A(f"v_mov_b32 v{E + 2 * hh + 1}, v{E + 2 * hh}")
            for hh in range(4):
                A(f"v_permlane32_swap_b32 v{E + 2 * hh}, v{E + 2 * hh + 1}")
            for hh in range(4):
                A(f"v_bitop3_b32 v{E + 2 * hh}, v{E + 2 * hh}, v{E + 2 * hh + 1}, s33 bitop3:0x96")
            A(f"v_or3_b32 v{E}, v{E}, v{E + 2}, v{E + 4}")
            A(f"v_or_b32 v{E}, v{E}, v{E + 6}")
            A(f"v_cmp_ne_u32 vcc, 0, v{E}")

        def finish8(name, base, vs, younger):
            check8(base, younger)
            A(f"s_cbranch_vccz L_{name}_d")
            A("s_mov_b32 s90, 0")
            A("s_mov_b32 s58, 0")
            A.label(f"L_{name}")
            self.poll_next(90, 58, G_DELTA, f"L_{name}_t")
            loads8(base, vs, "s58")
            check8(base, 0)
            A(f"s_cbranch_vccnz L_{name}")
            A.label(f"L_{name}_t")
            A("s_waitcnt vmcnt(0)")
            A.label(f"L_{name}_d")
            for hh in range(4):
                A(f"v_cndmask_b32 v{base + 8 * hh + 6}, v{base + 8 * hh + 6}, 0, s[98:99]")
        loads8(PQ, (8, 8, 9, 9), "0")
        loads8(PQ1, (10, 10, 11, 11), "0")
        finish8("b_pq", PQ, (8, 8, 9, 9), 8)
        finish8("b_pq1", PQ1, (10, 10, 11, 11), 0)
        self.stamp(8)
        A(f"v_mov_b32 v5, {L_EX + 28672 + 32}")
        A("s_mov_b32 s91, 0")
        A.label("L_kf")
        A(f"ds_read_b128 v[{E}:{E + 3}], v5")
        A("s_add_u32 s91, s91, 1")
        A("s_cmp_gt_u32 s91, 0x100000")
        A("s_cbranch_scc1 L_kf_d")
        A("s_waitcnt lgkmcnt(0)")
        for i in range(4):
            A(f"v_xor_b32 v{E + i}, s33, v{E + i}")
        A(f"v_or3_b32 v{E}, v{E}, v{E + 1}, v{E + 2}")
        A(f"v_or_b32 v{E}, v{E}, v{E + 3}")
        A(f"v_cmp_ne_u32 vcc, 0, v{E}")
        A("s_cbranch_vccz L_kf_d")
        A("s_sleep 2")
        A("s_branch L_kf")
        A.label("L_kf_d")
        A("s_waitcnt lgkmcnt(0)")
        loads8(KV, (2, 4, 3, 7), "0")
        finish8("b_kv", KV, (2, 4, 3, 7), 0)
        self.stamp(9)
        NE, NO = 192, 208
        OP = 224
        A(f"s_mov_b32 s{s_t1}, {f32(1e-6)}")
        L_OX = SLOT
        A(f"s_mul_i32 s{s_t2}, s{s_rg}, 7168")
        A(f"s_add_u32 s{s_t2}, s{s_t2}, {L_OX}")
        A(f"v_add_u32 v5, s{s_t2}, v14")
        def M(u):
            rh, pp = u >> 1, u & 1
            NE = (192, 16)[u & 1]
            for (acc, hh) in ((NE, 2 * pp), (NE + 16, 2 * pp + 1)):
                a, b = KV + 8 * hh, (PQ, PQ1)[rh] + 8 * hh
                A(f"v_mfma_f32_32x32x16_bf16 v[{acc}:{acc + 15}], v[{a}:{a + 3}], v[{b}:{b + 3}], 0")
                A(f"v_mfma_f32_32x32x16_bf16 v[{acc}:{acc + 15}], v[{a + 4}:{a + 7}], v[{b + 4}:{b + 7}], v[{acc}:{acc + 15}]")

        def V(u):
            rh, pp = u >> 1, u & 1
            NE = (192, 16)[u & 1]
            NO = NE + 16
            OPr = (224, 96)[rh]
            A(f"v_cndmask_b32 v10, v{NO + 12}, v{NE + 12}, s[98:99]")
            A(f"v_add_f32 v10, s{s_t1}, v10")
            A("v_rcp_f32 v10, v10")
            for j in range(4):
                A(f"v_cndmask_b32 v{NE + 12 + j}, v{NE + 12 + j}, v{NO + 12 + j}, s[98:99]")
            A("v_mov_b32 v8, v10")
            A("v_permlane32_swap_b32 v10, v8")
            A("v_cndmask_b32 v6, v8, v10, s[98:99]")
            for i in range(12):
                A(f"v_mul_f32 v{NE + i}, v8, v{NE + i}")
            for i in range(12, 16):
                A(f"v_mul_f32 v{NE + i}, v6, v{NE + i}")
            for i in range(12):
                A(f"v_mul_f32 v{NO + i}, v10, v{NO + i}")
            for i in range(8):
                A(f"v_cvt_pk_bf16_f32 v{OPr + 14 * pp + i}, v{NE + 2 * i}, v{NE + 2 * i + 1}")
            for i in range(6):
                A(f"v_cvt_pk_bf16_f32 v{OPr + 14 * pp + 8 + i}, v{NO + 2 * i}, v{NO + 2 * i + 1}")
            lo, hi = (0, 3) if pp == 0 else (3, 7)
            for i in range(lo, hi):
                A(f"ds_write_b128 v5, v[{OPr + 4 * i}:{OPr + 4 * i + 3}] offset:{rh * 28672 + i * 1024}")

        def Vpk(u):
            rh, pp = u >> 1, u & 1
            NE = (192, 16)[u & 1]
            NO = NE + 16
            OPr = (224, 96)[rh]
            A(f"v_cndmask_b32 v10, v{NO + 12}, v{NE + 12}, s[98:99]")
            A(f"v_add_f32 v10, s{s_t1}, v10")
            A("v_rcp_f32 v10, v10")
            for j in range(4):
                A(f"v_cndmask_b32 v{NE + 12 + j}, v{NE + 12 + j}, v{NO + 12 + j}, s[98:99]")
            A("v_mov_b32 v8, v10")
            A("v_permlane32_swap_b32 v10, v8")
            A("v_cndmask_b32 v6, v8, v10, s[98:99]")
            for i in range(6):
                A(f"v_pk_mul_f32 v[{NE + 2 * i}:{NE + 2 * i + 1}], v[{NE + 2 * i}:{NE + 2 * i + 1}], v[8:9] op_sel_hi:[1,0]")
            for i in range(6, 8):
                A(f"v_pk_mul_f32 v[{NE + 2 * i}:{NE + 2 * i + 1}], v[{NE + 2 * i}:{NE + 2 * i + 1}], v[6:7] op_sel_hi:[1,0]")
            for i in range(6):
                A(f"v_pk_mul_f32 v[{NO + 2 * i}:{NO + 2 * i + 1}], v[{NO + 2 * i}:{NO + 2 * i + 1}], v[10:11] op_sel_hi:[1,0]")
            for i in range(8):
                A(f"v_cvt_pk_bf16_f32 v{OPr + 14 * pp + i}, v{NE + 2 * i}, v{NE + 2 * i + 1}")
            for i in range(6):
                A(f"v_cvt_pk_bf16_f32 v{OPr + 14 * pp + 8 + i}, v{NO + 2 * i}, v{NO + 2 * i + 1}")
            lo, hi = (0, 3) if pp == 0 else (3, 7)
            for i in range(lo, hi):
                A(f"ds_write_b128 v5, v[{OPr + 4 * i}:{OPr + 4 * i + 3}] offset:{rh * 28672 + i * 1024}")
        L_OF = L_EX + 28672
        A(f"s_lshl_b32 s{s_t2}, s{s_rg}, 2")
        A(f"s_add_u32 s{s_t2}, s{s_t2}, {L_OF}")
        A(f"v_mov_b32 v2, s{s_t2}")
        A("v_mov_b32 v3, s33")
        M(0)
        for u in range(4):
            if u + 1 < 4:
                M(u + 1)
            (V if o.get("nopk") else Vpk)(u)
            if u & 1:
                A(f"ds_write_b32 v2, v3 offset:{16 * (u >> 1)}")
        A("s_waitcnt lgkmcnt(0)")
        self.stamp(10)
        if o.get("wb3", 0):
            A("s_lshl_b32 s90, s3, 3")
            A("s_or_b32 s90, s90, s30")
            A(f"s_cmp_eq_u32 s90, 4")
            A("s_cbranch_scc0 L_b_fin")
            A("buffer_wbl2 sc1")
        A("s_branch L_b_fin")
        A.label("L_b_lo")
        A(f"s_setprio {o.get('plo', 1)}")
        WIN = o.get("win", 4)
        WA = o.get("wa", 11)

        def chk(c):
            r = XF + 8 * c
            for i in range(4):
                A(f"v_bitop3_b32 v{WC + c}, v{WC + c}, v{r + 2 * i}, v{r + 2 * i + 1} bitop3:0x96")
            A(f"v_xor_b32 v{WC + c}, s33, v{WC + c}")

        def stream(u0, u1):
            for u in range(u0, u1 + WIN):
                if u < u1:
                    wop_load(2 * u)
                    wop_load(2 * u + 1)
                c = u - WIN
                if c >= u0:
                    A(f"s_waitcnt vmcnt({3 * (min(u, u1 - 1) - c)})")
                    chk(c)
        stream(0, WA)
        A("s_setprio 3")
        self.census_eval(252, 47, s_t2)
        self.stamp(5)
        R0 = 128
        S0 = 160
        A(f"v_lshrrev_b32 v{E}, 5, v{VL}")
        A(f"v_lshlrev_b32 v{E}, 11, v{E}")
        A(f"v_and_b32 v{E + 1}, 31, v{VL}")
        A(f"v_lshl_add_u32 v{E}, v{E + 1}, 4, v{E}")
        A(f"s_lshl_b32 s{s_t2}, s3, 15")
        A(f"s_lshl_b32 s{s_t1}, s{s_rg}, 9")
        A(f"s_add_u32 s{s_t2}, s{s_t2}, s{s_t1}")
        A(f"v_and_b32 v15, 1, v{VL}")
        A(f"v_lshlrev_b32 v15, 10, v15")
        A(f"v_bfe_u32 v{E + 1}, v{VL}, 1, 1")
        A(f"v_lshl_add_u32 v15, v{E + 1}, 9, v15")
        A(f"v_bfe_u32 v{E + 1}, v{VL}, 2, 3")
        A(f"v_lshl_add_u32 v15, v{E + 1}, 4, v15")
        A(f"v_lshrrev_b32 v{E + 1}, 5, v{VL}")
        A(f"v_lshl_add_u32 v15, v{E + 1}, 3, v15")
        A(f"s_lshl_b32 s58, s31, 15")
        A(f"s_lshl_b32 s{s_t1}, s3, 11")
        A(f"s_add_u32 s58, s58, s{s_t1}")
        A(f"s_lshl_b32 s{s_t1}, s{s_rg}, 7")
        A(f"s_add_u32 s58, s58, s{s_t1}")
        A(f"s_add_u32 s58, s58, {WS_KV}")
        A(f"v_mov_b32 v{E + 12}, 0x00003f80")
        A(f"v_mov_b32 v{E + 13}, 0x3f800000")
        A(f"v_and_b32 v{E + 1}, 0x23, v{VL}")
        A(f"v_cmp_eq_u32 s[44:45], 0x23, v{E + 1}" if False else f"v_cmp_eq_u32 vcc, 0x23, v{E + 1}")
        A("s_mov_b64 s[44:45], vcc")
        A("s_mov_b32 s91, 0")
        A.label("L_b_rpoll")
        for i in range(8):
            A(f"s_add_u32 s{s_t1}, s{s_t2}, {4096 * i}")
            A(f"buffer_load_dwordx4 v[{R0 + 4 * i}:{R0 + 4 * i + 3}], v{E}, s[4:7], s{s_t1} offen sc1")
        A("s_add_u32 s91, s91, 1")
        A("s_cmp_gt_u32 s91, 0x4000")
        A("s_cbranch_scc1 L_b_rdone")
        for k in range(8):
            A(f"s_waitcnt vmcnt({7 - k})")
            A(f"v_bitop3_b32 v{E + 2 + k}, v{R0 + 4 * k}, v{R0 + 4 * k + 1}, v{R0 + 4 * k + 2} bitop3:0x96")
            A(f"v_xor_b32 v{E + 2 + k}, v{E + 2 + k}, v{R0 + 4 * k + 3}")
            for i in range(4):
                c0 = "0" if k == 0 else f"v{S0 + 2 * i}"
                c1 = "0" if k == 0 else f"v{S0 + 2 * i + 1}"
                A(f"v_dot2_f32_bf16 v{S0 + 2 * i}, v{R0 + 4 * k + i}, v{E + 12}, {c0}")
                A(f"v_dot2_f32_bf16 v{S0 + 2 * i + 1}, v{R0 + 4 * k + i}, v{E + 13}, {c1}")
        for k in range(8):
            A(f"v_xor_b32_dpp v{E + 2 + k}, v{E + 2 + k}, v{E + 2 + k} quad_perm:[1,0,3,2] row_mask:0xf bank_mask:0xf")
        for k in range(8):
            A(f"v_xor_b32_dpp v{E + 2 + k}, v{E + 2 + k}, v{E + 2 + k} quad_perm:[2,3,0,1] row_mask:0xf bank_mask:0xf")
        for k in range(8):
            A(f"v_xor_b32 v{E + 2 + k}, s33, v{E + 2 + k}")
        A(f"v_or3_b32 v{E + 2}, v{E + 2}, v{E + 3}, v{E + 4}")
        A(f"v_or3_b32 v{E + 5}, v{E + 5}, v{E + 6}, v{E + 7}")
        A(f"v_or3_b32 v{E + 2}, v{E + 2}, v{E + 8}, v{E + 9}")
        A(f"v_or_b32 v{E + 2}, v{E + 2}, v{E + 5}")
        A(f"v_cmp_ne_u32 vcc, 0, v{E + 2}")
        A("s_cbranch_vccnz L_b_rpoll")
        A.label("L_b_rdone")
        A("s_waitcnt vmcnt(0)")
        self.stamp(6)
        for i in range(4):
            A(f"v_permlane32_swap_b32 v{S0 + i}, v{S0 + 4 + i}")
        for i in range(2):
            A(f"v_pk_add_f32 v[{S0 + 2 * i}:{S0 + 2 * i + 1}], v[{S0 + 2 * i}:{S0 + 2 * i + 1}], v[{S0 + 4 + 2 * i}:{S0 + 5 + 2 * i}]")
        A(f"v_cvt_pk_bf16_f32 v{S0 + 8}, v{S0}, v{S0 + 1}")
        A(f"v_cvt_pk_bf16_f32 v{S0 + 9}, v{S0 + 2}, v{S0 + 3}")
        A(f"v_cndmask_b32 v{S0 + 8}, v{S0 + 8}, 0, s[44:45]")
        A(f"v_cndmask_b32 v{S0 + 9}, v{S0 + 9}, 0, s[44:45]")
        A(f"v_xor_b32 v{S0 + 2}, v{S0 + 8}, v{S0 + 9}")
        A(f"v_xor_b32_dpp v{S0 + 2}, v{S0 + 2}, v{S0 + 2} quad_perm:[1,0,3,2] row_mask:0xf bank_mask:0xf")
        A(f"v_xor_b32_dpp v{S0 + 2}, v{S0 + 2}, v{S0 + 2} quad_perm:[2,3,0,1] row_mask:0xf bank_mask:0xf")
        A(f"v_mov_b32 v{S0 + 3}, v{S0 + 2}")
        A(f"v_permlane32_swap_b32 v{S0 + 2}, v{S0 + 3}")
        A(f"v_bitop3_b32 v{S0 + 2}, v{S0 + 2}, v{S0 + 3}, s33 bitop3:0x96")
        A(f"v_cndmask_b32 v{S0 + 8}, v{S0 + 8}, v{S0 + 2}, s[44:45]")
        A(f"buffer_store_dwordx2 v[{S0 + 8}:{S0 + 9}], v15, s[4:7], s58 offen")
        A("s_cmp_eq_u32 s47, 1")
        A("s_cbranch_scc1 L_b_nored")
        A(f"s_add_u32 s58, s58, {KV_G}")
        A(f"buffer_store_dwordx2 v[{S0 + 8}:{S0 + 9}], v15, s[4:7], s58 offen sc1")
        A.label("L_b_nored")
        A("s_waitcnt vmcnt(0)")
        A(f"s_lshl_b32 s{s_t2}, s{s_rg}, 2")
        A(f"s_add_u32 s{s_t2}, s{s_t2}, {L_EX + 28672 + 32}")
        A(f"v_mov_b32 v2, s{s_t2}")
        A("v_mov_b32 v3, s33")
        A("ds_write_b32 v2, v3")
        A("s_setprio 0")
        self.stamp(7)
        A("s_cmp_eq_u32 s89, 0")
        A("s_cbranch_scc0 L_b_fin")
        A("s_mov_b32 s90, 0")
        stream(WA, 14)
        A("s_branch L_b_wochk")
        A.label("L_b_wopoll")
        A("s_add_u32 s90, s90, 1")
        A("s_cmp_gt_u32 s90, 0x1000")
        A("s_cbranch_scc1 L_b_wod")
        stream(0, 14)
        A.label("L_b_wochk")
        A(f"v_or_b32 v2, v{WC}, v{WC + 1}")
        for u in range(1, 7):
            A(f"v_or3_b32 v2, v2, v{WC + 2 * u}, v{WC + 2 * u + 1}")
        A("v_cmp_ne_u32 vcc, 0, v2")
        A("s_cbranch_vccnz L_b_wopoll")
        A.label("L_b_wod")
        A("s_waitcnt vmcnt(0)")
        if o.get("wb2", 0):
            A("s_lshl_b32 s90, s3, 3")
            A("s_or_b32 s90, s90, s30")
            A(f"s_cmp_eq_u32 s90, 27")
            A("s_cbranch_scc0 L_b_nwb")
            A("buffer_wbl2 sc1")
            A.label("L_b_nwb")
        self.stamp(8)
        A(f"v_add_u32 v5, {L_OX}, v14")
        A(f"s_mul_i32 s{s_t2}, s30, 5120")
        A(f"s_add_u32 s{s_t2}, s{s_t2}, {L_EX}")
        A(f"v_and_b32 v6, 31, v{VL}")
        A(f"v_mul_u32_u24 v6, 80, v6")
        A(f"v_lshrrev_b32 v7, 5, v{VL}")
        A(f"v_lshl_add_u32 v6, v7, 3, v6")
        A(f"v_add_u32 v6, s{s_t2}, v6")
        A(f"v_lshrrev_b32 v7, 2, v{VL}")
        A(f"v_mul_u32_u24 v8, 80, v7")
        A(f"v_and_b32 v9, 3, v{VL}")
        A(f"v_lshl_add_u32 v8, v9, 4, v8")
        A(f"v_add_u32 v8, s{s_t2}, v8")
        A(f"v_mul_u32_u24 v7, 1792, v7")
        A(f"v_lshl_add_u32 v7, v9, 4, v7")
        A(f"s_mul_i32 s{s_t2}, s{s_rb2}, {32 * 1792}")
        A(f"s_lshl_b32 s{s_t1}, s{s_q4}, 2")
        A(f"s_add_u32 s{s_t1}, s{s_t1}, s30")
        A(f"s_lshl_b32 s{s_t0}, s{s_t1}, 6")
        A(f"s_add_u32 s{s_t2}, s{s_t2}, s{s_t0}")
        A(f"s_add_u32 s{s_t2}, s{s_t2}, 896")
        A(f"s_cmp_eq_u32 s89, 0")
        A(f"s_cselect_b32 s{s_t2}, s{s_t2}, 0x7f000000")
        OB = 128
        AO = 192
        NB = 8
        EB = 160

        def epi(rh):
            out = []
            for i in range(8):
                out.append(f"v_cvt_pk_bf16_f32 v{OP + i}, v{AO + 16 * rh + 2 * i}, v{AO + 16 * rh + 2 * i + 1}")
            out.append(f"ds_write2_b64 v6, v[{OP}:{OP + 1}], v[{OP + 2}:{OP + 3}] offset0:0 offset1:2")
            out.append(f"ds_write2_b64 v6, v[{OP + 4}:{OP + 5}], v[{OP + 6}:{OP + 7}] offset0:4 offset1:6")
            for q in range(2):
                out.append(f"ds_read_b128 v[{EB + 4 * q}:{EB + 4 * q + 3}], v8 offset:{q * 16 * 80}")
            return out

        def epi_store():
            for q in range(2):
                ob = {0: "", 1: " sc1", 2: " nt", 3: " sc0 sc1"}[o.get("ob", 1)]
                A(f"buffer_store_dwordx4 v[{EB + 4 * q}:{EB + 4 * q + 3}], v7, s[8:11], s{s_t2} offen{ob}")
                A(f"s_add_u32 s{s_t2}, s{s_t2}, {16 * 1792}")
        A(f"v_mov_b32 v2, {L_OF}")
        for rh in range(2):
            A("s_mov_b32 s91, 0")
            A.label(f"L_of{rh}")
            A(f"ds_read_b128 v[{EB + 8}:{EB + 11}], v2 offset:{16 * rh}")
            A("s_add_u32 s91, s91, 1")
            A("s_cmp_gt_u32 s91, 0x100000")
            A(f"s_cbranch_scc1 L_of{rh}_d")
            A("s_waitcnt lgkmcnt(0)")
            for i in range(4):
                A(f"v_xor_b32 v{EB + 8 + i}, s33, v{EB + 8 + i}")
            A(f"v_or3_b32 v{EB + 8}, v{EB + 8}, v{EB + 9}, v{EB + 10}")
            A(f"v_or_b32 v{EB + 8}, v{EB + 8}, v{EB + 11}")
            A(f"v_cmp_ne_u32 vcc, 0, v{EB + 8}")
            A(f"s_cbranch_vccz L_of{rh}_d")
            A("s_sleep 1")
            A(f"s_branch L_of{rh}")
            A.label(f"L_of{rh}_d")
            A("s_waitcnt lgkmcnt(0)")
            if rh == 0:
                self.stamp(10)
            for n in range(NB - 1):
                A(f"ds_read_b128 v[{OB + 4 * n}:{OB + 4 * n + 3}], v5 offset:{rh * 28672 + n * 1024}")
            extra = 0
            for ks in range(28):
                n = ks + NB - 1
                if n < 28:
                    r = OB + 4 * (n % NB)
                    A(f"ds_read_b128 v[{r}:{r + 3}], v5 offset:{rh * 28672 + n * 1024}")
                    A(f"s_waitcnt lgkmcnt({NB - 1})")
                else:
                    A(f"s_waitcnt lgkmcnt({27 - ks})")
                r = OB + 4 * (ks % NB)
                a = XF + 4 * ks
                acc = AO + 16 * rh
                c = "0" if ks == 0 else f"v[{acc}:{acc + 15}]"
                A(f"v_mfma_f32_32x32x16_bf16 v[{acc}:{acc + 15}], v[{a}:{a + 3}], v[{r}:{r + 3}], {c}")
                if rh == 1 and ks == 3:
                    for e_ in epi(0):
                        A(e_)
                if rh == 1 and ks == 14:
                    epi_store()
        for e_ in epi(1):
            A(e_)
        A("s_waitcnt lgkmcnt(0)")
        epi_store()
        A.label("L_b_fin")
        self.stamp(11)
        self.dump_stamps(12)
        A("s_endpgm")

    def teamA(self):
        A = self.A
        o = self.o
        VL = 1
        A.label("L_teamA")
        self.inB = False
        s_a, s_pair, s_nh, s_scr, s_d = 36, 37, 38, 39, 40
        s_t0, s_t1, s_t2 = 41, 42, 43
        WS = "s[20:23]"
        FP = 144
        (aYD, aYC, aSW, aFT, aGW, aGR, aOUT, aUD, aUC, aUW, aTW, aVA, aVB, aYS, aYR, aPD, aPC, aSD, aSC, aUT, aKW, aPR, aZT,
         aSR, aWT) = range(224, 249)
        self.stamp(0)
        self.srd(100 - 4, 24, 2048 * 1792)
        A("s_mov_b64 s[12:13], s[20:21]")
        self.srd(20, 28, 0x10000000)
        A(f"v_lshlrev_b32 v2, 4, v{VL}")
        A(f"v_and_b32 v4, 3, v{VL}")
        A(f"v_lshrrev_b32 v5, 4, v{VL}")
        A(f"v_bfe_u32 v6, v{VL}, 2, 2")
        A(f"v_and_b32 v3, 7, v{VL}")
        A(f"v_lshrrev_b32 v12, 3, v{VL}")
        A(f"v_and_b32 v13, 15, v{VL}")
        A(f"v_and_b32 v14, 1, v{VL}")
        A(f"s_lshl_b32 s{s_t1}, s31, 7")
        A(f"v_mul_u32_u24 v{aOUT}, 1792, v12")
        A(f"v_lshl_add_u32 v{aOUT}, v3, 4, v{aOUT}")
        A(f"s_mul_i32 s{s_t0}, s59, {16 * 1792}")
        A(f"s_add_u32 s{s_t0}, s{s_t0}, s{s_t1}")
        A(f"v_add_u32 v{aOUT}, s{s_t0}, v{aOUT}")
        A(f"v_add_u32 v{aSW}, s{s_scr}, v2")
        A(f"v_bfe_u32 v15, v{VL}, 1, 3")
        B64 = o.get("b64", 1)
        if B64:
            A(f"v_mul_u32_u24 v{aSR}, 544, v13")
            A(f"v_lshl_add_u32 v{aSR}, v5, 4, v{aSR}")
            A(f"v_lshlrev_b32 v{aWT}, 3, v{VL}")
            A(f"v_add_u32 v{aWT}, s{s_scr}, v{aWT}")
        else:
            A(f"v_mul_u32_u24 v{aSR}, {SCR_P2}, v15")
            A(f"v_lshl_add_u32 v{aSR}, v14, 3, v{aSR}")
            A(f"v_lshl_add_u32 v{aSR}, v5, 5, v{aSR}")
        A(f"v_add_u32 v{aSR}, s{s_scr}, v{aSR}")
        A(f"v_lshlrev_b32 v{aUT}, 7, v6")
        A(f"v_lshl_add_u32 v{aUT}, v5, 5, v{aUT}")
        A(f"v_lshl_add_u32 v{aUT}, v4, 3, v{aUT}")
        A(f"v_add_u32 v{aUT}, s101, v{aUT}")
        A(f"v_lshrrev_b32 v18, 2, v{VL}")
        A(f"v_mul_u32_u24 v{aSD}, {32 * 640}, v18")
        A(f"s_lshl_b32 s{s_t0}, s31, 9")
        A(f"s_add_u32 s{s_t0}, s{s_t0}, s32")
        A(f"s_mul_i32 s{s_t0}, s{s_t0}, 640")
        A(f"s_add_u32 s{s_t0}, s{s_t0}, {WS_UT}")
        A(f"s_lshl_b32 s{s_t1}, s{s_a}, 5")
        A(f"s_add_u32 s{s_t1}, s{s_t1}, s{s_t0}")
        A(f"v_lshl_add_u32 v{aSC}, v4, 3, v{aSD}")
        A(f"v_add_u32 v{aSC}, s{s_t1}, v{aSC}")
        A(f"s_lshl_b32 s{s_t1}, s{s_a}, 7")
        A(f"s_add_u32 s{s_t1}, s{s_t1}, s{s_t0}")
        A(f"v_lshl_add_u32 v{aSD}, v4, 4, v{aSD}")
        A(f"v_add_u32 v{aSD}, s{s_t1}, v{aSD}")
        A(f"s_lshl_b32 s{s_t0}, s31, 4")
        A(f"s_lshr_b32 s{s_t1}, s32, 1")
        A(f"s_add_u32 s{s_t0}, s{s_t0}, s{s_t1}")
        A(f"s_lshl_b32 s{s_t0}, s{s_t0}, 2")
        A(f"s_add_u32 s{s_t0}, s{s_t0}, s{s_a}")
        A(f"s_mul_i32 s{s_t0}, s{s_t0}, {8 * 640}")
        A(f"s_add_u32 s88, s{s_t0}, {WS_UT}")
        A(f"v_mul_u32_u24 v{aUD}, 640, v12")
        A(f"v_add_u32 v{aUD}, s88, v{aUD}")
        A(f"s_and_b32 s{s_t1}, s32, 1")
        A(f"s_lshl_b32 s{s_t1}, s{s_t1}, 1")
        A(f"v_add_u32 v19, s{s_t1}, v14")
        A(f"v_bfe_u32 v20, v{VL}, 1, 2")
        A(f"v_lshl_add_u32 v21, v20, 2, v19")
        A(f"v_lshl_add_u32 v{aUC}, v21, 3, v{aUD}")
        A(f"v_lshl_add_u32 v21, v20, 3, v19")
        A(f"v_lshl_add_u32 v{aUD}, v21, 4, v{aUD}")
        A(f"v_mul_u32_u24 v{aUW}, {2 * U_PITCH}, v14")
        A(f"v_lshrrev_b32 v21, 1, v{VL}")
        A(f"v_lshl_add_u32 v{aUW}, v21, 5, v{aUW}")
        A(f"s_lshl_b32 s{s_t0}, s{s_a}, 10")
        A(f"s_add_u32 s{s_t1}, s{s_t0}, {L_U + 448}")
        A(f"s_add_u32 s{s_t1}, s{s_t1}, s87")
        A(f"v_add_u32 v{aUW}, s{s_t1}, v{aUW}")
        A(f"s_add_u32 s{s_t0}, s{s_t0}, s100")
        A(f"v_lshlrev_b32 v{aYS}, 6, v15")
        A(f"v_lshl_add_u32 v{aYS}, v14, 3, v{aYS}")
        A(f"v_lshl_add_u32 v{aYS}, v5, 4, v{aYS}")
        A(f"v_add_u32 v{aYS}, s{s_t0}, v{aYS}")
        A(f"v_add_u32 v{aYR}, s{s_t0}, v2")
        A(f"v_mul_u32_u24 v{aTW}, {T_PITCH}, v13")
        A(f"v_lshl_add_u32 v{aTW}, v5, 3, v{aTW}")
        A(f"s_lshl_b32 s{s_t0}, s{s_pair}, 11")
        A(f"s_mul_i32 s{s_t1}, s{s_nh}, {16 * T_PITCH}")
        A(f"s_add_u32 s{s_t0}, s{s_t0}, s{s_t1}")
        A(f"s_add_u32 s{s_t0}, s{s_t0}, s100")
        A(f"v_add_u32 v{aTW}, s{s_t0}, v{aTW}")
        A(f"s_xor_b32 s{s_t0}, s{s_a}, 1")
        A(f"s_mul_i32 s{s_t0}, s{s_t0}, {SCR_SZ}")
        A(f"s_add_u32 s{s_t0}, s{s_t0}, s87")
        A(f"v_add_u32 v{aPR}, s{s_t0}, v2")
        A(f"s_mul_i32 s{s_t0}, s{s_pair}, {2 * SCR_SZ}")
        A(f"s_add_u32 s{s_t0}, s{s_t0}, s87")
        A(f"s_lshl_b32 s{s_t1}, s{s_nh}, 11")
        A(f"s_add_u32 s{s_t1}, s{s_t1}, s{s_t0}")
        A(f"v_add_u32 v{aKW}, s{s_t1}, v2")
        A(f"v_mul_u32_u24 v{aZT}, {KC_PITCH}, v18")
        A(f"v_lshl_add_u32 v{aZT}, v4, 4, v{aZT}")
        A(f"v_add_u32 v{aZT}, s{s_t0}, v{aZT}")
        A(f"v_mul_u32_u24 v{aVA}, {KC_PITCH}, v4")
        A(f"v_sub_u32 v21, v5, v6")
        A(f"v_lshl_add_u32 v{aVA}, v21, 4, v{aVA}")
        A(f"s_add_u32 s{s_t0}, s{s_t0}, {2 * (2040 - 1792)}")
        A(f"v_add_u32 v{aVA}, s{s_t0}, v{aVA}")
        A(f"v_xor_b32 v21, 1, v14")
        A(f"v_mul_u32_u24 v{aVB}, {U_PITCH}, v21")
        A(f"v_lshl_add_u32 v{aVB}, v5, 4, v{aVB}")
        A(f"v_lshl_add_u32 v{aVB}, v15, 6, v{aVB}")
        A(f"s_mul_i32 s{s_t0}, s{s_pair}, {2 * U_PITCH}")
        A(f"s_add_u32 s{s_t0}, s{s_t0}, {L_U + 448}")
        A(f"s_add_u32 s{s_t0}, s{s_t0}, s87")
        A(f"v_add_u32 v{aVB}, s{s_t0}, v{aVB}")
        A(f"v_bfe_u32 v21, v{VL}, 1, 4")
        A(f"v_mul_u32_u24 v{aPD}, 160, v21")
        A(f"s_lshl_b32 s{s_t0}, s31, 4")
        A(f"s_lshr_b32 s{s_t1}, s32, 1")
        A(f"s_add_u32 s{s_t1}, s{s_t1}, s{s_t0}")
        A(f"s_mul_i32 s{s_t1}, s{s_t1}, 20480")
        A(f"s_add_u32 s{s_t1}, s{s_t1}, {WS_UT}")
        A(f"v_add_u32 v{aPD}, s{s_t1}, v{aPD}")
        A(f"s_and_b32 s{s_t1}, s32, 1")
        A(f"s_lshl_b32 s{s_t1}, s{s_t1}, 1")
        A(f"s_add_u32 s{s_t1}, s{s_t1}, s{s_pair}")
        A(f"s_lshl_b32 s{s_t1}, s{s_t1}, 1")
        A(f"v_add_u32 v21, s{s_t1}, v14")
        A(f"v_lshl_add_u32 v{aPC}, v21, 2, v{aPD}")
        A(f"v_lshl_add_u32 v{aPD}, v21, 4, v{aPD}")
        A(f"s_mul_i32 s{s_t0}, s{s_t0}, 20480")
        A(f"s_mul_i32 s{s_t1}, s59, 160")
        A(f"s_add_u32 s{s_t0}, s{s_t0}, s{s_t1}")
        A(f"s_add_u32 s{s_t0}, s{s_t0}, {WS_UT}")
        A(f"v_mul_u32_u24 v{aYD}, 20480, v12")
        A(f"v_add_u32 v{aYD}, s{s_t0}, v{aYD}")
        A(f"v_lshl_add_u32 v{aYC}, v3, 2, v{aYD}")
        A(f"v_lshl_add_u32 v{aYD}, v3, 4, v{aYD}")
        A(f"v_lshl_add_u32 v{aFT}, v5, 3, v6")
        A(f"v_lshlrev_b32 v{aFT}, 5, v{aFT}")
        A(f"v_lshl_add_u32 v{aFT}, v4, 3, v{aFT}")
        A(f"v_add_u32 v{aFT}, s{s_scr}, v{aFT}")
        A(f"s_add_u32 s{s_t0}, s{s_scr}, 2048")
        A(f"v_mul_u32_u24 v{aGW}, {FP}, v13")
        A(f"v_lshl_add_u32 v{aGW}, v5, 4, v{aGW}")
        A(f"v_add_u32 v{aGW}, s{s_t0}, v{aGW}")
        A(f"v_mul_u32_u24 v{aGR}, {FP}, v12")
        A(f"v_lshl_add_u32 v{aGR}, v3, 4, v{aGR}")
        A(f"v_add_u32 v{aGR}, s{s_t0}, v{aGR}")
        A(f"s_mul_i32 s{s_t0}, s{s_a}, {U_PITCH}")
        A(f"s_add_u32 s{s_t0}, s{s_t0}, {L_U}")
        A(f"s_add_u32 s{s_t0}, s{s_t0}, s87")
        A(f"v_add_u32 v21, s{s_t0}, v2")
        for i in range(4):
            A(f"v_mov_b32 v{24 + i}, 0")
        A("s_mov_b32 exec_lo, 0x0fffffff")
        A("s_mov_b32 exec_hi, 0")
        A("ds_write_b128 v21, v[24:27]")
        A(f"s_lshl_b32 s{s_t0}, s{s_nh}, 28")
        A(f"s_or_b32 exec_lo, s{s_t0}, 1")
        A("ds_write_b64 v21, v[24:25]")
        A("s_mov_b64 exec, -1")
        A("v_mov_b32 v7, 0")
        TB = 84

        def publish_u(soff, flag, UO):
            for t in range(2):
                for k in range(4):
                    A(f"ds_read_b64_tr_b16 v[{UO + 10 * t + 2 * k}:{UO + 10 * t + 2 * k + 1}], v{aUT} offset:{2048 * t + k * 512}")
            for t in range(2):
                U_ = UO + 10 * t
                A(f"s_waitcnt lgkmcnt({4 - 4 * t})")
                A(f"buffer_store_dwordx4 v[{U_}:{U_ + 3}], v{aSD}, {WS}, {soff} offen offset:{640 * t}{flag}")
                A(f"buffer_store_dwordx4 v[{U_ + 4}:{U_ + 7}], v{aSD}, {WS}, {soff} offen offset:{640 * t + 64}{flag}")
                A(f"v_bitop3_b32 v{U_ + 8}, v{U_}, v{U_ + 1}, s33 bitop3:0x96")
                for i in range(3):
                    A(f"v_bitop3_b32 v{U_ + 8}, v{U_ + 8}, v{U_ + 2 + 2 * i}, v{U_ + 3 + 2 * i} bitop3:0x96")
                A(f"v_mov_b32 v{U_ + 9}, v{U_ + 8}")
                A(f"buffer_store_dwordx2 v[{U_ + 8}:{U_ + 9}], v{aSC}, {WS}, {soff} offen offset:{640 * t + 512}{flag}")
        def u_issue(lab):
            A("s_cmp_lt_u32 s30, 4")
            A(f"s_cbranch_scc0 {lab}")
            for k in range(4):
                A(f"s_add_u32 m0, s101, {1024 * k}")
                A(f"s_add_u32 s{s_t0}, s44, {(k & 1) * 8 * 896 + (k >> 1) * 64 * 896}")
                A(f"buffer_load_dwordx4 v62, s[52:55], s{s_t0} offen lds")
            A(f"v_lshlrev_b32 v22, 7, v{VL}")
            A("s_mov_b32 exec_hi, 0xff")
            A(f"buffer_load_dword v250, v22, {WS}, s88 offen sc1")
            A("s_mov_b32 exec_hi, -1")
            A.label(lab)
        A("s_cmp_lt_u32 s30, 4")
        A("s_cbranch_scc1 L_a_w0")
        A("s_waitcnt vmcnt(3)")
        A.label("L_a_w0")
        A("s_waitcnt lgkmcnt(0)")
        A("s_mov_b32 s44, s56")
        A("s_cmp_lt_u32 s30, 4")
        A("s_cbranch_scc0 L_a_nl2")
        A(f"s_waitcnt vmcnt({4 if o.get('upos', 4) == 0 else 0})")
        self.signal(F_NONCE, 21, 22, "0")
        A.label("L_a_nl2")
        A("s_waitcnt lgkmcnt(0)")
        self.stamp(1)
        AL, TH = 26, 28
        CC = 30
        W1, W8, W256 = 34, 38, 42
        tq = 46
        A(f"s_lshl_b32 s{s_t0}, s{s_pair}, 4")
        A(f"s_lshr_b32 s50, s50, s{s_t0}")
        A(f"s_lshl_b32 s50, s50, 16")
        A(f"s_lshr_b32 s51, s51, s{s_t0}")
        A(f"s_lshl_b32 s51, s51, 16")
        A(f"s_mov_b32 s{s_t1}, {f32(LOG2E)}")
        A(f"s_mov_b32 s{s_t2}, 0xffff0000")
        A(f"v_mov_b32 v{tq}, s50")
        A(f"v_mul_f32 v{tq}, s{s_t1}, v{tq}")
        A(f"v_lshlrev_b32 v{tq + 2}, 16, v8")
        A(f"v_and_b32 v{tq + 3}, s{s_t2}, v8")
        A(f"v_exp_f32 v{tq}, v{tq}")
        A(f"v_mul_f32 v{tq + 2}, s{s_t1}, v{tq + 2}")
        A(f"v_mul_f32 v{tq + 3}, s{s_t1}, v{tq + 3}")
        A(f"v_exp_f32 v{tq + 2}, v{tq + 2}")
        A(f"v_exp_f32 v{tq + 3}, v{tq + 3}")
        A(f"v_cvt_pk_bf16_f32 v{tq}, v{tq}, v{tq}")
        A(f"v_and_b32 v{tq}, s{s_t2}, v{tq}")
        A(f"v_cvt_pk_bf16_f32 v{tq + 2}, v{tq + 2}, v{tq + 3}")
        A(f"v_lshlrev_b32 v{TH}, 16, v9")
        A(f"v_and_b32 v{TH + 1}, s{s_t2}, v9")
        A(f"v_lshlrev_b32 v{AL}, 16, v{tq + 2}")
        A(f"v_and_b32 v{AL + 1}, s{s_t2}, v{tq + 2}")
        A(f"v_pk_mul_f32 v[{TH}:{TH + 1}], v[{TH}:{TH + 1}], v[{tq}:{tq + 1}] op_sel_hi:[1,0]")
        A(f"v_pk_mul_f32 v[{AL}:{AL + 1}], v[{AL}:{AL + 1}], v[{tq}:{tq + 1}] op_sel_hi:[1,0]")
        for i in range(2):
            A(f"v_mul_f32 v{TH + i}, {f32(INV2PI)}, v{TH + i}")
            A(f"v_mul_f32 v{AL + i}, {f32(-LOG2E)}, v{AL + i}")
        A(f"v_add_f32 v{tq}, v{tq}, v{tq}")
        A(f"v_lshlrev_b32 v{CC}, 16, v10")
        A(f"v_and_b32 v{CC + 2}, s{s_t2}, v10")
        A(f"v_lshlrev_b32 v{CC + 1}, 16, v11")
        A(f"v_and_b32 v{CC + 3}, s{s_t2}, v11")
        for i in range(2):
            A(f"v_pk_mul_f32 v[{CC + 2 * i}:{CC + 2 * i + 1}], v[{CC + 2 * i}:{CC + 2 * i + 1}], v[{tq}:{tq + 1}] op_sel_hi:[1,0] neg_hi:[1,0]")

        def wdirect(dst, m, conj):
            for i in range(2):
                a, t = tq + 4 * i, tq + 4 * i + 1
                if m == 1:
                    A(f"v_exp_f32 v{a}, v{AL + i}")
                    A(f"v_fract_f32 v{t}, v{TH + i}")
                else:
                    A(f"v_mul_f32 v{a}, {f32(float(m))}, v{AL + i}")
                    A(f"v_mul_f32 v{t}, {f32(float(m))}, v{TH + i}")
                    A(f"v_exp_f32 v{a}, v{a}")
                    A(f"v_fract_f32 v{t}, v{t}")
            for i in range(2):
                a, t = tq + 4 * i, tq + 4 * i + 1
                A(f"v_cos_f32 v{tq + 4 * i + 2}, v{t}")
                A(f"v_sin_f32 v{tq + 4 * i + 3}, v{t}")
            for i in range(2):
                a = tq + 4 * i
                neg = " neg_hi:[1,0]" if conj else ""
                A(f"v_pk_mul_f32 v[{dst + 2 * i}:{dst + 2 * i + 1}], v[{a + 2}:{a + 3}], v[{a}:{a + 1}] op_sel_hi:[1,0]{neg}")
        wdirect(W1, 1, True)
        wdirect(W256, 256, True)
        wdirect(W8, 8, False)
        if o.get("upos", 4) == 1:
            u_issue("L_a_nu")
        self.stamp(2)
        self.scalar_cmul = o.get("scm", 0) >= 2
        XS = 64
        PKB = 8
        tm = 16
        st = {"pend": None}

        def pack(psrc, prow):
            b = PKB + 4 * ((prow >> 1) & 1) + 2 * (prow & 1)
            A(f"v_cvt_pk_bf16_f32 v{b}, v{psrc}, v{psrc + 1}")
            A(f"v_cvt_pk_bf16_f32 v{b + 1}, v{psrc + 2}, v{psrc + 3}")

        def wr(prow):
            if B64:
                b = PKB + 4 * ((prow >> 1) & 1) + 2 * (prow & 1)
                return f"ds_write_b64 v{aWT}, v[{b}:{b + 1}] offset:{prow * 544}"
            q = PKB + 4 * ((prow >> 1) & 1)
            return f"ds_write_b128 v{aSW}, v[{q}:{q + 3}] offset:{(prow >> 1) * SCR_P2}"

        def flush_val():
            if st["pend"] is None:
                return
            src, row = st["pend"]
            st["pend"] = None
            pack(src, row)
            A(wr(row))

        def emit_val(src, row):
            if st["pend"] is not None:
                psrc, prow = st["pend"]
                pack(psrc, prow)
                if (prow & 1) or B64:
                    A(wr(prow))
            st["pend"] = (src, row)

        def cm2(dst, src, w):
            f0 = self.cmul(dst, src, w, tm)
            f1 = self.cmul(dst + 2, src + 2, w + 2, tm + 2)
            w_ = None
            if st["pend"] is not None:
                psrc, prow = st["pend"]
                assert psrc != dst
                st["pend"] = None
                pack(psrc, prow)
                if (prow & 1) or B64:
                    w_ = wr(prow)
            A(f0)
            A(f1)
            if w_:
                A(w_)

        def frags(dst):
            flush_val()
            for k in range(8):
                if B64:
                    A(f"ds_read_b128 v[{dst + 4 * k}:{dst + 4 * k + 3}], v{aSR} offset:{64 * k}")
                else:
                    A(f"ds_read2_b64 v[{dst + 4 * k}:{dst + 4 * k + 3}], v{aSR} offset0:{16 * k} offset1:{16 * k + 2}")
        AF0, AF1, BF = 128, 160, 192
        ACC = 112
        slot = lambda k: XS + 4 * k
        emit_val(CC, 0)
        prev = CC
        for c in range(1, 8):
            cm2(slot(c), prev, W1)
            emit_val(slot(c), c)
            prev = slot(c)
        src_of = {8: CC, 9: slot(2), 10: slot(4), 11: slot(6)}
        loc = {}
        free = [slot(1), slot(3), slot(5), slot(0), slot(8), slot(9), slot(10), slot(7)]
        for c in range(8, 12):
            loc[c] = free.pop(0)
            cm2(loc[c], src_of[c], W256)
            emit_val(loc[c], c)
        for c, s_ in ((12, 8), (13, 10), (14, 12), (15, 13)):
            loc[c] = free.pop(0)
            cm2(loc[c], loc[s_], W256)
            emit_val(loc[c], c)
        frags(AF0)
        if o.get("upos", 4) == 2:
            u_issue("L_a_nu")
        prev = loc[14]
        pp = [slot(2), slot(4)]
        for c in range(16, 21):
            dst = pp[c & 1]
            cm2(dst, prev, W256)
            emit_val(dst, c - 16)
            prev = dst
        frags(AF1)
        tbr = [TBR[i // 4] + i % 4 for i in range(12)]
        A(f"s_mul_i32 s{s_t0}, s{s_nh}, 3072")
        A(f"s_add_u32 s{s_t0}, s{s_t0}, {L_TAB}")
        A(f"v_add_u32 v20, s{s_t0}, v2")
        self.spec_wait(F_NONCE, 4, 21, 22, [f"ds_read_b128 v[{TBR[i]}:{TBR[i] + 3}], v20 offset:{i * 1024}" for i in range(3)], "0")
        A("s_load_dword s33, s[26:27], 0")
        if o.get("upos", 4) == 3:
            u_issue("L_a_nu")
        A(f"v_mov_b32 v{PKB}, 0x3f80")
        A(f"v_mov_b32 v{PKB + 1}, 0x3f80")
        if B64:
            A(wr(0))
        emit_val(W8, 1)
        prev = W8
        pp = [slot(0), slot(1)]

        def mf(ct):
            for k in range(8):
                for rt, af in ((0, AF0), (1, AF1)):
                    acc = ACC + 8 * rt + 4 * ct
                    c = "0" if k == 0 else f"v[{acc}:{acc + 3}]"
                    yield f"v_mfma_f32_16x16x32_bf16 v[{acc}:{acc + 3}], v[{af + 4 * k}:{af + 4 * k + 3}], v[{BF + 4 * k}:{BF + 4 * k + 3}], {c}"
        for j in range(2, 16):
            dst = pp[j & 1]
            cm2(dst, prev, W8)
            emit_val(dst, j)
            prev = dst
        frags(BF)
        A("s_waitcnt lgkmcnt(0)")
        A(f"s_lshl_b32 s{s_t0}, s86, 5")
        A(f"s_lshl_b32 s{s_t1}, s{s_pair}, 11")
        A(f"s_add_u32 s{s_t0}, s{s_t0}, s{s_t1}")
        A(f"s_mul_i32 s{s_t0}, s{s_t0}, 0x10001")
        for i in range(12):
            A(f"v_add_u32 v{tbr[i]}, s{s_t0}, v{tbr[i]}")
        A("s_cmp_lg_u32 s33, 0")
        A("s_cbranch_scc1 L_a_gn")
        self.get_nonce(249, 7, first_loaded=False, vm=0)
        A.label("L_a_gn")
        A(f"s_cmp_eq_u32 s30, 0")
        A("s_cbranch_scc0 L_a_nl")
        self.census_write(WS, 21, 22, s_t0)
        A.label("L_a_nl")
        if o.get("upos", 4) == 4:
            u_issue("L_a_nu")
        if o.get("upos", 4) == 0:
            A("s_cmp_lt_u32 s30, 4")
            A("s_cbranch_scc0 L_a_np0")
            A(f"v_lshlrev_b32 v22, 7, v{VL}")
            A("s_waitcnt vmcnt(0)")
            publish_u("0", "", 72)
            A("s_mov_b32 exec_hi, 0xff")
            A(f"buffer_load_dword v250, v22, {WS}, s88 offen sc1")
            A("s_mov_b32 exec_hi, -1")
            A.label("L_a_np0")
        if o.get("atouch", 1):
            A("s_cmp_lt_u32 s30, 4")
            A("s_cbranch_scc1 L_a_ntb")
            self.touch_b(21, 90, WS)
            A.label("L_a_ntb")
        self.stamp(3)
        self.scalar_cmul = o.get("scm", 0) >= 1
        if o.get("pe3", 1):
            A("s_setprio 2")
        g0 = mf(0)
        for j in range(16, 32):
            dst = pp[j & 1]
            cm2(dst, prev, W8)
            emit_val(dst, j - 16)
            prev = dst
            A(next(g0))
        frags(BF)
        A(f"s_cmp_eq_u32 s{s_nh}, 0")
        A("s_cselect_b64 s[56:57], -1, 0")
        A(f"v_cmp_eq_u32 vcc, 0, v{VL}")
        A("s_and_b64 vcc, vcc, s[56:57]")
        A("v_mov_b32 v16, s51")
        A("v_cndmask_b32 v16, 0, v16, vcc")
        A(f"v_cmp_eq_u32 s[48:49], 16, v{VL}")
        A(f"s_lshl_b32 s58, s{s_pair}, 2")
        A(f"s_add_u32 s58, s58, s86")
        for k in range(8):
            A(f"s_waitcnt lgkmcnt({7 - k})")
            g = list(mf(1))
            A(g[2 * k])
            A(g[2 * k + 1])
        UD = 20
        self.stamp(4)
        if o.get("pexp", 3):
            A(f"s_setprio {o.get('pexp', 3)}")
        KP, GV = 64, 72
        for rt in range(2):
            for r in range(4):
                a0, a1 = ACC + 8 * rt + r, ACC + 8 * rt + 4 + r
                A(f"v_cndmask_b32 v{GV + 4 * rt + r}, v{a0}, v{a1}, s[56:57]")
        A(f"ds_write_b128 v{aSW}, v[{GV}:{GV + 3}]")
        A(f"ds_write_b128 v{aSW}, v[{GV + 4}:{GV + 7}] offset:1024")
        self.signal(F_AX0, 10, 11, "s58")
        for rt in range(2):
            for r in range(4):
                a0, a1 = ACC + 8 * rt + r, ACC + 8 * rt + 4 + r
                A(f"v_cndmask_b32 v{KP + 4 * rt + r}, v{a1}, v{a0}, s[56:57]")
        A(f"v_add_f32 v{KP}, v{KP}, v16")
        if o.get("upos", 4) != 0:
            A("s_cmp_lt_u32 s30, 4")
            A("s_cbranch_scc0 L_a_np")
            A("s_waitcnt vmcnt(0)")
            publish_u("0", "", 192)
            A.label("L_a_np")
        GA = 128
        for i in range(12):
            A(f"v_and_b32 v{GA + 2 * i}, 0xffff, v{tbr[i]}")
            A(f"v_lshrrev_b32 v{GA + 2 * i + 1}, 16, v{tbr[i]}")
        self.spec_wait(F_AX0, 2, 10, 11, [f"ds_read_b128 v[{GV}:{GV + 3}], v{aPR}", f"ds_read_b128 v[{GV + 4}:{GV + 7}], v{aPR} offset:1024"], "s58")
        A("s_waitcnt lgkmcnt(0)")
        for i in range(4):
            A(f"v_pk_add_f32 v[{KP + 2 * i}:{KP + 2 * i + 1}], v[{KP + 2 * i}:{KP + 2 * i + 1}], v[{GV + 2 * i}:{GV + 2 * i + 1}]")
        A(f"v_cndmask_b32 v{KP + 7}, v{KP + 7}, 0, s[48:49]")
        for i in range(4):
            A(f"v_cvt_pk_bf16_f32 v{GV + i}, v{KP + 2 * i}, v{KP + 2 * i + 1}")
        A(f"ds_write_b64 v{aTW}, v[{GV}:{GV + 1}]")
        A("s_mov_b32 exec_hi, 0")
        A(f"ds_write_b64 v{aTW}, v[{GV + 2}:{GV + 3}] offset:32")
        A("s_mov_b32 exec_hi, -1")
        self.signal(F_AT0, 10, 11, "s58")
        P = 160
        A(f"buffer_load_dwordx4 v[{UD}:{UD + 3}], v{aUD}, {WS}, 0 offen sc1")
        A(f"buffer_load_dwordx4 v[{UD + 4}:{UD + 7}], v{aUD}, {WS}, 0 offen offset:64 sc1")
        A(f"buffer_load_dword v{UD + 8}, v{aUC}, {WS}, 0 offen offset:512 sc1")
        self.census_load(WS, 29, 5, s_t0, 1)
        for i in range(4):
            A(f"v_mov_b32 v{12 + i}, 0")
        self.spec_wait(F_AT0, 2, 10, 11, [f"ds_read_u16 v{P + m}, v{GA + m}" for m in range(11)], "s58")
        for m in range(4):
            A(f"ds_read_u16 v{P + 12 + m}, v{GA + 12 + m}")
        A("s_waitcnt lgkmcnt(8)")
        for m in range(4, 11):
            A(f"ds_read_u16 v{P + 12 + m}, v{GA + 12 + m}")
        QQ = 88
        for r in range(2):
            p = P + 12 * r
            A(f"s_waitcnt lgkmcnt({11 if r == 0 else 4})")
            for sc in range(4):
                q = QQ + 16 * r + 4 * sc
                for k in range(4):
                    m = 3 - sc + 2 * k
                    A(f"v_lshl_or_b32 v{q + k}, v{p + m + 1}, 16, v{p + m}")
                if r == 1:
                    A(f"ds_write_b128 v{aKW}, v[{q}:{q + 3}] offset:{r * 1024 + sc * KC_PITCH}")
            if r == 0:
                for sc in range(4):
                    q = QQ + 16 * r + 4 * sc
                    A(f"ds_write_b128 v{aKW}, v[{q}:{q + 3}] offset:{r * 1024 + sc * KC_PITCH}")
        A("s_mov_b64 exec, 0xffff")
        A(f"ds_write_b128 v{aZT}, v[12:15] offset:4096")
        A("s_mov_b64 exec, -1")
        A("s_waitcnt vmcnt(0)")
        self.census_eval(29, 95, s_t0)
        A("s_cmp_ge_u32 s30, 4")
        A("s_cselect_b32 s95, 1, s95")
        A("s_cmp_eq_u32 s95, 1")
        A("s_cbranch_scc1 L_a_nug")
        A(f"s_mov_b32 s94, {G_DELTA}")
        publish_u("s94", " sc1", 192)
        A.label("L_a_nug")
        A("s_mov_b32 s92, 0")
        A("s_mov_b32 s94, 0")
        A("s_branch L_a_uchk")
        A.label("L_a_upoll")
        self.poll_next(92, 94, G_DELTA, "L_a_udone")
        A(f"buffer_load_dwordx4 v[{UD}:{UD + 3}], v{aUD}, {WS}, s94 offen sc1")
        A(f"buffer_load_dwordx4 v[{UD + 4}:{UD + 7}], v{aUD}, {WS}, s94 offen offset:64 sc1")
        A(f"buffer_load_dword v{UD + 8}, v{aUC}, {WS}, s94 offen offset:512 sc1")
        A("s_waitcnt vmcnt(0)")
        A.label("L_a_uchk")
        A(f"v_bitop3_b32 v10, v{UD}, v{UD + 1}, v{UD + 2} bitop3:0x96")
        A(f"v_bitop3_b32 v10, v10, v{UD + 3}, v{UD + 4} bitop3:0x96")
        A(f"v_bitop3_b32 v10, v10, v{UD + 5}, v{UD + 6} bitop3:0x96")
        A(f"v_bitop3_b32 v10, v10, v{UD + 7}, v{UD + 8} bitop3:0x96")
        A("v_cmp_ne_u32 vcc, s33, v10")
        A("s_cbranch_vccnz L_a_upoll")
        A.label("L_a_udone")
        A("s_waitcnt vmcnt(0)")
        self.stamp(5)
        self.census_load(WS, 251, 5, s_t0, 1)
        A(f"ds_write_b128 v{aUW}, v[{UD}:{UD + 3}]")
        A(f"ds_write_b128 v{aUW}, v[{UD + 4}:{UD + 7}] offset:16")
        A(f"ds_write2_b64 v{aUW}, v[{UD}:{UD + 1}], v[{UD + 2}:{UD + 3}] offset0:0 offset1:0" if False else f"v_add_u32 v10, {U_PITCH + 8}, v{aUW}")
        A(f"ds_write2_b64 v10, v[{UD}:{UD + 1}], v[{UD + 2}:{UD + 3}] offset0:0 offset1:1")
        A(f"ds_write2_b64 v10, v[{UD + 4}:{UD + 5}], v[{UD + 6}:{UD + 7}] offset0:2 offset1:3")
        self.signal(F_AK0, 10, 11)
        CA = 64
        for i in range(20):
            A(f"v_mov_b32 v{CA + i}, 0")
        self.stamp(6)
        if o.get("pexp", 2):
            A(f"s_setprio {o.get('pcv', 1)}")
        regs = dict(aYS=aYS, aYR=aYR, aPD=aPD, aPC=aPC)
        A(f"s_cmp_eq_u32 s{s_nh}, 0")
        A("s_cbranch_scc0 L_a_conv1")
        self.conv("c0", [7, 6, 2], aVA, aVB, CA, regs)
        A("s_branch L_a_convd")
        A.label("L_a_conv1")
        self.conv("c1", [5, 4, 3, 1, 0], aVA, aVB, CA, regs)
        A.label("L_a_convd")
        self.stamp(8)
        A("s_setprio 0")
        self.signal(F_ACV, 10, 11)
        if o.get("wb1", 0):
            A("s_lshl_b32 s90, s3, 3")
            A("s_or_b32 s90, s90, s30")
            A(f"s_cmp_eq_u32 s90, {128 + o.get('wbw', 0)}")
            A("s_cbranch_scc0 L_a_nwb")
            A("buffer_wbl2 sc1")
            A.label("L_a_nwb")
        A(f"s_mov_b32 s{s_t0}, {8 * 1792}")
        self.wait_flag(F_ACV, 4, 10, 11)
        A("s_mov_b32 s92, 0")
        A("s_mov_b32 s94, 0")
        A.label("L_a_ypoll")
        self.poll_next(92, 94, YT_G, "L_a_ydone")
        A(f"s_add_u32 s95, s94, {8 * 20480}")
        A(f"buffer_load_dwordx4 v[20:23], v{aYD}, {WS}, s94 offen sc1")
        A(f"buffer_load_dwordx4 v[24:27], v{aYD}, {WS}, s95 offen sc1")
        A(f"buffer_load_dword v28, v{aYC}, {WS}, s94 offen offset:128 sc1")
        A(f"buffer_load_dword v30, v{aYC}, {WS}, s95 offen offset:128 sc1")
        A("s_waitcnt vmcnt(0)")
        A("v_bitop3_b32 v10, v20, v21, v22 bitop3:0x96")
        A("v_bitop3_b32 v11, v24, v25, v26 bitop3:0x96")
        A("v_bitop3_b32 v10, v10, v23, v28 bitop3:0x96")
        A("v_bitop3_b32 v11, v11, v27, v30 bitop3:0x96")
        A("v_xor_b32 v10, s89, v10")
        A("v_xor_b32 v11, s89, v11")
        A("v_or_b32 v10, v10, v11")
        A("v_cmp_ne_u32 vcc, 0, v10")
        A("s_cbranch_vccnz L_a_ypoll")
        A.label("L_a_ydone")
        A("s_waitcnt vmcnt(0)")
        self.stamp(9)
        A(f"ds_write_b128 v{aSW}, v[20:23]")
        A(f"ds_write_b128 v{aSW}, v[24:27] offset:1024")
        A(f"ds_read_b64_tr_b16 v[20:21], v{aFT}")
        A(f"ds_read_b64_tr_b16 v[22:23], v{aFT} offset:128")
        A(f"ds_read_b64_tr_b16 v[24:25], v{aFT} offset:1024")
        A(f"ds_read_b64_tr_b16 v[26:27], v{aFT} offset:1152")
        A("s_waitcnt lgkmcnt(2)")
        A(f"ds_write_b128 v{aGW}, v[20:23]")
        A("s_waitcnt lgkmcnt(1)")
        A(f"ds_write_b128 v{aGW}, v[24:27] offset:64")
        A(f"ds_read_b128 v[28:31], v{aGR}")
        A(f"ds_read_b128 v[32:35], v{aGR} offset:{8 * FP}")
        A("s_waitcnt lgkmcnt(1)")
        of = {0: "", 1: " sc1", 2: " nt", 3: " sc0 sc1"}[o.get("oa", 1)]
        A(f"buffer_store_dwordx4 v[28:31], v{aOUT}, s[96:99], 0 offen{of}")
        A("s_waitcnt lgkmcnt(0)")
        A(f"buffer_store_dwordx4 v[32:35], v{aOUT}, s[96:99], s{s_t0} offen{of}")
        if o.get("wb4", 1):
            A("s_lshl_b32 s90, s3, 3")
            A("s_or_b32 s90, s90, s30")
            A(f"s_cmp_eq_u32 s90, 128")
            A("s_cbranch_scc0 L_a_nw4")
            A("buffer_wbl2 sc1")
            A.label("L_a_nw4")
        self.stamp(10)
        self.dump_stamps(11)
        A("s_endpgm")

    def prefetch_late(self, va, vb, vc, sa, wp, xp, c0=4, with_q=True):
        A = self.A
        do_kv = self.o.get("pfe" if c0 == 0 else "pfl", 1)
        with_q = with_q and self.o.get("pfq", 1)
        if not do_kv and not with_q:
            return
        A(f"s_and_b32 s{sa}, s3, 15")
        A(f"s_and_b32 s{sa + 2}, s30, 3")
        A(f"s_add_u32 s{sa + 2}, s{sa + 2}, {c0}")
        A(f"s_min_u32 s{sa + 2}, s{sa + 2}, 6")
        A(f"v_mul_u32_u24 v{vc}, 37, v1")
        A(f"v_lshrrev_b32 v{vb}, 9, v{vc}")
        A(f"v_mad_u32_u24 v{va}, v{vb}, 7, v1")
        A(f"v_lshlrev_b32 v{va}, 7, v{va}")
        A(f"s_lshl_b32 s{sa + 1}, s{sa + 2}, 4")
        A(f"s_add_u32 s{sa + 1}, s{sa + 1}, s{sa}")
        A(f"s_mul_i32 s{sa + 1}, s{sa + 1}, {4 * 2688}")
        A(f"v_add_u32 v{va}, s{sa + 1}, v{va}")
        A("s_mov_b32 exec_hi, 0xffffff")
        if do_kv:
            A(f"global_load_dword v254, v{va}, {wp} offset:896")
        A("s_mov_b64 exec, -1")
        A(f"v_mul_u32_u24 v{vb}, 896, v1")
        A(f"s_lshl_b32 s{sa + 1}, s31, 4")
        A(f"s_add_u32 s{sa + 1}, s{sa + 1}, s{sa}")
        A(f"s_mul_i32 s{sa + 1}, s{sa + 1}, {16 * 896}")
        A(f"s_lshl_b32 s{sa + 2}, s{sa + 2}, 7")
        A(f"s_add_u32 s{sa + 1}, s{sa + 1}, s{sa + 2}")
        A(f"v_add_u32 v{vb}, s{sa + 1}, v{vb}")
        A("s_mov_b64 exec, 0xffff")
        if do_kv:
            A(f"global_load_dword v254, v{vb}, {xp}")
        A("s_mov_b64 exec, -1")
        if not with_q:
            return
        A(f"v_lshrrev_b32 v{vb}, 8, v{vc}")
        A(f"v_mad_u32_u24 v{va}, v{vb}, 14, v1")
        A(f"v_lshlrev_b32 v{va}, 7, v{va}")
        A(f"s_lshl_b32 s{sa}, s{sa}, 2")
        A(f"s_and_b32 s{sa + 2}, s30, 3")
        A(f"s_add_u32 s{sa}, s{sa}, s{sa + 2}")
        A(f"s_mul_i32 s{sa}, s{sa}, {7 * 2688}")
        A(f"v_add_u32 v{va}, s{sa}, v{va}")
        A("s_mov_b32 exec_hi, 0x1ffff")
        A(f"global_load_dword v254, v{va}, {wp}")
        A("s_mov_b64 exec, -1")

    def touch_b(self, va, sa, srd):
        A = self.A
        A(f"s_and_b32 s{sa}, s3, 15")
        A(f"s_lshl_b32 s{sa}, s{sa}, 2")
        A(f"s_and_b32 s{sa + 1}, s30, 3")
        A(f"s_add_u32 s{sa}, s{sa}, s{sa + 1}")
        A(f"v_lshlrev_b32 v{va}, 7, v1")
        A(f"s_lshl_b32 s{sa + 1}, s31, 6")
        A(f"s_add_u32 s{sa + 1}, s{sa + 1}, s{sa}")
        A(f"s_lshl_b32 s{sa + 2}, s{sa + 1}, 12")
        A(f"s_add_u32 s{sa + 2}, s{sa + 2}, {WS_PQ}")
        A("s_mov_b32 exec_hi, 0")
        A(f"buffer_load_dword v254, v{va}, {srd}, s{sa + 2} offen sc1")
        A(f"s_lshl_b32 s{sa + 2}, s{sa + 1}, 9")
        A(f"s_add_u32 s{sa + 2}, s{sa + 2}, {WS_KV}")
        A("s_mov_b32 exec_lo, 15")
        A(f"buffer_load_dword v254, v{va}, {srd}, s{sa + 2} offen sc1")
        A(f"s_mul_i32 s{sa}, s{sa}, {56 * 128}")
        A(f"s_add_u32 s{sa}, s{sa}, {WS_WOP}")
        A("s_mov_b32 exec_lo, -1")
        A("s_mov_b32 exec_hi, 0xffffff")
        A(f"buffer_load_dword v254, v{va}, {srd}, s{sa} offen sc1")
        A("s_mov_b64 exec, -1")

    def packer(self):
        A = self.A
        VL = 1
        WS = "s[20:23]"
        A.label("L_pack")
        A("s_cmp_ge_u32 s30, 4")
        A("s_cbranch_scc0 L_p_p1")
        self.prefetch_late(12, 13, 14, 45, "s[20:21]", "s[18:19]")
        A.label("L_p_p1")
        self.srd(12, 22, 448 * 896)
        self.srd(20, 28, 0x10000000)
        A("s_and_b32 s45, s3, 15")
        A("s_lshl_b32 s45, s45, 3")
        A("s_add_u32 s45, s45, s30")
        A(f"v_lshlrev_b32 v2, 4, v{VL}")
        A(f"v_lshlrev_b32 v3, 2, v{VL}")
        A(f"v_and_b32 v4, 3, v{VL}")
        A(f"v_bfe_u32 v6, v{VL}, 2, 2")
        A(f"v_lshrrev_b32 v16, 5, v{VL}")
        A(f"v_bfe_u32 v17, v{VL}, 4, 1")
        A(f"v_lshl_add_u32 v20, v16, 2, v6")
        A(f"v_lshlrev_b32 v20, 6, v20")
        A(f"v_lshl_add_u32 v20, v17, 5, v20")
        A(f"v_lshl_add_u32 v20, v4, 3, v20")
        A(f"v_add_u32 v20, s101, v20")
        for rnd in range(2):
            A("s_mul_hi_u32 s58, s45, 0x12492493")
            A("s_mul_i32 s41, s58, 14")
            A("s_sub_u32 s41, s45, s41")
            A("s_lshl_b32 s41, s41, 2")
            A("s_lshl_b32 s58, s58, 6")
            A(f"s_mul_i32 s{46 + rnd}, s45, {WOP_U}")
            A(f"s_add_u32 s{46 + rnd}, s{46 + rnd}, {WS_WOP}")
            A("s_cmp_lt_u32 s45, 196")
            A("s_cselect_b32 s58, s58, 0x7f000000")
            A(f"s_cselect_b32 s{46 + rnd}, s{46 + rnd}, 0x7f000000")
            for f in range(2):
                A(f"v_add_u32 v24, s41, v16")
                if f:
                    A(f"v_add_u32 v24, 2, v24")
                A(f"v_mul_u32_u24 v25, 37, v24")
                A(f"v_lshrrev_b32 v25, 8, v25")
                A(f"v_mul_u32_u24 v26, 7, v25")
                A(f"v_sub_u32 v24, v24, v26")
                A(f"v_lshlrev_b32 v26, 2, v17")
                A(f"v_mul_u32_u24 v27, 28, v17")
                A(f"v_sub_u32 v28, 0, v26")
                A(f"v_cmp_eq_u32 vcc, 3, v24")
                A(f"v_cndmask_b32 v26, v26, v27, vcc")
                A(f"v_cmp_lt_u32 vcc, 3, v24")
                A(f"v_cndmask_b32 v26, v26, v28, vcc")
                A(f"v_lshl_add_u32 v26, v24, 3, v26")
                A(f"v_mad_u32_u24 v26, v25, 56, v26")
                A(f"v_add_u32 v26, v26, v6")
                A(f"v_mul_u32_u24 v26, 896, v26")
                A(f"v_lshl_add_u32 v26, v4, 4, v26")
                A(f"s_add_u32 m0, s101, {2048 * rnd + 1024 * f}")
                A(f"buffer_load_dwordx4 v26, s[12:15], s58 offen lds")
            A("s_add_u32 s45, s45, 128")
        A("s_waitcnt vmcnt(0)")
        self.get_nonce(24, 7, first_loaded=False, vm=0)
        for k in range(8):
            A(f"ds_read_b64_tr_b16 v[{32 + 2 * k}:{33 + 2 * k}], v20 offset:{k * 512}")
        A("s_waitcnt lgkmcnt(0)")
        for rnd in range(2):
            b = 32 + 8 * rnd
            A(f"buffer_store_dwordx4 v[{b}:{b + 3}], v2, {WS}, s{46 + rnd} offen sc1")
            A(f"buffer_store_dwordx4 v[{b + 4}:{b + 7}], v2, {WS}, s{46 + rnd} offen offset:1024 sc1")
            A(f"v_bitop3_b32 v{50 + rnd}, v{b}, v{b + 1}, s33 bitop3:0x96")
            for i in range(3):
                A(f"v_bitop3_b32 v{50 + rnd}, v{50 + rnd}, v{b + 2 + 2 * i}, v{b + 3 + 2 * i} bitop3:0x96")
            A(f"buffer_store_dword v{50 + rnd}, v3, {WS}, s{46 + rnd} offen offset:2048 sc1")
        if self.o.get("atouch", 1):
            A("s_cmp_ge_u32 s30, 4")
            A("s_cbranch_scc0 L_end")
            A("s_waitcnt vmcnt(0)")
            A("s_barrier")
            self.touch_b(12, 90, WS)
        A("s_endpgm")

    def get_nonce(self, vd, vzero, first_loaded, vm):
        A = self.A
        L, Lc, Ld = A.uid("Ln"), A.uid("Lnc"), A.uid("Lnd")
        A("s_mov_b32 s91, 0")
        if first_loaded:
            A(f"s_waitcnt vmcnt({vm})")
            A(f"s_branch {Lc}")
        A.label(L)
        A(f"global_load_dword v{vd}, v{vzero}, s[26:27] sc1")
        A("s_waitcnt vmcnt(0)")
        A.label(Lc)
        A(f"v_readfirstlane_b32 s33, v{vd}")
        A("s_add_u32 s91, s91, 1")
        A("s_cmp_gt_u32 s91, 0x4000")
        A(f"s_cbranch_scc1 {Ld}")
        A("s_cmp_eq_u32 s33, 0")
        A(f"s_cbranch_scc1 {L}")
        A.label(Ld)
        A("s_or_b32 s33, s33, 1")

    def conv(self, name, tiles, vA, vB, CA, R):
        A = self.A
        VL = 1
        s_a, s_pair, s_nh = 36, 37, 38
        s_t0, s_t1 = 41, 42
        nmax = max(tiles) + 1
        FA, FB = 96, 160
        def loads(st):
            out = []
            for k in range(nmax):
                out.append(f"ds_read_b128 v[{FB + 32 * st + 4 * k}:{FB + 32 * st + 4 * k + 3}], v{vB} offset:{512 * k}")
                out.append(f"ds_read_b128 v[{FA + 32 * st + 4 * k}:{FA + 32 * st + 4 * k + 3}], v{vA} offset:{512 * (7 - k)}")
            return out
        def mfmas(st):
            out = []
            units = [(a, c - a, ti) for ti, c in enumerate(tiles) for a in range(c + 1)]
            units.sort(key=lambda u: (max(u[0], u[1]), u[2]))
            for a, cp, ti in units:
                acc = CA + 4 * ti
                fa = FA + 32 * st + 4 * a
                fb = FB + 32 * st + 4 * cp
                out.append(f"v_mfma_f32_16x16x32_bf16 v[{acc}:{acc + 3}], v[{fa}:{fa + 3}], v[{fb}:{fb + 3}], v[{acc}:{acc + 3}]")
            return out
        l0 = loads(0)
        self.spec_wait(F_AK0, 4, 10, 11, l0[:12])
        for l_ in l0[12:]:
            A(l_)
        A(f"v_subrev_u32 v{vA}, 64, v{vA}")
        A(f"v_subrev_u32 v{vB}, 64, v{vB}")
        A("s_mov_b32 s91, 0")
        A.label(f"L_{name}_loop")
        for st in range(2):
            ld = loads(1 - st)
            mf = mfmas(st)
            A("s_waitcnt lgkmcnt(0)")
            last = (st == 1)
            if last:
                A("s_cmp_eq_u32 s91, 3")
                A(f"s_cbranch_scc1 L_{name}_tail")
            for i, m_ in enumerate(mf):
                if i < len(ld):
                    A(ld[i])
                A(m_)
            A(f"v_subrev_u32 v{vA}, 64, v{vA}")
            A(f"v_subrev_u32 v{vB}, 64, v{vB}")
        A("s_add_u32 s91, s91, 1")
        A(f"s_branch L_{name}_loop")
        A.label(f"L_{name}_tail")
        for m_ in mfmas(1):
            A(m_)
        self.stamp(7)
        TS = 16 * 160
        A("s_xor_b32 s89, s33, 0x5a5a0000")
        A("s_xor_b32 s92, s86, 128")
        self.wait_flag(F_AK0, 4, 10, 11, "s92")
        A(f"v_cmp_lt_u32 s[56:57], 31, v{VL}")
        A("s_waitcnt vmcnt(0)")
        self.census_eval(251, 93, s_t0)
        A(f"s_mov_b32 s94, {YT_G}")
        stores = []
        for k in range(0, len(tiles), 2):
            grp = list(range(k, min(k + 2, len(tiles))))
            for q, ti in enumerate(grp):
                acc = CA + 4 * ti
                A(f"v_cvt_pk_bf16_f32 v{12 + 2 * q}, v{acc}, v{acc + 1}")
                A(f"v_cvt_pk_bf16_f32 v{13 + 2 * q}, v{acc + 2}, v{acc + 3}")
                A(f"ds_write_b64 v{R['aYS']}, v[{12 + 2 * q}:{13 + 2 * q}] offset:{q * 512}")
            D = 20 + 8 * (k // 2)
            A(f"ds_read_b128 v[{D}:{D + 3}], v{R['aYR']}")
            c0 = tiles[grp[0]]
            c1 = tiles[grp[-1]]
            A(f"v_mov_b32 v9, {c0 * TS}")
            A(f"v_mov_b32 v10, {c1 * TS}")
            A(f"v_cndmask_b32 v9, v9, v10, s[56:57]")
            A(f"v_add_u32 v{D + 6}, v9, v{R['aPD']}")
            A(f"v_add_u32 v{D + 7}, v9, v{R['aPC']}")
            A("s_waitcnt lgkmcnt(0)")
            A(f"v_bitop3_b32 v{D + 4}, v{D}, v{D + 1}, v{D + 2} bitop3:0x96")
            A(f"v_bitop3_b32 v{D + 4}, v{D + 4}, v{D + 3}, s89 bitop3:0x96")
            stores.append((D, len(grp) == 1))
            if len(grp) == 1:
                A("s_mov_b32 exec_hi, 0")
            A(f"buffer_store_dwordx4 v[{D}:{D + 3}], v{D + 6}, s[20:23], 0 offen")
            A(f"buffer_store_dword v{D + 4}, v{D + 7}, s[20:23], 0 offen offset:128")
            if len(grp) == 1:
                A("s_mov_b32 exec_hi, -1")
        A("s_cmp_eq_u32 s93, 1")
        A(f"s_cbranch_scc1 L_{name}_nog")
        for D, half in stores:
            if half:
                A("s_mov_b32 exec_hi, 0")
            A(f"buffer_store_dwordx4 v[{D}:{D + 3}], v{D + 6}, s[20:23], s94 offen sc1")
            A(f"buffer_store_dword v{D + 4}, v{D + 7}, s[20:23], s94 offen offset:128 sc1")
            if half:
                A("s_mov_b32 exec_hi, -1")
        A.label(f"L_{name}_nog")

    def build(self):
        A = self.A
        self.prologue()
        self.teamB()
        self.teamA()
        self.packer()
        A.label("L_end")
        A("s_endpgm")
        body = A.finalize(verbose=True)
        tab = gather_table().reshape(-1).view(np.uint32)
        tab = np.concatenate([tab, np.zeros(512 + 1024, np.uint32)])
        tabtxt = "\n".join(".long " + ", ".join("0x%08x" % x for x in tab[i:i + 8]) for i in range(0, len(tab), 8))
        hdr = open(os.path.join(os.path.dirname(os.path.abspath(__file__)), "header.txt")).read()
        txt = hdr + f"""; @launch grid=(256,1,1) block=(512,1,1) lds={LDS_TOTAL}
.amdgcn_target "amdgcn-amd-amdhsa--gfx950"
.text
.globl {KNAME}
.p2align 8
.type {KNAME},@function
{KNAME}:
{body}
L_code_end:
.p2align 8
.type gather_tab,@object
gather_tab:
{tabtxt}
.size gather_tab, {len(tab) * 4}
.section .rodata,"a"
.p2align 6
.amdhsa_kernel {KNAME}
  .amdhsa_next_free_vgpr 256
  .amdhsa_next_free_sgpr 102
  .amdhsa_accum_offset 256
  .amdhsa_group_segment_fixed_size 0
  .amdhsa_kernarg_size 104
  .amdhsa_user_sgpr_count 2
  .amdhsa_user_sgpr_kernarg_segment_ptr 1
  .amdhsa_system_sgpr_workgroup_id_x 1
.end_amdhsa_kernel
"""
        return txt


if __name__ == "__main__":
    import argparse
    ap = argparse.ArgumentParser()
    ap.add_argument("-o", default="concat_heads__ssm_conv_s4d__linear_attn_block__prompt.s")
    ap.add_argument("--stamps", action="store_true")
    ap.add_argument("--pf", type=int, default=6)
    ap.add_argument("--dumpA", action="store_true")
    ap.add_argument("--noA", action="store_true")
    ap.add_argument("--noB", action="store_true")
    ap.add_argument("--endstamp", action="store_true")
    ap.add_argument("--spin", type=int, default=0)
    ap.add_argument("--opt", action="append", default=[])
    a = ap.parse_args()
    g = Gen({"stamps": a.stamps, "pf_n": a.pf + (1 if a.stamps or a.dumpA else 0), "dumpA": a.dumpA, "noA": a.noA, "noB": a.noB, "endstamp": a.endstamp, "spin": a.spin})
    for kv in a.opt:
        k_, v_ = kv.split("=")
        g.o[k_] = int(v_)
    open(a.o, "w").write(g.build())
```

```python
import sys, os, struct
sys.path.insert(0, os.path.dirname(os.path.abspath(__file__)))
from asmdsl import Asm
import numpy as np

KNAME = "concat_heads__ssm_conv_s4d__linear_attn_block__prompt_kernel"

WS_PART = 0x000000
WS_KV = 0x080000
G_DELTA = 0x1000000
KV_G = G_DELTA
WS_PQ = 0x100000
WS_UT = 0x300000
WS_YT = 0x600000
YT_G = 2 * G_DELTA
T_PITCH = 56
POLL_LOCAL = 48
WS_CEN = 0x5C0000
WS_WOP = 0x540000
WOP_U = 2304
WS_DBG = 0x3000000

SCR_P2 = 1040
SCR_SZ = 8704
KC_PITCH = 4160
U_PITCH = 4576
L_FLAG = 0
L_T = 256
L_TEAM = 8448
TEAM_SZ = 53248
L_U = 34816
L_STG = L_TEAM + 2 * TEAM_SZ
L_TAB = L_STG + 4 * 4096
SLOT = 32768
L_EX = 4 * SLOT
LDS_TOTAL = 163840

F_W, F_WQ, F_RED, F_WO0, F_WO0R, F_WO1, F_OX, F_NONCE = 0, 1, 2, 3, 4, 5, 6, 7
F_AX0, F_AT0, F_AK0, F_ACV, F_AF = 8, 10, 12, 14, 15
F_WS = 16
F_AY0 = 24

TBR = (54, 58, 108)
LOG2E = 1.4426950408889634
INV2PI = 0.15915494309189535


def f32(x):
    return "0x%08x" % struct.unpack("<I", struct.pack("<f", x))[0]


ROWS = list(range(8)) + [256, 258, 260, 262, 512, 516, 768, 772, 1024, 1280, 1536, 1792, 2048]


def bf16_round_int(x):
    if x < 256:
        return x
    e = x.bit_length() - 8
    step = 1 << e
    lo = (x >> e) << e
    rem = x - lo
    if rem * 2 < step:
        return lo
    if rem * 2 > step:
        return lo + step
    return lo if ((lo >> e) & 1) == 0 else lo + step


def t_index(p):
    for c, r in enumerate(ROWS):
        if p >= r and (p - r) % 8 == 0 and (p - r) // 8 < 32:
            if p < 256 and c < 8:
                return c, (p - r) // 8
            if 256 <= p < 512 and 8 <= c < 12:
                return c, (p - r) // 8
            if 512 <= p < 1024 and 12 <= c < 16:
                return c, (p - r) // 8
            if 1024 <= p < 2048 and 16 <= c < 20:
                return c, (p - r) // 8
            if p == 2048 and c == 20:
                return c, 0
    raise ValueError(p)


def gather_table():
    tab = np.zeros((2, 3, 64, 8), np.uint16)
    for a in range(2):
        tb = L_T + 2048 * (a >> 1)
        zero_addr = tb + 23 * 2
        for r in range(2):
            rho = 2 * (a & 1) + r
            for l in range(64):
                y0 = 512 * rho + 8 * l
                for m in range(12):
                    idx = 2047 - y0 - m
                    if idx < 0:
                        ad = zero_addr
                    else:
                        c, j = t_index(bf16_round_int(idx))
                        ad = tb + j * T_PITCH + c * 2
                    k = r * 12 + m
                    tab[a, k // 8, l, k % 8] = ad
    return tab


class Gen:
    def __init__(self, opts):
        self.A = Asm()
        self.o = opts

    def signal(self, flag, vtmp_addr, vtmp_one, sbase="s86"):
        A = self.A
        A(f"v_mov_b32 v{vtmp_addr}, {sbase}")
        A(f"v_mov_b32 v{vtmp_one}, 1")
        A("s_mov_b64 exec, 1")
        A(f"ds_add_u32 v{vtmp_addr}, v{vtmp_one} offset:{4 * flag}")
        A("s_mov_b64 exec, -1")

    def wait_flag(self, flag, count, vtmp_addr, vtmp, sbase="s86", stmp=90):
        A = self.A
        L = A.uid("Lw")
        Ld = A.uid("Lwd")
        A(f"v_mov_b32 v{vtmp_addr}, {sbase}")
        A(f"s_mov_b32 s{stmp + 1}, 0")
        A.label(L)
        A(f"ds_read_b32 v{vtmp}, v{vtmp_addr} offset:{4 * flag}")
        A(f"s_add_u32 s{stmp + 1}, s{stmp + 1}, 1")
        A(f"s_cmp_gt_u32 s{stmp + 1}, 0x40000")
        A(f"s_cbranch_scc1 {Ld}")
        A("s_waitcnt lgkmcnt(0)")
        A(f"v_readfirstlane_b32 s{stmp}, v{vtmp}")
        A(f"s_cmp_ge_u32 s{stmp}, {count}")
        A(f"s_cbranch_scc1 {Ld}")
        if self.o.get("slp", 1):
            A(f"s_sleep {self.o.get('slp', 1)}")
        A(f"s_branch {L}")
        A.label(Ld)
        A("s_waitcnt lgkmcnt(0)")

    def spec_wait(self, flag, count, vtmp_addr, vtmp, reads, sbase="s86", stmp=90):
        A = self.A
        assert len(reads) <= 14
        L = A.uid("Ls")
        Ld = A.uid("Lsd")
        A(f"v_mov_b32 v{vtmp_addr}, {sbase}")
        A(f"s_mov_b32 s{stmp + 1}, 0")
        A.label(L)
        A(f"ds_read_b32 v{vtmp}, v{vtmp_addr} offset:{4 * flag}")
        for r in reads:
            A(r)
        A(f"s_add_u32 s{stmp + 1}, s{stmp + 1}, 1")
        A(f"s_cmp_gt_u32 s{stmp + 1}, 0x40000")
        A(f"s_cbranch_scc1 {Ld}")
        A(f"s_waitcnt lgkmcnt({len(reads)})")
        A(f"v_readfirstlane_b32 s{stmp}, v{vtmp}")
        A(f"s_cmp_lt_u32 s{stmp}, {count}")
        A(f"s_cbranch_scc1 {L}")
        A.label(Ld)

    def srd(self, sd, sptr, nbytes):
        A = self.A
        A(f"s_mov_b32 s{sd}, s{sptr}")
        A(f"s_and_b32 s{sd + 1}, s{sptr + 1}, 0xffff")
        A(f"s_mov_b32 s{sd + 2}, {nbytes}")
        A(f"s_mov_b32 s{sd + 3}, 0x00020000")

    def stamp(self, i, fine=False):
        if self.o.get("fine") and self.inB and not fine and i >= 3:
            return
        if fine and not self.o.get("fine"):
            return
        if self.o.get("stamps"):
            self.A(f"s_memtime s[{64 + 2 * i}:{65 + 2 * i}]")

    def dump_stamps(self, n):
        if self.o.get("endstamp"):
            A = self.A
            A("s_waitcnt vmcnt(0)")
            A("s_memrealtime s[90:91]")
            A("s_and_b32 s92, s30, 4")
            A("s_add_u32 s92, s92, 4")
            A("v_mov_b32 v2, s92")
            A("s_waitcnt lgkmcnt(0)")
            A("v_mov_b32 v3, s90")
            A("s_mov_b64 exec, 1")
            A("global_atomic_umax v2, v3, s[26:27]")
            A("s_mov_b64 exec, -1")
        if not self.o.get("stamps"):
            return
        A = self.A
        A("s_waitcnt lgkmcnt(0)")
        A("s_lshl_b32 s90, s2, 3")
        A("s_add_u32 s90, s90, s30")
        A("s_lshl_b32 s90, s90, 7")
        A(f"s_add_u32 s90, s90, {WS_DBG}")
        A("v_mov_b32 v2, s90")
        A("s_mov_b64 exec, 1")
        for i in range(n):
            A(f"s_sub_u32 s91, s{64 + 2 * i}, s62")
            A("v_mov_b32 v3, s91")
            A(f"global_store_dword v2, v3, s[28:29] offset:{4 * i}")
        A("v_mov_b32 v3, s60")
        A(f"global_store_dword v2, v3, s[28:29] offset:{4 * 15}")
        A("s_mov_b64 exec, -1")

    def census_write(self, srd, v0_, v1_, st):
        A = self.A
        A(f"s_getreg_b32 s{st}, hwreg(HW_REG_XCC_ID)")
        A(f"s_and_b32 s{st}, s{st}, 15")
        A(f"s_lshl_b32 s{st}, s{st}, 4")
        A(f"s_xor_b32 s{st}, s{st}, s33")
        A(f"v_mov_b32 v{v1_}, s{st}")
        A(f"s_lshl_b32 s{st}, s31, 5")
        A(f"s_add_u32 s{st}, s{st}, s3")
        A(f"s_lshl_b32 s{st}, s{st}, 3")
        A(f"s_add_u32 s{st}, s{st}, {WS_CEN}")
        A(f"v_mov_b32 v{v0_}, s{st}")
        A(f"v_mov_b32 v{v1_ + 1}, v{v1_}")
        A("s_mov_b64 exec, 1")
        A(f"buffer_store_dwordx2 v[{v1_}:{v1_ + 1}], v{v0_}, {srd}, 0 offen")
        A("s_mov_b64 exec, -1")

    def census_load(self, srd, vd, vt, st, half):
        A = self.A
        A(f"v_and_b32 v{vt}, 15, v1")
        A(f"v_lshlrev_b32 v{vt}, 3, v{vt}")
        A(f"s_lshl_b32 s{st}, s31, 8")
        A(f"s_add_u32 s{st}, s{st}, {WS_CEN + 128 * half}")
        A(f"buffer_load_dword v{vd}, v{vt}, {srd}, s{st} offen sc1")

    def census_eval(self, vd, sdst, st):
        A = self.A
        A(f"s_getreg_b32 s{st}, hwreg(HW_REG_XCC_ID)")
        A(f"s_and_b32 s{st}, s{st}, 15")
        A(f"s_lshl_b32 s{st}, s{st}, 4")
        A(f"s_xor_b32 s{st}, s{st}, s33")
        A(f"v_cmp_ne_u32 vcc, s{st}, v{vd}")
        A("s_cmp_eq_u64 vcc, 0")
        A(f"s_cselect_b32 s{sdst}, 1, 0")

    def poll_next(self, scnt, soff, delta, Ldone):
        A = self.A
        A(f"s_add_u32 s{scnt}, s{scnt}, 1")
        A(f"s_cmp_gt_u32 s{scnt}, 0x4000")
        A(f"s_cbranch_scc1 {Ldone}")
        A(f"s_cmp_gt_u32 s{scnt}, {POLL_LOCAL}")
        A(f"s_cselect_b32 s{scnt + 1}, {delta}, 0")
        A(f"s_xor_b32 s{soff}, s{soff}, s{scnt + 1}")
        if self.o.get("pslp", 2):
            A(f"s_sleep {self.o.get('pslp', 2)}")

    def cmul(self, d, z, w, t):
        A = self.A
        if self.scalar_cmul:
            A(f"v_mul_f32 v{t}, v{z}, v{w}")
            A(f"v_mul_f32 v{t + 1}, v{z}, v{w + 1}")
            return f"v_fma_f32 v{d}, -v{z + 1}, v{w + 1}, v{t}\nv_fma_f32 v{d + 1}, v{z + 1}, v{w}, v{t + 1}"
        A(f"v_pk_mul_f32 v[{t}:{t + 1}], v[{z}:{z + 1}], v[{w}:{w + 1}] op_sel:[0,0] op_sel_hi:[0,1]")
        return f"v_pk_fma_f32 v[{d}:{d + 1}], v[{z}:{z + 1}], v[{w}:{w + 1}], v[{t}:{t + 1}] op_sel:[1,1,0] op_sel_hi:[1,0,1] neg_lo:[0,1,0]"

    def prologue(self):
        A = self.A
        o = self.o
        VL = 1
        A("s_cmp_ge_u32 s2, 256")
        A("s_cbranch_scc1 L_end")
        if o.get("stamps"):
            A("s_memtime s[62:63]")
            A("s_memrealtime s[60:61]")
        if o.get("spin"):
            A("s_memtime s[36:37]")
            A("s_waitcnt lgkmcnt(0)")
            A.label("L_spin")
            A("s_memtime s[38:39]")
            A("s_waitcnt lgkmcnt(0)")
            A("s_sub_u32 s40, s38, s36")
            A(f"s_cmp_lt_u32 s40, {o['spin']}")
            A("s_cbranch_scc1 L_spin")
        A("s_load_dwordx16 s[4:19], s[0:1], 0")
        A("s_load_dwordx8 s[20:27], s[0:1], 64")
        A("s_load_dwordx2 s[28:29], s[0:1], 96")
        A("s_getpc_b64 s[34:35]")
        A("s_lshr_b32 s3, s2, 3")
        A("s_and_b32 s34, s34, 0xffffff00")
        A("s_and_b32 s33, s3, 3")
        A("s_lshl_b32 s33, s33, 13")
        A("v_lshlrev_b32 v2, 4, v0")
        A("v_add_u32 v2, s33, v2")
        A("global_load_dword v255, v2, s[34:35]")
        A("v_and_b32 v1, 63, v0")
        A("v_lshrrev_b32 v2, 6, v0")
        A("s_and_b32 s31, s2, 7")
        A("v_readfirstlane_b32 s30, v2")
        A("s_cmp_lt_u32 s3, 16")
        A("s_cbranch_scc1 L_teamB")
        s_a, s_pair, s_nh, s_scr, s_d = 36, 37, 38, 39, 40
        s_t0, s_t1, s_t2 = 41, 42, 43
        A(f"s_lshr_b32 s{s_t2}, s30, 2")
        A(f"s_and_b32 s32, s3, 15")
        A(f"s_lshl_b32 s32, s32, 1")
        A(f"s_add_u32 s32, s32, s{s_t2}")
        A(f"s_and_b32 s{s_a}, s30, 3")
        A(f"s_lshr_b32 s{s_pair}, s{s_a}, 1")
        A(f"s_and_b32 s{s_nh}, s{s_a}, 1")
        A(f"s_lshl_b32 s{s_d}, s31, 5")
        A(f"s_add_u32 s{s_d}, s{s_d}, s32")
        A(f"s_lshl_b32 s44, s{s_d}, 2")
        A(f"s_lshl_b32 s{s_d}, s{s_d}, 1")
        A(f"s_add_u32 s{s_d}, s{s_d}, s{s_pair}")
        A(f"s_lshl_b32 s{s_t0}, s{s_d}, 9")
        A(f"s_lshl_b32 s{s_t1}, s{s_nh}, 8")
        A(f"s_add_u32 s{s_t0}, s{s_t0}, s{s_t1}")
        A(f"v_lshlrev_b32 v5, 2, v{VL}")
        A(f"v_add_u32 v6, s{s_t0}, v5")
        A("v_mov_b32 v7, 0")
        A(f"s_lshl_b32 s86, s{s_t2}, 7")
        A(f"s_mul_i32 s87, s{s_t2}, {TEAM_SZ}")
        A(f"s_add_u32 s87, s87, {L_TEAM}")
        A(f"s_lshl_b32 s100, s{s_t2}, 12")
        A(f"s_add_u32 s100, s100, {L_T}")
        A(f"s_mul_i32 s{s_scr}, s{s_a}, {SCR_SZ}")
        A(f"s_add_u32 s{s_scr}, s{s_scr}, s87")
        A("ds_write_b32 v5, v7")
        A(f"v_lshrrev_b32 v62, 3, v{VL}")
        A(f"v_mul_u32_u24 v62, 896, v62")
        A(f"v_and_b32 v4, 7, v{VL}")
        A(f"v_lshl_add_u32 v62, v4, 4, v62")
        A(f"s_lshl_b32 s59, s32, 2")
        A(f"s_add_u32 s59, s59, s{s_a}")
        A(f"s_mul_i32 s56, s59, {16 * 896}")
        A(f"s_lshl_b32 s57, s31, 7")
        A(f"s_add_u32 s56, s56, s57")
        A(f"s_add_u32 s57, s56, {8 * 896}")
        A(f"s_lshl_b32 s101, s30, 12")
        A(f"s_add_u32 s101, s101, {L_STG}")
        A(f"s_add_u32 s46, s34, gather_tab-{KNAME}")
        A(f"s_addc_u32 s47, s35, 0")
        A(f"s_lshl_b32 s45, s{s_a}, 11")
        A(f"v_lshl_add_u32 v63, v{VL}, 4, s45")
        A("s_waitcnt lgkmcnt(0)")
        A("s_barrier")
        if o.get("pfirst", 1):
            A("s_cmp_eq_u32 s31, 7")
            A("s_cselect_b32 s90, s30, 0")
            A("s_cmp_ge_u32 s90, 4")
        else:
            A("s_cmp_ge_u32 s30, 4")
        A("s_cbranch_scc0 L_a_pf0")
        self.prefetch_late(12, 13, 14, 90, "s[20:21]", "s[18:19]", c0=0, with_q=False)
        A.label("L_a_pf0")
        A("s_cmp_eq_u32 s31, 7")
        A("s_cbranch_scc1 L_pack")
        if o.get("noA"):
            A("s_endpgm")
        A("global_load_dword v8, v6, s[6:7]")
        A("global_load_dword v9, v6, s[8:9]")
        A("global_load_dword v10, v6, s[10:11]")
        A("global_load_dword v11, v6, s[12:13]")
        A("s_load_dword s50, s[14:15], s44")
        A("s_load_dword s51, s[16:17], s44")
        self.srd(52, 4, 2048 * 896)
        A("s_cmp_lt_u32 s30, 4")
        A("s_cbranch_scc0 L_a_p0")
        A("s_setprio 1")
        A(f"s_add_u32 m0, s45, {L_TAB}")
        A("s_nop 0")
        A("global_load_lds_dwordx4 v63, s[46:47]")
        A("global_load_lds_dwordx4 v63, s[46:47] offset:1024")
        if o.get("upos", 2) == 0:
            for k in range(4):
                A(f"s_add_u32 m0, s101, {1024 * k}")
                A(f"s_add_u32 s57, s56, {(k & 1) * 8 * 896 + (k >> 1) * 64 * 896}")
                A(f"buffer_load_dwordx4 v62, s[52:55], s57 offen lds")
        A("s_branch L_a_p1")
        A.label("L_a_p0")
        if o.get("pfirst", 1):
            self.prefetch_late(12, 13, 14, 90, "s[20:21]", "s[18:19]", c0=0, with_q=False)
        self.prefetch_late(12, 13, 14, 90, "s[20:21]", "s[18:19]")
        A.label("L_a_p1")
        A("s_branch L_teamA")

    def teamB(self):
        A = self.A
        o = self.o
        VL = 1
        vW, vX, vXR, vTR = 2, 3, 7, 11
        XF, AK, AV, AQ, WF = 16, 128, 144, 160, 176
        T = 192
        TT = 240
        sX, sW = 36, 40
        s_rb, s_h, s_rot, s_xo, s_wo_, s_rg = 48, 49, 50, 51, 52, 53
        s_t0, s_t1, s_t2, s_hd = 54, 55, 56, 57
        A.label("L_teamB")
        self.inB = True
        if o.get("noB"):
            A("s_cmp_eq_u32 s2, 0")
            A("s_cbranch_scc0 L_end")
        vm = []

        def VM(text, tag):
            A(text)
            vm.append(tag)

        def wait_vm(tag):
            last = max(i for i, t in enumerate(vm) if t == tag)
            n = len(vm) - 1 - last
            assert n <= 63
            A(f"s_waitcnt vmcnt({n})")
        A("s_memrealtime s[44:45]")
        A(f"s_lshl_b32 s{s_rb}, s31, 1")
        A(f"s_and_b32 s{s_t0}, s3, 1")
        A(f"s_add_u32 s{s_rb}, s{s_rb}, s{s_t0}")
        A(f"s_and_b32 s{s_rg}, s30, 3")
        A(f"s_lshr_b32 s{s_hd}, s30, 2")
        A(f"s_and_b32 s{s_h}, s3, 14")
        A(f"s_mul_i32 s{s_wo_}, s{s_h}, 56")
        A(f"s_add_u32 s{s_h}, s{s_h}, s{s_hd}")
        A(f"s_add_u32 s{s_rot}, s3, s31")
        A(f"s_mul_hi_u32 s{s_t0}, s{s_rot}, 0x24924925")
        A(f"s_mul_i32 s{s_t0}, s{s_t0}, 7")
        A(f"s_sub_u32 s{s_rot}, s{s_rot}, s{s_t0}")
        if not o.get("rot", 0):
            A(f"s_mov_b32 s{s_rot}, 0")
        A(f"v_lshrrev_b32 v{TT}, 3, v{VL}")
        A(f"v_mul_u32_u24 v{vW}, 2688, v{TT}")
        A(f"v_and_b32 v{TT + 2}, 7, v{VL}")
        A(f"v_bfe_u32 v{TT + 1}, v{VL}, 4, 1")
        A(f"v_lshlrev_b32 v{TT + 1}, 2, v{TT + 1}")
        A(f"v_xor_b32 v{TT + 1}, v{TT + 1}, v{TT + 2}")
        A(f"v_min_u32 v{TT + 1}, 6, v{TT + 1}")
        A(f"v_lshl_add_u32 v{vW}, v{TT + 1}, 4, v{vW}")
        A(f"v_mul_u32_u24 v{TT}, 896, v{TT}")
        A(f"v_lshrrev_b32 v{TT + 1}, 4, v{VL}")
        A(f"v_xor_b32 v{TT + 1}, v{TT + 1}, v{TT + 2}")
        A(f"v_lshl_add_u32 v{vX}, v{TT + 1}, 4, v{TT}")
        A(f"v_xor_b32 v{TT + 1}, 4, v{TT + 1}")
        A(f"v_lshl_add_u32 v{vX + 1}, v{TT + 1}, 4, v{TT}")
        A(f"v_add_u32 v{vX + 1}, {8 * 896}, v{vX + 1}")
        s_xb, s_wb, s_lx, s_lw = 96, 59, 97, 58
        A(f"s_lshl_b32 s{s_t0}, s{s_rb}, 3")
        A(f"s_add_u32 s{s_t0}, s{s_t0}, s30")
        A(f"s_mul_i32 s{s_xb}, s{s_t0}, {16 * 896}")
        A(f"s_mul_i32 s{s_wb}, s{s_rg}, {16 * 2688}")
        A(f"s_add_u32 s{s_t0}, s{s_hd}, 1")
        A(f"s_mul_i32 s{s_t0}, s{s_t0}, 896")
        A(f"s_add_u32 s{s_wb}, s{s_wb}, s{s_t0}")
        A(f"s_add_u32 s{s_wb}, s{s_wb}, s{s_wo_}")
        A(f"s_lshl_b32 s{s_lx}, s30, 11")
        A(f"s_mov_b32 s{s_xo}, s{s_rot}")
        A("s_lshl_b32 s46, s2, 3")
        A("s_or_b32 s46, s46, s30")
        A("v_mov_b32 v6, 0")
        A(f"v_mul_u32_u24 v14, 37, v{VL}")
        A(f"v_lshrrev_b32 v14, 8, v14")
        A(f"v_mul_u32_u24 v15, {(64 * 2688 - 7 * 128) // 128}, v14")
        A(f"v_add_lshl_u32 v15, v15, v{VL}, 7")
        A(f"v_and_b32 v13, 1, v{VL}")
        A(f"v_mul_u32_u24 v13, {896 - 64}, v13")
        A(f"v_lshl_add_u32 v13, v{VL}, 6, v13")
        A("s_waitcnt lgkmcnt(0)")
        self.srd(sW, 20, 448 * 2688)
        self.srd(sX, 18, 2048 * 896)
        A("s_cmp_eq_u32 s46, 0")
        A("s_cbranch_scc0 L_b_nn")
        A("s_or_b32 s44, s44, 1")
        A("v_mov_b32 v5, s44")
        A("s_mov_b64 exec, 1")
        A("global_store_dword v6, v5, s[26:27] sc1")
        A("s_mov_b64 exec, -1")
        A.label("L_b_nn")
        if o.get("noB"):
            A("s_endpgm")

        def next_chunk():
            A(f"s_add_u32 s{s_xo}, s{s_xo}, 1")
            A(f"s_cmp_ge_u32 s{s_xo}, 7")
            A(f"s_cselect_b32 s{s_xo}, 0, s{s_xo}")

        def issue_stage(p):
            base = (p % 4) * SLOT
            A(f"s_mul_i32 s{s_t2}, s{s_xo}, {64 * 2688}")
            A(f"s_add_u32 s{s_t2}, s{s_t2}, s{s_wb}")
            A(f"s_add_u32 m0, s{s_lx}, {base + 16384}")
            A(f"s_lshl_b32 s{s_t1}, s{s_xo}, 7")
            VM(f"buffer_load_dwordx4 v{vW}, s[{sW}:{sW + 3}], s{s_t2} offen lds", f"s{p}")
            A(f"s_add_u32 m0, s{s_lx}, {base + 16384 + 1024}")
            A(f"s_add_u32 s{s_t2}, s{s_t2}, {8 * 2688}")
            VM(f"buffer_load_dwordx4 v{vW}, s[{sW}:{sW + 3}], s{s_t2} offen lds", f"s{p}")
            A(f"s_add_u32 m0, s{s_lx}, {base}")
            A(f"s_add_u32 s{s_t1}, s{s_t1}, s{s_xb}")
            VM(f"buffer_load_dwordx4 v{vX}, s[{sX}:{sX + 3}], s{s_t1} offen lds", f"s{p}")
            A(f"s_add_u32 m0, s{s_lx}, {base + 1024}")
            next_chunk()
            VM(f"buffer_load_dwordx4 v{vX + 1}, s[{sX}:{sX + 3}], s{s_t1} offen lds", f"s{p}")
        if o.get("bpf"):
            A("s_lshl_b32 s46, s3, 3")
            A("s_add_u32 s46, s46, s30")
            A("s_lshr_b32 s44, s46, 1")
            A("s_mul_i32 s44, s44, 2688")
            A("s_and_b32 s45, s46, 1")
            A("s_add_u32 s45, s45, 1")
            A("s_mul_i32 s45, s45, 896")
            A("s_add_u32 s45, s45, s44")
            A("s_mov_b64 exec, 0x1fffff")
            VM(f"buffer_load_dword v254, v15, s[{sW}:{sW + 3}], s45 offen", "pf")
            A("s_lshl_b32 s44, s31, 7")
            A("s_add_u32 s44, s44, s46")
            A(f"s_mul_i32 s44, s44, {2 * 896}")
            A("s_mov_b64 exec, 0x3f")
            VM(f"buffer_load_dword v254, v13, s[{sX}:{sX + 3}], s44 offen", "pf")
            A("s_mov_b64 exec, -1")
        D0 = o.get("d0", 2)
        for p in range(D0):
            issue_stage(p)
            if o.get("ibar") and p < D0 - 1:
                A("s_barrier")
        self.stamp(0)
        self.srd(4, 28, 0x10000000)
        self.srd(8, 24, 2048 * 1792)
        A(f"v_and_b32 v{TT}, 31, v{VL}")
        A(f"v_lshlrev_b32 v{TT + 1}, 7, v{TT}")
        A(f"s_lshl_b32 s{s_t0}, s{s_rg}, 12")
        A(f"v_add_u32 v{TT + 1}, s{s_t0}, v{TT + 1}")
        A(f"v_bfe_u32 v{TT + 2}, v{TT}, 1, 3")
        A(f"v_lshrrev_b32 v{TT + 3}, 5, v{VL}")
        A(f"v_xor_b32 v{TT + 2}, v{TT + 2}, v{TT + 3}")
        for t in range(4):
            A(f"v_xor_b32 v{TT + 4}, {2 * t}, v{TT + 2}")
            A(f"v_lshl_add_u32 v{vXR + t}, v{TT + 4}, 4, v{TT + 1}")
        A(f"v_bfe_u32 v{TT}, v{VL}, 2, 2")
        A(f"v_lshl_add_u32 v{TT + 1}, v{TT + 3}, 3, v{TT}")
        A(f"v_lshlrev_b32 v{TT + 1}, 7, v{TT + 1}")
        A(f"v_bfe_u32 v{TT + 2}, v{VL}, 4, 1")
        A(f"v_lshlrev_b32 v{TT + 2}, 5, v{TT + 2}")
        A(f"v_and_b32 v{TT + 4}, 3, v{VL}")
        A(f"v_lshl_add_u32 v{TT + 2}, v{TT + 4}, 3, v{TT + 2}")
        A(f"s_mul_i32 s{s_t0}, s{s_hd}, 56")
        A(f"v_add_u32 v{TT + 2}, s{s_t0}, v{TT + 2}")
        A(f"v_bfe_u32 v{TT + 4}, v{VL}, 3, 1")
        A(f"v_lshlrev_b32 v{TT + 4}, 6, v{TT + 4}")
        A(f"v_xor_b32 v{TT + 2}, v{TT + 2}, v{TT + 4}")
        A(f"v_add_u32 v{vTR}, v{TT + 1}, v{TT + 2}")
        A(f"v_add_u32 v12, {2 * SLOT}, v{vTR}")
        for t in range(4):
            A(f"v_add_u32 v{TT + 8 + t}, {2 * SLOT}, v{vXR + t}")
        A(f"v_lshlrev_b32 v14, 4, v{VL}")
        A(f"v_lshlrev_b32 v13, 2, v{VL}")
        A(f"s_mov_b32 s{s_t0}, {f32(1e-6)}")
        for i in range(16):
            A(f"v_mov_b32 v{AK + i}, s{s_t0}")
            A(f"v_mov_b32 v{AQ + i}, s{s_t0}")
        A(f"s_mul_i32 s{s_lw}, s30, {8 * 2688}")
        A(f"s_add_u32 s{s_lw}, s{s_lw}, s{s_wo_}")
        A(f"s_lshl_b32 s47, s30, 10")

        def wq_lds(p):
            return (3 * SLOT + p * 8192) if p < 4 else ((p - 4) * 8192)

        def issue_wq(lo, hi):
            for p in range(lo, hi):
                A(f"s_mul_i32 s{s_t2}, s{s_xo}, {64 * 2688}")
                A(f"s_add_u32 s{s_t2}, s{s_t2}, s{s_lw}")
                A(f"s_add_u32 m0, s47, {wq_lds(p)}")
                next_chunk()
                VM(f"buffer_load_dwordx4 v{vW}, s[{sW}:{sW + 3}], s{s_t2} offen lds", "wq")

        def lds_ref(addr, lo, hi):
            return (lo, addr) if addr < 2 * SLOT else (hi, addr - 2 * SLOT)

        def reads(j):
            out = []
            base = (j % 4) * SLOT
            for t in range(4):
                r = XF + 4 * (4 * j + t)
                v_, off = lds_ref(base, vXR + t, TT + 8 + t)
                out.append(f"ds_read_b128 v[{r}:{r + 3}], v{v_} offset:{off}")
                b = WF + 32 * (j & 1) + 8 * t
                v_, off = lds_ref(base + 16384 + t * 2048, vTR, 12)
                out.append(f"ds_read_b64_tr_b16 v[{b}:{b + 1}], v{v_} offset:{off}")
                out.append(f"ds_read_b64_tr_b16 v[{b + 2}:{b + 3}], v{v_} offset:{off + 512}")
                out.append(f"ds_read_b64_tr_b16 v[{b + 4}:{b + 5}], v{v_} offset:{off + 8192}")
                out.append(f"ds_read_b64_tr_b16 v[{b + 6}:{b + 7}], v{v_} offset:{off + 8192 + 512}")
            return out

        def mfmas(j):
            out = []
            for t in range(4):
                ks = 4 * j + t
                x = XF + 4 * ks
                b = WF + 32 * (j & 1) + 8 * t
                out.append(f"v_mfma_f32_32x32x16_bf16 v[{AK}:{AK + 15}], v[{x}:{x + 3}], v[{b}:{b + 3}], v[{AK}:{AK + 15}]")
                cv = "0" if ks == 0 else f"v[{AV}:{AV + 15}]"
                out.append(f"v_mfma_f32_32x32x16_bf16 v[{AV}:{AV + 15}], v[{x}:{x + 3}], v[{b + 4}:{b + 7}], {cv}")
            return out
        s_q4, s_rb2 = 92, 93
        nxt = [D0]
        for j in range(8):
            if j <= 6:
                wait_vm(f"s{j}")
                A("s_barrier")
                self.stamp(2 + j, fine=True)
            rd = reads(j) if j <= 6 else []
            mm = mfmas(j - 1) if j >= 1 else []
            if j == 7:
                mm = mm[0::2] + mm[1::2]
            if o.get("nolag"):
                if j == 7:
                    continue
                mm = mfmas(j)
                for r_ in rd[:15]:
                    A(r_)
                for t in range(4):
                    if t == 0:
                        A("s_waitcnt lgkmcnt(10)")
                        for r_ in rd[15:]:
                            A(r_)
                    else:
                        A(f"s_waitcnt lgkmcnt({15 - 5 * t})")
                    A(mm[2 * t])
                    A(mm[2 * t + 1])
                rd, mm = [], []
            if mm and rd:
                for i, m_ in enumerate(mm):
                    A(m_)
                    for r_ in (rd[o["rpm"] * i:o["rpm"] * (i + 1)] if o.get("rpm") else rd[(20 * i) // 8:(20 * (i + 1)) // 8]):
                        A(r_)
            else:
                for x_ in rd + mm:
                    A(x_)
            if rd:
                A("s_waitcnt lgkmcnt(0)")
            if j <= 6:
                if j == 1:
                    VM("global_load_dword v252, v6, s[26:27] sc1", "nonce")
                while nxt[0] <= min(j + 3, 6) and nxt[0] <= j + D0 + (1 if j >= o.get("dj", 1) else 0):
                    issue_stage(nxt[0])
                    nxt[0] += 1
                if j == 4:
                    issue_wq(0, 4)
                elif j == 5:
                    issue_wq(4, 7)
                    self.get_nonce(252, 6, first_loaded=True, vm=63)
                    A("s_cmp_eq_u32 s30, 0")
                    A("s_cbranch_scc0 L_b_nc")
                    self.census_write("s[4:7]", TT, TT + 2, s_t2)
                    A.label("L_b_nc")
                elif j == 6:
                    if o.get("atouch", 1):
                        A(f"s_lshl_b32 s88, s{s_rb}, 2")
                        A(f"s_add_u32 s88, s88, s{s_rg}")
                        A(f"s_lshl_b32 s88, s88, 4")
                        A(f"s_add_u32 s88, s88, s{s_h}")
                        A(f"s_lshl_b32 s88, s88, 11")
                        A(f"s_add_u32 s88, s88, {WS_PQ}")
                    else:
                        A(f"s_lshl_b32 s{s_t1}, s3, 3")
                        A(f"s_add_u32 s{s_t1}, s{s_t1}, s30")
                        A(f"s_mul_i32 s{s_t2}, s{s_t1}, {28 * 128}")
                        A(f"s_add_u32 s{s_t2}, s{s_t2}, {WS_WOP}")
                        A(f"v_lshlrev_b32 v{TT}, 7, v{VL}")
                        A("s_mov_b64 exec, 0xfffffff")
                        VM(f"buffer_load_dword v253, v{TT}, s[4:7], s{s_t2} offen sc1", "t")
                        A("s_mov_b64 exec, 3")
                        A(f"s_lshl_b32 s{s_t1}, s{s_t1}, 8")
                        A(f"s_lshl_b32 s{s_t2}, s31, 15")
                        A(f"s_add_u32 s{s_t1}, s{s_t1}, s{s_t2}")
                        A(f"s_add_u32 s{s_t1}, s{s_t1}, {WS_KV}")
                        VM(f"buffer_load_dword v253, v{TT}, s[4:7], s{s_t1} offen sc1", "t")
                        A("s_mov_b64 exec, 0xffff")
                        A(f"s_lshl_b32 s88, s{s_rb}, 2")
                        A(f"s_add_u32 s88, s88, s{s_rg}")
                        A(f"s_lshl_b32 s88, s88, 4")
                        A(f"s_add_u32 s88, s88, s{s_h}")
                        A(f"s_lshl_b32 s88, s88, 11")
                        A(f"s_add_u32 s88, s88, {WS_PQ}")
                        VM(f"buffer_load_dword v253, v{TT}, s[4:7], s88 offen sc1", "t")
                        A("s_mov_b64 exec, -1")
            if j == 0:
                self.stamp(1)
            if j == 2 and not o.get("fine"):
                self.stamp(2)
        self.stamp(3)
        self.stamp(9, fine=True)
        PK, PV = T, T + 8
        E = T + 16
        A(f"s_mov_b32 s{s_t0}, {f32(LOG2E)}")
        A(f"s_mov_b32 s{s_t1}, {f32(1e-6)}")

        def phi(acc, dst):
            for i in range(16):
                A(f"v_mul_f32 v{E + i}, s{s_t0}, v{acc + i}")
            for i in range(16):
                A(f"v_exp_f32 v{E + i}, v{E + i} clamp")
                A(f"v_max_f32 v{acc + i}, s{s_t1}, v{acc + i}")
            for i in range(8):
                A(f"v_pk_add_f32 v[{acc + 2 * i}:{acc + 2 * i + 1}], v[{acc + 2 * i}:{acc + 2 * i + 1}], v[{E + 2 * i}:{E + 2 * i + 1}]")
            for i in range(8):
                A(f"v_cvt_pk_bf16_f32 v{dst + i}, v{acc + 2 * i}, v{acc + 2 * i + 1}")
        A(f"v_and_b32 v{E}, 31, v{VL}")
        A(f"v_cmp_eq_u32 vcc, 28, v{E}")
        phi(AK, PK)
        A(f"v_mov_b32 v{E}, 0x3f803f80")
        for i in range(8):
            A(f"v_cvt_pk_bf16_f32 v{PV + i}, v{AV + 2 * i}, v{AV + 2 * i + 1}")
        for i in range(8):
            A(f"v_cndmask_b32 v{PV + i}, v{PV + i}, v{E}, vcc")
        A(f"v_mfma_f32_32x32x16_bf16 v[{AK}:{AK + 15}], v[{PK}:{PK + 3}], v[{PV}:{PV + 3}], 0")
        A(f"v_mfma_f32_32x32x16_bf16 v[{AK}:{AK + 15}], v[{PK + 4}:{PK + 7}], v[{PV + 4}:{PV + 7}], v[{AK}:{AK + 15}]")
        A(f"s_lshl_b32 s{s_t2}, s30, 12")
        A(f"s_add_u32 s{s_t2}, s{s_t2}, {L_EX}")
        A(f"v_add_u32 v{E}, s{s_t2}, v14")
        A(f"v_lshrrev_b32 v{E + 1}, 3, v{VL}")
        A(f"s_lshl_b32 s{s_t2}, s{s_rg}, 3")
        A(f"v_add_u32 v{E + 1}, s{s_t2}, v{E + 1}")
        A(f"v_bfe_u32 v{E + 2}, v{VL}, 2, 1")
        A(f"v_lshl_add_u32 v{E + 2}, v{E + 2}, 5, v{E + 1}")
        A(f"v_lshlrev_b32 v{E + 2}, 4, v{E + 2}")
        A(f"v_and_b32 v{E + 3}, 3, v{VL}")
        A(f"v_lshl_add_u32 v{E + 2}, v{E + 3}, 10, v{E + 2}")
        A(f"s_lshl_b32 s{s_t2}, s{s_hd}, 14")
        A(f"s_add_u32 s{s_t2}, s{s_t2}, {L_EX}")
        A(f"v_add_u32 v{E + 2}, s{s_t2}, v{E + 2}")
        for g in range(4):
            A(f"ds_write_b128 v{E}, v[{AK + 4 * g}:{AK + 4 * g + 3}] offset:{g * 1024}")
        A("s_waitcnt lgkmcnt(0)")
        self.stamp(10, fine=True)
        A("s_barrier")
        for w in range(4):
            A(f"ds_read_b128 v[{AV + 4 * w}:{AV + 4 * w + 3}], v{E + 2} offset:{w * 4096}")
        A(f"s_and_b32 s{s_q4}, s3, 3")
        A(f"s_lshl_b32 s{s_rb2}, s31, 3")
        A(f"s_lshr_b32 s{s_t2}, s3, 2")
        A(f"s_lshl_b32 s{s_t2}, s{s_t2}, 1")
        A(f"s_add_u32 s{s_rb2}, s{s_rb2}, s{s_t2}")
        A(f"s_lshl_b32 s94, s{s_q4}, 2")
        A(f"s_add_u32 s94, s94, s{s_rg}")
        A(f"s_mul_i32 s95, s94, {14 * WOP_U}")
        A(f"s_add_u32 s95, s95, {WS_WOP}")
        A(f"s_cmp_lt_u32 s94, 14")
        A(f"s_cselect_b32 s89, s{s_hd}, 1")
        A(f"s_cmp_eq_u32 s89, 0")
        A(f"s_cselect_b32 s94, s95, 0x7f000000")
        WC = 232

        def wop_load(ks):
            r = XF + 4 * ks
            if ks % 2 == 0:
                A(f"s_add_u32 s95, s94, {(ks // 2) * WOP_U}")
            fl = "" if o.get("wplain") else " sc1"
            A(f"buffer_load_dwordx4 v[{r}:{r + 3}], v14, s[4:7], s95 offen offset:{(ks % 2) * 1024}{fl}")
            if ks % 2 == 1:
                A(f"buffer_load_dword v{WC + ks // 2}, v13, s[4:7], s95 offen offset:2048{fl}")
        A("s_waitcnt lgkmcnt(0)")
        for k in range(2):
            A(f"v_pk_add_f32 v[{AV + 2 * k}:{AV + 2 * k + 1}], v[{AV + 2 * k}:{AV + 2 * k + 1}], v[{AV + 4 + 2 * k}:{AV + 5 + 2 * k}]")
            A(f"v_pk_add_f32 v[{AV + 8 + 2 * k}:{AV + 9 + 2 * k}], v[{AV + 8 + 2 * k}:{AV + 9 + 2 * k}], v[{AV + 12 + 2 * k}:{AV + 13 + 2 * k}]")
        for k in range(2):
            A(f"v_pk_add_f32 v[{AV + 2 * k}:{AV + 2 * k + 1}], v[{AV + 2 * k}:{AV + 2 * k + 1}], v[{AV + 8 + 2 * k}:{AV + 9 + 2 * k}]")
        A(f"v_and_b32 v{E + 4}, 7, v{VL}")
        A(f"v_cmp_eq_u32 vcc, 7, v{E + 4}")
        A(f"v_cvt_pk_bf16_f32 v{E + 6}, v{AV}, v{AV + 1}")
        A(f"v_cvt_pk_bf16_f32 v{E + 7}, v{AV + 2}, v{AV + 3}")
        A(f"v_cndmask_b32 v{E + 6}, v{E + 6}, 0, vcc")
        A(f"v_cndmask_b32 v{E + 7}, v{E + 7}, 0, vcc")
        A(f"v_xor_b32 v{E + 4}, v{E + 6}, v{E + 7}")
        A(f"v_xor_b32_dpp v{E + 4}, v{E + 4}, v{E + 4} quad_perm:[1,0,3,2] row_mask:0xf bank_mask:0xf")
        A(f"v_xor_b32_dpp v{E + 4}, v{E + 4}, v{E + 4} quad_perm:[2,3,0,1] row_mask:0xf bank_mask:0xf")
        A(f"v_xor_b32_dpp v{E + 4}, v{E + 4}, v{E + 4} row_half_mirror row_mask:0xf bank_mask:0xf")
        A(f"v_xor_b32 v{E + 4}, s33, v{E + 4}")
        A(f"v_cndmask_b32 v{E + 6}, v{E + 6}, v{E + 4}, vcc")
        A(f"s_lshl_b32 s{s_t2}, s{s_h}, 4")
        A(f"s_add_u32 s{s_t2}, s{s_t2}, s{s_rb}")
        A(f"s_lshl_b32 s{s_t2}, s{s_t2}, 2")
        A(f"s_add_u32 s{s_t2}, s{s_t2}, s{s_rg}")
        A(f"s_lshl_b32 s{s_t2}, s{s_t2}, 9")
        A(f"v_lshlrev_b32 v{E + 5}, 3, v{VL}")
        A(f"buffer_store_dwordx2 v[{E + 6}:{E + 7}], v{E + 5}, s[4:7], s{s_t2} offen sc1")
        self.stamp(4)
        self.stamp(11, fine=True)
        vm.append("part")
        wait_vm("wq")
        A("s_barrier")
        self.census_load("s[4:7]", 252, E, 91, 0)
        A(f"v_cmp_lt_u32 s[98:99], 31, v{VL}")
        A(f"s_cmp_eq_u32 s{s_hd}, 0")
        A("s_cbranch_scc1 L_b_lo")
        AQ2 = AK
        A(f"s_setprio {o.get('pq', 2)}")
        A(f"v_bfe_u32 v{E + 1}, v{VL}, 3, 1")
        A(f"v_lshlrev_b32 v{E + 1}, 6, v{E + 1}")
        A(f"v_xor_b32 v2, v{vTR}, v{E + 1}")
        A(f"v_subrev_u32 v2, 56, v2")
        A(f"v_xor_b32 v2, v2, v{E + 1}")
        A(f"v_add_u32 v3, {2 * SLOT}, v2")
        for i in range(16):
            A(f"v_mov_b32 v{AQ2 + i}, s{s_t1}")

        def rd_q(ks, buf):
            b = WF + 8 * buf
            ad = wq_lds(ks >> 2) + (ks & 3) * 2048
            v_, off = lds_ref(ad, vTR, 12)
            A(f"ds_read_b64_tr_b16 v[{b}:{b + 1}], v{v_} offset:{off}")
            A(f"ds_read_b64_tr_b16 v[{b + 2}:{b + 3}], v{v_} offset:{off + 512}")
            v_, off = lds_ref(ad, 2, 3)
            A(f"ds_read_b64_tr_b16 v[{b + 4}:{b + 5}], v{v_} offset:{off}")
            A(f"ds_read_b64_tr_b16 v[{b + 6}:{b + 7}], v{v_} offset:{off + 512}")
        for ks in range(2):
            rd_q(ks, ks)
        for ks in range(28):
            if ks + 2 < 28:
                rd_q(ks + 2, (ks + 2) % 3)
                A("s_waitcnt lgkmcnt(8)")
            else:
                A(f"s_waitcnt lgkmcnt({4 * (27 - ks)})")
            b = WF + 8 * (ks % 3)
            x = XF + 4 * ks
            A(f"v_mfma_f32_32x32x16_bf16 v[{AQ}:{AQ + 15}], v[{b}:{b + 3}], v[{x}:{x + 3}], v[{AQ}:{AQ + 15}]")
            A(f"v_mfma_f32_32x32x16_bf16 v[{AQ2}:{AQ2 + 15}], v[{b + 4}:{b + 7}], v[{x}:{x + 3}], v[{AQ2}:{AQ2 + 15}]")
        A("s_waitcnt vmcnt(0)")
        self.census_eval(252, 47, s_t2)

        def xor8(dst, src):
            A(f"v_bitop3_b32 v{dst}, v{src}, v{src + 1}, v{src + 2} bitop3:0x96")
            A(f"v_bitop3_b32 v{dst}, v{dst}, v{src + 3}, v{src + 4} bitop3:0x96")
            A(f"v_bitop3_b32 v{dst}, v{dst}, v{src + 5}, v{src + 6} bitop3:0x96")
            A(f"v_xor_b32 v{dst}, v{dst}, v{src + 7}")
        A(f"s_sub_u32 s88, s88, 2048")
        for (acc, pk, off) in ((AQ, PK, 2048), (AQ2, PV, 0)):
            phi(acc, pk)
            A(f"v_cndmask_b32 v{pk + 6}, v{pk + 6}, 0, s[98:99]")
            A(f"v_cndmask_b32 v{pk + 7}, v{pk + 7}, 0, s[98:99]")
            xor8(E, pk)
            A(f"v_mov_b32 v{E + 1}, v{E}")
            A(f"v_permlane32_swap_b32 v{E}, v{E + 1}")
            A(f"v_bitop3_b32 v{E}, v{E}, v{E + 1}, s33 bitop3:0x96")
            A(f"v_cndmask_b32 v{pk + 6}, v{pk + 6}, v{E}, s[98:99]")
            pf = " sc1" if o.get("pqs") else (" nt" if o.get("ntq") else "")
            A(f"buffer_store_dwordx4 v[{pk}:{pk + 3}], v14, s[4:7], s88 offen offset:{off}{pf}")
            A(f"buffer_store_dwordx4 v[{pk + 4}:{pk + 7}], v14, s[4:7], s88 offen offset:{off + 1024}{pf}")
        A("s_cmp_eq_u32 s47, 1" if not o.get("pqs") else "s_cmp_eq_u32 s47, s47")
        A("s_cbranch_scc1 L_b_npq")
        A(f"s_add_u32 s88, s88, {G_DELTA}")
        for (pk, off) in ((PK, 2048), (PV, 0)):
            A(f"buffer_store_dwordx4 v[{pk}:{pk + 3}], v14, s[4:7], s88 offen offset:{off} sc1")
            A(f"buffer_store_dwordx4 v[{pk + 4}:{pk + 7}], v14, s[4:7], s88 offen offset:{off + 1024} sc1")
        A.label("L_b_npq")
        self.stamp(5)
        A("s_waitcnt vmcnt(0)")
        A(f"s_setprio {o.get('ph', 2)}")
        PQ, KV, PQ1 = 128, 160, 64
        A(f"s_lshl_b32 s{s_t2}, s{s_rb2}, 4")
        A(f"s_lshl_b32 s{s_t1}, s{s_rg}, 2")
        A(f"s_add_u32 s{s_t2}, s{s_t2}, s{s_t1}")
        A(f"s_lshl_b32 s{s_t2}, s{s_t2}, 11")
        A(f"s_add_u32 s{s_t2}, s{s_t2}, {WS_PQ}")
        A(f"v_add_u32 v8, s{s_t2}, v14")
        A(f"v_add_u32 v9, 4096, v8")
        A(f"v_add_u32 v10, 32768, v8")
        A(f"v_add_u32 v11, 32768, v9")

        A(f"s_lshl_b32 s{s_t2}, s31, 15")
        A(f"s_lshl_b32 s{s_t1}, s{s_rg}, 13")
        A(f"s_add_u32 s{s_t2}, s{s_t2}, s{s_t1}")
        A(f"s_add_u32 s{s_t2}, s{s_t2}, {WS_KV}")
        A(f"v_add_u32 v2, s{s_t2}, v14")
        A(f"v_add_u32 v3, 4096, v2")
        A(f"v_xor_b32 v4, 64, v2")
        A(f"v_xor_b32 v7, 64, v3")

        def loads8(base, vs, soff):
            for hh in range(4):
                for st in range(2):
                    r = base + 8 * hh + 4 * st
                    A(f"buffer_load_dwordx4 v[{r}:{r + 3}], v{vs[hh]}, s[4:7], {soff} offen offset:{(hh & 1) * 2048 + st * 1024} sc1")

        def check8(base, younger):
            for hh in range(4):
                A(f"s_waitcnt vmcnt({younger + 6 - 2 * hh})")
                xor8(E + 2 * hh, base + 8 * hh)
                A(f"v_mov_b32 v{E + 2 * hh + 1}, v{E + 2 * hh}")
            for hh in range(4):
                A(f"v_permlane32_swap_b32 v{E + 2 * hh}, v{E + 2 * hh + 1}")
            for hh in range(4):
                A(f"v_bitop3_b32 v{E + 2 * hh}, v{E + 2 * hh}, v{E + 2 * hh + 1}, s33 bitop3:0x96")
            A(f"v_or3_b32 v{E}, v{E}, v{E + 2}, v{E + 4}")
            A(f"v_or_b32 v{E}, v{E}, v{E + 6}")
            A(f"v_cmp_ne_u32 vcc, 0, v{E}")

        def finish8(name, base, vs, younger, delta=G_DELTA):
            check8(base, younger)
            A(f"s_cbranch_vccz L_{name}_d")
            A("s_mov_b32 s90, 0")
            A("s_mov_b32 s58, 0")
            A.label(f"L_{name}")
            self.poll_next(90, 58, delta, f"L_{name}_t")
            loads8(base, vs, "s58")
            check8(base, 0)
            A(f"s_cbranch_vccnz L_{name}")
            A.label(f"L_{name}_t")
            A("s_waitcnt vmcnt(0)")
            A.label(f"L_{name}_d")
            for hh in range(4):
                A(f"v_cndmask_b32 v{base + 8 * hh + 6}, v{base + 8 * hh + 6}, 0, s[98:99]")
        loads8(PQ, (8, 8, 9, 9), "0")
        loads8(PQ1, (10, 10, 11, 11), "0")
        finish8("b_pq", PQ, (8, 8, 9, 9), 8, 0 if o.get("pqs") else G_DELTA)
        finish8("b_pq1", PQ1, (10, 10, 11, 11), 0, 0 if o.get("pqs") else G_DELTA)
        self.stamp(8)
        A(f"v_mov_b32 v5, {L_EX + 28672 + 32}")
        A("s_mov_b32 s91, 0")
        A.label("L_kf")
        A(f"ds_read_b128 v[{E}:{E + 3}], v5")
        A("s_add_u32 s91, s91, 1")
        A("s_cmp_gt_u32 s91, 0x100000")
        A("s_cbranch_scc1 L_kf_d")
        A("s_waitcnt lgkmcnt(0)")
        for i in range(4):
            A(f"v_xor_b32 v{E + i}, s33, v{E + i}")
        A(f"v_or3_b32 v{E}, v{E}, v{E + 1}, v{E + 2}")
        A(f"v_or_b32 v{E}, v{E}, v{E + 3}")
        A(f"v_cmp_ne_u32 vcc, 0, v{E}")
        A("s_cbranch_vccz L_kf_d")
        A("s_sleep 2")
        A("s_branch L_kf")
        A.label("L_kf_d")
        A("s_waitcnt lgkmcnt(0)")
        loads8(KV, (2, 4, 3, 7), "0")
        finish8("b_kv", KV, (2, 4, 3, 7), 0)
        self.stamp(9)
        NE, NO = 192, 208
        OP = 224
        A(f"s_mov_b32 s{s_t1}, {f32(1e-6)}")
        L_OX = SLOT
        A(f"s_mul_i32 s{s_t2}, s{s_rg}, 7168")
        A(f"s_add_u32 s{s_t2}, s{s_t2}, {L_OX}")
        A(f"v_add_u32 v5, s{s_t2}, v14")
        def M(u):
            rh, pp = u >> 1, u & 1
            NE = (192, 16)[u & 1]
            for (acc, hh) in ((NE, 2 * pp), (NE + 16, 2 * pp + 1)):
                a, b = KV + 8 * hh, (PQ, PQ1)[rh] + 8 * hh
                A(f"v_mfma_f32_32x32x16_bf16 v[{acc}:{acc + 15}], v[{a}:{a + 3}], v[{b}:{b + 3}], 0")
                A(f"v_mfma_f32_32x32x16_bf16 v[{acc}:{acc + 15}], v[{a + 4}:{a + 7}], v[{b + 4}:{b + 7}], v[{acc}:{acc + 15}]")

        def V(u):
            rh, pp = u >> 1, u & 1
            NE = (192, 16)[u & 1]
            NO = NE + 16
            OPr = (224, 96)[rh]
            A(f"v_cndmask_b32 v10, v{NO + 12}, v{NE + 12}, s[98:99]")
            A(f"v_add_f32 v10, s{s_t1}, v10")
            A("v_rcp_f32 v10, v10")
            for j in range(4):
                A(f"v_cndmask_b32 v{NE + 12 + j}, v{NE + 12 + j}, v{NO + 12 + j}, s[98:99]")
            A("v_mov_b32 v8, v10")
            A("v_permlane32_swap_b32 v10, v8")
            A("v_cndmask_b32 v6, v8, v10, s[98:99]")
            for i in range(12):
                A(f"v_mul_f32 v{NE + i}, v8, v{NE + i}")
            for i in range(12, 16):
                A(f"v_mul_f32 v{NE + i}, v6, v{NE + i}")
            for i in range(12):
                A(f"v_mul_f32 v{NO + i}, v10, v{NO + i}")
            for i in range(8):
                A(f"v_cvt_pk_bf16_f32 v{OPr + 14 * pp + i}, v{NE + 2 * i}, v{NE + 2 * i + 1}")
            for i in range(6):
                A(f"v_cvt_pk_bf16_f32 v{OPr + 14 * pp + 8 + i}, v{NO + 2 * i}, v{NO + 2 * i + 1}")
            lo, hi = (0, 3) if pp == 0 else (3, 7)
            for i in range(lo, hi):
                A(f"ds_write_b128 v5, v[{OPr + 4 * i}:{OPr + 4 * i + 3}] offset:{rh * 28672 + i * 1024}")

        def Vpk(u):
            rh, pp = u >> 1, u & 1
            NE = (192, 16)[u & 1]
            NO = NE + 16
            OPr = (224, 96)[rh]
            A(f"v_cndmask_b32 v10, v{NO + 12}, v{NE + 12}, s[98:99]")
            A(f"v_add_f32 v10, s{s_t1}, v10")
            A("v_rcp_f32 v10, v10")
            for j in range(4):
                A(f"v_cndmask_b32 v{NE + 12 + j}, v{NE + 12 + j}, v{NO + 12 + j}, s[98:99]")
            A("v_mov_b32 v8, v10")
            A("v_permlane32_swap_b32 v10, v8")
            A("v_cndmask_b32 v6, v8, v10, s[98:99]")
            for i in range(6):
                A(f"v_pk_mul_f32 v[{NE + 2 * i}:{NE + 2 * i + 1}], v[{NE + 2 * i}:{NE + 2 * i + 1}], v[8:9] op_sel_hi:[1,0]")
            for i in range(6, 8):
                A(f"v_pk_mul_f32 v[{NE + 2 * i}:{NE + 2 * i + 1}], v[{NE + 2 * i}:{NE + 2 * i + 1}], v[6:7] op_sel_hi:[1,0]")
            for i in range(6):
                A(f"v_pk_mul_f32 v[{NO + 2 * i}:{NO + 2 * i + 1}], v[{NO + 2 * i}:{NO + 2 * i + 1}], v[10:11] op_sel_hi:[1,0]")
            for i in range(8):
                A(f"v_cvt_pk_bf16_f32 v{OPr + 14 * pp + i}, v{NE + 2 * i}, v{NE + 2 * i + 1}")
            for i in range(6):
                A(f"v_cvt_pk_bf16_f32 v{OPr + 14 * pp + 8 + i}, v{NO + 2 * i}, v{NO + 2 * i + 1}")
            lo, hi = (0, 3) if pp == 0 else (3, 7)
            for i in range(lo, hi):
                A(f"ds_write_b128 v5, v[{OPr + 4 * i}:{OPr + 4 * i + 3}] offset:{rh * 28672 + i * 1024}")
        L_OF = L_EX + 28672
        A(f"s_lshl_b32 s{s_t2}, s{s_rg}, 2")
        A(f"s_add_u32 s{s_t2}, s{s_t2}, {L_OF}")
        A(f"v_mov_b32 v2, s{s_t2}")
        A("v_mov_b32 v3, s33")
        M(0)
        for u in range(4):
            if u + 1 < 4:
                M(u + 1)
            (V if o.get("nopk") else Vpk)(u)
            if u & 1:
                A(f"ds_write_b32 v2, v3 offset:{16 * (u >> 1)}")
        A("s_waitcnt lgkmcnt(0)")
        self.stamp(10)
        if o.get("wb3", 1):
            A("s_lshl_b32 s90, s3, 3")
            A("s_or_b32 s90, s90, s30")
            A(f"s_cmp_eq_u32 s90, 4")
            A("s_cbranch_scc0 L_b_fin")
            A("buffer_wbl2 sc1")
        A("s_branch L_b_fin")
        A.label("L_b_lo")
        A(f"s_setprio {o.get('plo', 1)}")
        WIN = o.get("win", 4)
        WA = o.get("wa", 11)

        def chk(c):
            r = XF + 8 * c
            for i in range(4):
                A(f"v_bitop3_b32 v{WC + c}, v{WC + c}, v{r + 2 * i}, v{r + 2 * i + 1} bitop3:0x96")
            A(f"v_xor_b32 v{WC + c}, s33, v{WC + c}")

        def stream(u0, u1):
            for u in range(u0, u1 + WIN):
                if u < u1:
                    wop_load(2 * u)
                    wop_load(2 * u + 1)
                c = u - WIN
                if c >= u0:
                    A(f"s_waitcnt vmcnt({3 * (min(u, u1 - 1) - c)})")
                    chk(c)
        stream(0, WA)
        A("s_setprio 3")
        self.census_eval(252, 47, s_t2)
        self.stamp(5)
        R0 = 128
        S0 = 160
        A(f"v_lshrrev_b32 v{E}, 5, v{VL}")
        A(f"v_lshlrev_b32 v{E}, 11, v{E}")
        A(f"v_and_b32 v{E + 1}, 31, v{VL}")
        A(f"v_lshl_add_u32 v{E}, v{E + 1}, 4, v{E}")
        A(f"s_lshl_b32 s{s_t2}, s3, 15")
        A(f"s_lshl_b32 s{s_t1}, s{s_rg}, 9")
        A(f"s_add_u32 s{s_t2}, s{s_t2}, s{s_t1}")
        A(f"v_and_b32 v15, 1, v{VL}")
        A(f"v_lshlrev_b32 v15, 10, v15")
        A(f"v_bfe_u32 v{E + 1}, v{VL}, 1, 1")
        A(f"v_lshl_add_u32 v15, v{E + 1}, 9, v15")
        A(f"v_bfe_u32 v{E + 1}, v{VL}, 2, 3")
        A(f"v_lshl_add_u32 v15, v{E + 1}, 4, v15")
        A(f"v_lshrrev_b32 v{E + 1}, 5, v{VL}")
        A(f"v_lshl_add_u32 v15, v{E + 1}, 3, v15")
        A(f"s_lshl_b32 s58, s31, 15")
        A(f"s_lshl_b32 s{s_t1}, s3, 11")
        A(f"s_add_u32 s58, s58, s{s_t1}")
        A(f"s_lshl_b32 s{s_t1}, s{s_rg}, 7")
        A(f"s_add_u32 s58, s58, s{s_t1}")
        A(f"s_add_u32 s58, s58, {WS_KV}")
        A(f"v_mov_b32 v{E + 12}, 0x00003f80")
        A(f"v_mov_b32 v{E + 13}, 0x3f800000")
        A(f"v_and_b32 v{E + 1}, 0x23, v{VL}")
        A(f"v_cmp_eq_u32 s[44:45], 0x23, v{E + 1}" if False else f"v_cmp_eq_u32 vcc, 0x23, v{E + 1}")
        A("s_mov_b64 s[44:45], vcc")
        A("s_mov_b32 s91, 0")
        A.label("L_b_rpoll")
        for i in range(8):
            A(f"s_add_u32 s{s_t1}, s{s_t2}, {4096 * i}")
            A(f"buffer_load_dwordx4 v[{R0 + 4 * i}:{R0 + 4 * i + 3}], v{E}, s[4:7], s{s_t1} offen sc1")
        A("s_add_u32 s91, s91, 1")
        A("s_cmp_gt_u32 s91, 0x4000")
        A("s_cbranch_scc1 L_b_rdone")
        for k in range(8):
            A(f"s_waitcnt vmcnt({7 - k})")
            A(f"v_bitop3_b32 v{E + 2 + k}, v{R0 + 4 * k}, v{R0 + 4 * k + 1}, v{R0 + 4 * k + 2} bitop3:0x96")
            A(f"v_xor_b32 v{E + 2 + k}, v{E + 2 + k}, v{R0 + 4 * k + 3}")
            for i in range(4):
                c0 = "0" if k == 0 else f"v{S0 + 2 * i}"
                c1 = "0" if k == 0 else f"v{S0 + 2 * i + 1}"
                A(f"v_dot2_f32_bf16 v{S0 + 2 * i}, v{R0 + 4 * k + i}, v{E + 12}, {c0}")
                A(f"v_dot2_f32_bf16 v{S0 + 2 * i + 1}, v{R0 + 4 * k + i}, v{E + 13}, {c1}")
        for k in range(8):
            A(f"v_xor_b32_dpp v{E + 2 + k}, v{E + 2 + k}, v{E + 2 + k} quad_perm:[1,0,3,2] row_mask:0xf bank_mask:0xf")
        for k in range(8):
            A(f"v_xor_b32_dpp v{E + 2 + k}, v{E + 2 + k}, v{E + 2 + k} quad_perm:[2,3,0,1] row_mask:0xf bank_mask:0xf")
        for k in range(8):
            A(f"v_xor_b32 v{E + 2 + k}, s33, v{E + 2 + k}")
        A(f"v_or3_b32 v{E + 2}, v{E + 2}, v{E + 3}, v{E + 4}")
        A(f"v_or3_b32 v{E + 5}, v{E + 5}, v{E + 6}, v{E + 7}")
        A(f"v_or3_b32 v{E + 2}, v{E + 2}, v{E + 8}, v{E + 9}")
        A(f"v_or_b32 v{E + 2}, v{E + 2}, v{E + 5}")
        A(f"v_cmp_ne_u32 vcc, 0, v{E + 2}")
        A("s_cbranch_vccnz L_b_rpoll")
        A.label("L_b_rdone")
        A("s_waitcnt vmcnt(0)")
        self.stamp(6)
        for i in range(4):
            A(f"v_permlane32_swap_b32 v{S0 + i}, v{S0 + 4 + i}")
        for i in range(2):
            A(f"v_pk_add_f32 v[{S0 + 2 * i}:{S0 + 2 * i + 1}], v[{S0 + 2 * i}:{S0 + 2 * i + 1}], v[{S0 + 4 + 2 * i}:{S0 + 5 + 2 * i}]")
        A(f"v_cvt_pk_bf16_f32 v{S0 + 8}, v{S0}, v{S0 + 1}")
        A(f"v_cvt_pk_bf16_f32 v{S0 + 9}, v{S0 + 2}, v{S0 + 3}")
        A(f"v_cndmask_b32 v{S0 + 8}, v{S0 + 8}, 0, s[44:45]")
        A(f"v_cndmask_b32 v{S0 + 9}, v{S0 + 9}, 0, s[44:45]")
        A(f"v_xor_b32 v{S0 + 2}, v{S0 + 8}, v{S0 + 9}")
        A(f"v_xor_b32_dpp v{S0 + 2}, v{S0 + 2}, v{S0 + 2} quad_perm:[1,0,3,2] row_mask:0xf bank_mask:0xf")
        A(f"v_xor_b32_dpp v{S0 + 2}, v{S0 + 2}, v{S0 + 2} quad_perm:[2,3,0,1] row_mask:0xf bank_mask:0xf")
        A(f"v_mov_b32 v{S0 + 3}, v{S0 + 2}")
        A(f"v_permlane32_swap_b32 v{S0 + 2}, v{S0 + 3}")
        A(f"v_bitop3_b32 v{S0 + 2}, v{S0 + 2}, v{S0 + 3}, s33 bitop3:0x96")
        A(f"v_cndmask_b32 v{S0 + 8}, v{S0 + 8}, v{S0 + 2}, s[44:45]")
        A(f"buffer_store_dwordx2 v[{S0 + 8}:{S0 + 9}], v15, s[4:7], s58 offen")
        A("s_cmp_eq_u32 s47, 1")
        A("s_cbranch_scc1 L_b_nored")
        A(f"s_add_u32 s58, s58, {KV_G}")
        A(f"buffer_store_dwordx2 v[{S0 + 8}:{S0 + 9}], v15, s[4:7], s58 offen sc1")
        A.label("L_b_nored")
        A("s_waitcnt vmcnt(0)")
        A(f"s_lshl_b32 s{s_t2}, s{s_rg}, 2")
        A(f"s_add_u32 s{s_t2}, s{s_t2}, {L_EX + 28672 + 32}")
        A(f"v_mov_b32 v2, s{s_t2}")
        A("v_mov_b32 v3, s33")
        A("ds_write_b32 v2, v3")
        A("s_setprio 0")
        self.stamp(7)
        A("s_cmp_eq_u32 s89, 0")
        A("s_cbranch_scc0 L_b_fin")
        A("s_mov_b32 s90, 0")
        stream(WA, 14)
        A("s_branch L_b_wochk")
        A.label("L_b_wopoll")
        A("s_add_u32 s90, s90, 1")
        A("s_cmp_gt_u32 s90, 0x1000")
        A("s_cbranch_scc1 L_b_wod")
        stream(0, 14)
        A.label("L_b_wochk")
        A(f"v_or_b32 v2, v{WC}, v{WC + 1}")
        for u in range(1, 7):
            A(f"v_or3_b32 v2, v2, v{WC + 2 * u}, v{WC + 2 * u + 1}")
        A("v_cmp_ne_u32 vcc, 0, v2")
        A("s_cbranch_vccnz L_b_wopoll")
        A.label("L_b_wod")
        A("s_waitcnt vmcnt(0)")
        if o.get("wb2", 0):
            A("s_lshl_b32 s90, s3, 3")
            A("s_or_b32 s90, s90, s30")
            A(f"s_cmp_eq_u32 s90, 27")
            A("s_cbranch_scc0 L_b_nwb")
            A("buffer_wbl2 sc1")
            A.label("L_b_nwb")
        self.stamp(8)
        A(f"v_add_u32 v5, {L_OX}, v14")
        A(f"s_mul_i32 s{s_t2}, s30, 5120")
        A(f"s_add_u32 s{s_t2}, s{s_t2}, {L_EX}")
        A(f"v_and_b32 v6, 31, v{VL}")
        A(f"v_mul_u32_u24 v6, 80, v6")
        A(f"v_lshrrev_b32 v7, 5, v{VL}")
        A(f"v_lshl_add_u32 v6, v7, 3, v6")
        A(f"v_add_u32 v6, s{s_t2}, v6")
        A(f"v_lshrrev_b32 v7, 2, v{VL}")
        A(f"v_mul_u32_u24 v8, 80, v7")
        A(f"v_and_b32 v9, 3, v{VL}")
        A(f"v_lshl_add_u32 v8, v9, 4, v8")
        A(f"v_add_u32 v8, s{s_t2}, v8")
        A(f"v_mul_u32_u24 v7, 1792, v7")
        A(f"v_lshl_add_u32 v7, v9, 4, v7")
        A(f"s_mul_i32 s{s_t2}, s{s_rb2}, {32 * 1792}")
        A(f"s_lshl_b32 s{s_t1}, s{s_q4}, 2")
        A(f"s_add_u32 s{s_t1}, s{s_t1}, s30")
        A(f"s_lshl_b32 s{s_t0}, s{s_t1}, 6")
        A(f"s_add_u32 s{s_t2}, s{s_t2}, s{s_t0}")
        A(f"s_add_u32 s{s_t2}, s{s_t2}, 896")
        A(f"s_cmp_eq_u32 s89, 0")
        A(f"s_cselect_b32 s{s_t2}, s{s_t2}, 0x7f000000")
        OB = 128
        AO = 192
        NB = 8
        EB = 160

        def epi(rh):
            out = []
            for i in range(8):
                out.append(f"v_cvt_pk_bf16_f32 v{OP + i}, v{AO + 16 * rh + 2 * i}, v{AO + 16 * rh + 2 * i + 1}")
            out.append(f"ds_write2_b64 v6, v[{OP}:{OP + 1}], v[{OP + 2}:{OP + 3}] offset0:0 offset1:2")
            out.append(f"ds_write2_b64 v6, v[{OP + 4}:{OP + 5}], v[{OP + 6}:{OP + 7}] offset0:4 offset1:6")
            for q in range(2):
                out.append(f"ds_read_b128 v[{EB + 4 * q}:{EB + 4 * q + 3}], v8 offset:{q * 16 * 80}")
            return out

        def epi_store():
            for q in range(2):
                ob = {0: "", 1: " sc1", 2: " nt", 3: " sc0 sc1"}[o.get("ob", 1)]
                A(f"buffer_store_dwordx4 v[{EB + 4 * q}:{EB + 4 * q + 3}], v7, s[8:11], s{s_t2} offen{ob}")
                A(f"s_add_u32 s{s_t2}, s{s_t2}, {16 * 1792}")
        A(f"v_mov_b32 v2, {L_OF}")
        for rh in range(2):
            A("s_mov_b32 s91, 0")
            A.label(f"L_of{rh}")
            A(f"ds_read_b128 v[{EB + 8}:{EB + 11}], v2 offset:{16 * rh}")
            A("s_add_u32 s91, s91, 1")
            A("s_cmp_gt_u32 s91, 0x100000")
            A(f"s_cbranch_scc1 L_of{rh}_d")
            A("s_waitcnt lgkmcnt(0)")
            for i in range(4):
                A(f"v_xor_b32 v{EB + 8 + i}, s33, v{EB + 8 + i}")
            A(f"v_or3_b32 v{EB + 8}, v{EB + 8}, v{EB + 9}, v{EB + 10}")
            A(f"v_or_b32 v{EB + 8}, v{EB + 8}, v{EB + 11}")
            A(f"v_cmp_ne_u32 vcc, 0, v{EB + 8}")
            A(f"s_cbranch_vccz L_of{rh}_d")
            A("s_sleep 1")
            A(f"s_branch L_of{rh}")
            A.label(f"L_of{rh}_d")
            A("s_waitcnt lgkmcnt(0)")
            if rh == 0:
                self.stamp(10)
            for n in range(NB - 1):
                A(f"ds_read_b128 v[{OB + 4 * n}:{OB + 4 * n + 3}], v5 offset:{rh * 28672 + n * 1024}")
            extra = 0
            for ks in range(28):
                n = ks + NB - 1
                if n < 28:
                    r = OB + 4 * (n % NB)
                    A(f"ds_read_b128 v[{r}:{r + 3}], v5 offset:{rh * 28672 + n * 1024}")
                    A(f"s_waitcnt lgkmcnt({NB - 1})")
                else:
                    A(f"s_waitcnt lgkmcnt({27 - ks})")
                r = OB + 4 * (ks % NB)
                a = XF + 4 * ks
                acc = AO + 16 * rh
                c = "0" if ks == 0 else f"v[{acc}:{acc + 15}]"
                A(f"v_mfma_f32_32x32x16_bf16 v[{acc}:{acc + 15}], v[{a}:{a + 3}], v[{r}:{r + 3}], {c}")
                if rh == 1 and ks == 3:
                    for e_ in epi(0):
                        A(e_)
                if rh == 1 and ks == 14:
                    epi_store()
        for e_ in epi(1):
            A(e_)
        A("s_waitcnt lgkmcnt(0)")
        epi_store()
        A.label("L_b_fin")
        self.stamp(11)
        self.dump_stamps(12)
        A("s_endpgm")

    def teamA(self):
        A = self.A
        o = self.o
        VL = 1
        A.label("L_teamA")
        self.inB = False
        s_a, s_pair, s_nh, s_scr, s_d = 36, 37, 38, 39, 40
        s_t0, s_t1, s_t2 = 41, 42, 43
        WS = "s[20:23]"
        FP = 144
        (aYD, aYC, aSW, aFT, aGW, aGR, aOUT, aUD, aUC, aUW, aTW, aVA, aVB, aYS, aYR, aPD, aPC, aSD, aSC, aUT, aKW, aPR, aZT,
         aSR, aWT) = range(224, 249)
        self.stamp(0)
        self.srd(100 - 4, 24, 2048 * 1792)
        A("s_mov_b64 s[12:13], s[20:21]")
        self.srd(20, 28, 0x10000000)
        A(f"v_lshlrev_b32 v2, 4, v{VL}")
        A(f"v_and_b32 v4, 3, v{VL}")
        A(f"v_lshrrev_b32 v5, 4, v{VL}")
        A(f"v_bfe_u32 v6, v{VL}, 2, 2")
        A(f"v_and_b32 v3, 7, v{VL}")
        A(f"v_lshrrev_b32 v12, 3, v{VL}")
        A(f"v_and_b32 v13, 15, v{VL}")
        A(f"v_and_b32 v14, 1, v{VL}")
        A(f"s_lshl_b32 s{s_t1}, s31, 7")
        A(f"v_mul_u32_u24 v{aOUT}, 1792, v12")
        A(f"v_lshl_add_u32 v{aOUT}, v3, 4, v{aOUT}")
        A(f"s_mul_i32 s{s_t0}, s59, {16 * 1792}")
        A(f"s_add_u32 s{s_t0}, s{s_t0}, s{s_t1}")
        A(f"v_add_u32 v{aOUT}, s{s_t0}, v{aOUT}")
        A(f"v_add_u32 v{aSW}, s{s_scr}, v2")
        A(f"v_bfe_u32 v15, v{VL}, 1, 3")
        B64 = o.get("b64", 1)
        if B64:
            A(f"v_mul_u32_u24 v{aSR}, 544, v13")
            A(f"v_lshl_add_u32 v{aSR}, v5, 4, v{aSR}")
            A(f"v_lshlrev_b32 v{aWT}, 3, v{VL}")
            A(f"v_add_u32 v{aWT}, s{s_scr}, v{aWT}")
        else:
            A(f"v_mul_u32_u24 v{aSR}, {SCR_P2}, v15")
            A(f"v_lshl_add_u32 v{aSR}, v14, 3, v{aSR}")
            A(f"v_lshl_add_u32 v{aSR}, v5, 5, v{aSR}")
        A(f"v_add_u32 v{aSR}, s{s_scr}, v{aSR}")
        A(f"v_lshlrev_b32 v{aUT}, 7, v6")
        A(f"v_lshl_add_u32 v{aUT}, v5, 5, v{aUT}")
        A(f"v_lshl_add_u32 v{aUT}, v4, 3, v{aUT}")
        A(f"v_add_u32 v{aUT}, s101, v{aUT}")
        A(f"v_lshrrev_b32 v18, 2, v{VL}")
        A(f"v_mul_u32_u24 v{aSD}, {32 * 640}, v18")
        A(f"s_lshl_b32 s{s_t0}, s31, 9")
        A(f"s_add_u32 s{s_t0}, s{s_t0}, s32")
        A(f"s_mul_i32 s{s_t0}, s{s_t0}, 640")
        A(f"s_add_u32 s{s_t0}, s{s_t0}, {WS_UT}")
        A(f"s_lshl_b32 s{s_t1}, s{s_a}, 5")
        A(f"s_add_u32 s{s_t1}, s{s_t1}, s{s_t0}")
        A(f"v_lshl_add_u32 v{aSC}, v4, 3, v{aSD}")
        A(f"v_add_u32 v{aSC}, s{s_t1}, v{aSC}")
        A(f"s_lshl_b32 s{s_t1}, s{s_a}, 7")
        A(f"s_add_u32 s{s_t1}, s{s_t1}, s{s_t0}")
        A(f"v_lshl_add_u32 v{aSD}, v4, 4, v{aSD}")
        A(f"v_add_u32 v{aSD}, s{s_t1}, v{aSD}")
        A(f"s_lshl_b32 s{s_t0}, s31, 4")
        A(f"s_lshr_b32 s{s_t1}, s32, 1")
        A(f"s_add_u32 s{s_t0}, s{s_t0}, s{s_t1}")
        A(f"s_lshl_b32 s{s_t0}, s{s_t0}, 2")
        A(f"s_add_u32 s{s_t0}, s{s_t0}, s{s_a}")
        A(f"s_mul_i32 s{s_t0}, s{s_t0}, {8 * 640}")
        A(f"s_add_u32 s88, s{s_t0}, {WS_UT}")
        A(f"v_mul_u32_u24 v{aUD}, 640, v12")
        A(f"v_add_u32 v{aUD}, s88, v{aUD}")
        A(f"s_and_b32 s{s_t1}, s32, 1")
        A(f"s_lshl_b32 s{s_t1}, s{s_t1}, 1")
        A(f"v_add_u32 v19, s{s_t1}, v14")
        A(f"v_bfe_u32 v20, v{VL}, 1, 2")
        A(f"v_lshl_add_u32 v21, v20, 2, v19")
        A(f"v_lshl_add_u32 v{aUC}, v21, 3, v{aUD}")
        A(f"v_lshl_add_u32 v21, v20, 3, v19")
        A(f"v_lshl_add_u32 v{aUD}, v21, 4, v{aUD}")
        A(f"v_mul_u32_u24 v{aUW}, {2 * U_PITCH}, v14")
        A(f"v_lshrrev_b32 v21, 1, v{VL}")
        A(f"v_lshl_add_u32 v{aUW}, v21, 5, v{aUW}")
        A(f"s_lshl_b32 s{s_t0}, s{s_a}, 10")
        A(f"s_add_u32 s{s_t1}, s{s_t0}, {L_U + 448}")
        A(f"s_add_u32 s{s_t1}, s{s_t1}, s87")
        A(f"v_add_u32 v{aUW}, s{s_t1}, v{aUW}")
        A(f"s_add_u32 s{s_t0}, s{s_t0}, s100")
        A(f"v_lshlrev_b32 v{aYS}, 6, v15")
        A(f"v_lshl_add_u32 v{aYS}, v14, 3, v{aYS}")
        A(f"v_lshl_add_u32 v{aYS}, v5, 4, v{aYS}")
        A(f"v_add_u32 v{aYS}, s{s_t0}, v{aYS}")
        A(f"v_add_u32 v{aYR}, s{s_t0}, v2")
        A(f"v_mul_u32_u24 v{aTW}, {T_PITCH}, v13")
        A(f"v_lshl_add_u32 v{aTW}, v5, 3, v{aTW}")
        A(f"s_lshl_b32 s{s_t0}, s{s_pair}, 11")
        A(f"s_mul_i32 s{s_t1}, s{s_nh}, {16 * T_PITCH}")
        A(f"s_add_u32 s{s_t0}, s{s_t0}, s{s_t1}")
        A(f"s_add_u32 s{s_t0}, s{s_t0}, s100")
        A(f"v_add_u32 v{aTW}, s{s_t0}, v{aTW}")
        A(f"s_xor_b32 s{s_t0}, s{s_a}, 1")
        A(f"s_mul_i32 s{s_t0}, s{s_t0}, {SCR_SZ}")
        A(f"s_add_u32 s{s_t0}, s{s_t0}, s87")
        A(f"v_add_u32 v{aPR}, s{s_t0}, v2")
        A(f"s_mul_i32 s{s_t0}, s{s_pair}, {2 * SCR_SZ}")
        A(f"s_add_u32 s{s_t0}, s{s_t0}, s87")
        A(f"s_lshl_b32 s{s_t1}, s{s_nh}, 11")
        A(f"s_add_u32 s{s_t1}, s{s_t1}, s{s_t0}")
        A(f"v_add_u32 v{aKW}, s{s_t1}, v2")
        A(f"v_mul_u32_u24 v{aZT}, {KC_PITCH}, v18")
        A(f"v_lshl_add_u32 v{aZT}, v4, 4, v{aZT}")
        A(f"v_add_u32 v{aZT}, s{s_t0}, v{aZT}")
        A(f"v_mul_u32_u24 v{aVA}, {KC_PITCH}, v4")
        A(f"v_sub_u32 v21, v5, v6")
        A(f"v_lshl_add_u32 v{aVA}, v21, 4, v{aVA}")
        A(f"s_add_u32 s{s_t0}, s{s_t0}, {2 * (2040 - 1792)}")
        A(f"v_add_u32 v{aVA}, s{s_t0}, v{aVA}")
        A(f"v_xor_b32 v21, 1, v14")
        A(f"v_mul_u32_u24 v{aVB}, {U_PITCH}, v21")
        A(f"v_lshl_add_u32 v{aVB}, v5, 4, v{aVB}")
        A(f"v_lshl_add_u32 v{aVB}, v15, 6, v{aVB}")
        A(f"s_mul_i32 s{s_t0}, s{s_pair}, {2 * U_PITCH}")
        A(f"s_add_u32 s{s_t0}, s{s_t0}, {L_U + 448}")
        A(f"s_add_u32 s{s_t0}, s{s_t0}, s87")
        A(f"v_add_u32 v{aVB}, s{s_t0}, v{aVB}")
        A(f"v_bfe_u32 v21, v{VL}, 1, 4")
        A(f"v_mul_u32_u24 v{aPD}, 160, v21")
        A(f"s_lshl_b32 s{s_t0}, s31, 4")
        A(f"s_lshr_b32 s{s_t1}, s32, 1")
        A(f"s_add_u32 s{s_t1}, s{s_t1}, s{s_t0}")
        A(f"s_mul_i32 s{s_t1}, s{s_t1}, 20480")
        A(f"s_add_u32 s{s_t1}, s{s_t1}, {WS_UT}")
        A(f"v_add_u32 v{aPD}, s{s_t1}, v{aPD}")
        A(f"s_and_b32 s{s_t1}, s32, 1")
        A(f"s_lshl_b32 s{s_t1}, s{s_t1}, 1")
        A(f"s_add_u32 s{s_t1}, s{s_t1}, s{s_pair}")
        A(f"s_lshl_b32 s{s_t1}, s{s_t1}, 1")
        A(f"v_add_u32 v21, s{s_t1}, v14")
        A(f"v_lshl_add_u32 v{aPC}, v21, 2, v{aPD}")
        A(f"v_lshl_add_u32 v{aPD}, v21, 4, v{aPD}")
        A(f"s_mul_i32 s{s_t0}, s{s_t0}, 20480")
        A(f"s_mul_i32 s{s_t1}, s59, 160")
        A(f"s_add_u32 s{s_t0}, s{s_t0}, s{s_t1}")
        A(f"s_add_u32 s{s_t0}, s{s_t0}, {WS_UT}")
        A(f"v_mul_u32_u24 v{aYD}, 20480, v12")
        A(f"v_add_u32 v{aYD}, s{s_t0}, v{aYD}")
        A(f"v_lshl_add_u32 v{aYC}, v3, 2, v{aYD}")
        A(f"v_lshl_add_u32 v{aYD}, v3, 4, v{aYD}")
        A(f"v_lshl_add_u32 v{aFT}, v5, 3, v6")
        A(f"v_lshlrev_b32 v{aFT}, 5, v{aFT}")
        A(f"v_lshl_add_u32 v{aFT}, v4, 3, v{aFT}")
        A(f"v_add_u32 v{aFT}, s{s_scr}, v{aFT}")
        A(f"s_add_u32 s{s_t0}, s{s_scr}, 2048")
        A(f"v_mul_u32_u24 v{aGW}, {FP}, v13")
        A(f"v_lshl_add_u32 v{aGW}, v5, 4, v{aGW}")
        A(f"v_add_u32 v{aGW}, s{s_t0}, v{aGW}")
        A(f"v_mul_u32_u24 v{aGR}, {FP}, v12")
        A(f"v_lshl_add_u32 v{aGR}, v3, 4, v{aGR}")
        A(f"v_add_u32 v{aGR}, s{s_t0}, v{aGR}")
        A(f"s_mul_i32 s{s_t0}, s{s_a}, {U_PITCH}")
        A(f"s_add_u32 s{s_t0}, s{s_t0}, {L_U}")
        A(f"s_add_u32 s{s_t0}, s{s_t0}, s87")
        A(f"v_add_u32 v21, s{s_t0}, v2")
        for i in range(4):
            A(f"v_mov_b32 v{24 + i}, 0")
        A("s_mov_b32 exec_lo, 0x0fffffff")
        A("s_mov_b32 exec_hi, 0")
        A("ds_write_b128 v21, v[24:27]")
        A(f"s_lshl_b32 s{s_t0}, s{s_nh}, 28")
        A(f"s_or_b32 exec_lo, s{s_t0}, 1")
        A("ds_write_b64 v21, v[24:25]")
        A("s_mov_b64 exec, -1")
        A("v_mov_b32 v7, 0")
        TB = 84

        def publish_u(soff, flag, UO):
            for t in range(2):
                for k in range(4):
                    A(f"ds_read_b64_tr_b16 v[{UO + 10 * t + 2 * k}:{UO + 10 * t + 2 * k + 1}], v{aUT} offset:{2048 * t + k * 512}")
            for t in range(2):
                U_ = UO + 10 * t
                A(f"s_waitcnt lgkmcnt({4 - 4 * t})")
                A(f"buffer_store_dwordx4 v[{U_}:{U_ + 3}], v{aSD}, {WS}, {soff} offen offset:{640 * t}{flag}")
                A(f"buffer_store_dwordx4 v[{U_ + 4}:{U_ + 7}], v{aSD}, {WS}, {soff} offen offset:{640 * t + 64}{flag}")
                A(f"v_bitop3_b32 v{U_ + 8}, v{U_}, v{U_ + 1}, s33 bitop3:0x96")
                for i in range(3):
                    A(f"v_bitop3_b32 v{U_ + 8}, v{U_ + 8}, v{U_ + 2 + 2 * i}, v{U_ + 3 + 2 * i} bitop3:0x96")
                A(f"v_mov_b32 v{U_ + 9}, v{U_ + 8}")
                A(f"buffer_store_dwordx2 v[{U_ + 8}:{U_ + 9}], v{aSC}, {WS}, {soff} offen offset:{640 * t + 512}{flag}")
        def u_issue(lab):
            A("s_cmp_lt_u32 s30, 4")
            A(f"s_cbranch_scc0 {lab}")
            for k in range(4):
                A(f"s_add_u32 m0, s101, {1024 * k}")
                A(f"s_add_u32 s{s_t0}, s44, {(k & 1) * 8 * 896 + (k >> 1) * 64 * 896}")
                A(f"buffer_load_dwordx4 v62, s[52:55], s{s_t0} offen lds")
            if not o.get("tlate"):
                A(f"v_lshlrev_b32 v22, 7, v{VL}")
                A("s_mov_b32 exec_hi, 0xff")
                A(f"buffer_load_dword v250, v22, {WS}, s88 offen sc1")
                A("s_mov_b32 exec_hi, -1")
            A.label(lab)
        A("s_cmp_lt_u32 s30, 4")
        A("s_cbranch_scc1 L_a_w0")
        A(f"s_waitcnt vmcnt({5 if o.get('pfirst', 1) else 3})")
        A.label("L_a_w0")
        A("s_waitcnt lgkmcnt(0)")
        A("s_mov_b32 s44, s56")
        A("s_cmp_lt_u32 s30, 4")
        A("s_cbranch_scc0 L_a_nl2")
        A(f"s_waitcnt vmcnt({4 if o.get('upos', 2) == 0 else 0})")
        self.signal(F_NONCE, 21, 22, "0")
        A.label("L_a_nl2")
        A("s_waitcnt lgkmcnt(0)")
        self.stamp(1)
        AL, TH = 26, 28
        CC = 30
        W1, W8, W256 = 34, 38, 42
        tq = 46
        A(f"s_lshl_b32 s{s_t0}, s{s_pair}, 4")
        A(f"s_lshr_b32 s50, s50, s{s_t0}")
        A(f"s_lshl_b32 s50, s50, 16")
        A(f"s_lshr_b32 s51, s51, s{s_t0}")
        A(f"s_lshl_b32 s51, s51, 16")
        A(f"s_mov_b32 s{s_t1}, {f32(LOG2E)}")
        A(f"s_mov_b32 s{s_t2}, 0xffff0000")
        A(f"v_mov_b32 v{tq}, s50")
        A(f"v_mul_f32 v{tq}, s{s_t1}, v{tq}")
        A(f"v_lshlrev_b32 v{tq + 2}, 16, v8")
        A(f"v_and_b32 v{tq + 3}, s{s_t2}, v8")
        A(f"v_exp_f32 v{tq}, v{tq}")
        A(f"v_mul_f32 v{tq + 2}, s{s_t1}, v{tq + 2}")
        A(f"v_mul_f32 v{tq + 3}, s{s_t1}, v{tq + 3}")
        A(f"v_exp_f32 v{tq + 2}, v{tq + 2}")
        A(f"v_exp_f32 v{tq + 3}, v{tq + 3}")
        A(f"v_cvt_pk_bf16_f32 v{tq}, v{tq}, v{tq}")
        A(f"v_and_b32 v{tq}, s{s_t2}, v{tq}")
        A(f"v_cvt_pk_bf16_f32 v{tq + 2}, v{tq + 2}, v{tq + 3}")
        A(f"v_lshlrev_b32 v{TH}, 16, v9")
        A(f"v_and_b32 v{TH + 1}, s{s_t2}, v9")
        A(f"v_lshlrev_b32 v{AL}, 16, v{tq + 2}")
        A(f"v_and_b32 v{AL + 1}, s{s_t2}, v{tq + 2}")
        A(f"v_pk_mul_f32 v[{TH}:{TH + 1}], v[{TH}:{TH + 1}], v[{tq}:{tq + 1}] op_sel_hi:[1,0]")
        A(f"v_pk_mul_f32 v[{AL}:{AL + 1}], v[{AL}:{AL + 1}], v[{tq}:{tq + 1}] op_sel_hi:[1,0]")
        for i in range(2):
            A(f"v_mul_f32 v{TH + i}, {f32(INV2PI)}, v{TH + i}")
            A(f"v_mul_f32 v{AL + i}, {f32(-LOG2E)}, v{AL + i}")
        A(f"v_add_f32 v{tq}, v{tq}, v{tq}")
        A(f"v_lshlrev_b32 v{CC}, 16, v10")
        A(f"v_and_b32 v{CC + 2}, s{s_t2}, v10")
        A(f"v_lshlrev_b32 v{CC + 1}, 16, v11")
        A(f"v_and_b32 v{CC + 3}, s{s_t2}, v11")
        for i in range(2):
            A(f"v_pk_mul_f32 v[{CC + 2 * i}:{CC + 2 * i + 1}], v[{CC + 2 * i}:{CC + 2 * i + 1}], v[{tq}:{tq + 1}] op_sel_hi:[1,0] neg_hi:[1,0]")

        def wdirect(dst, m, conj):
            for i in range(2):
                a, t = tq + 4 * i, tq + 4 * i + 1
                if m == 1:
                    A(f"v_exp_f32 v{a}, v{AL + i}")
                    A(f"v_fract_f32 v{t}, v{TH + i}")
                else:
                    A(f"v_mul_f32 v{a}, {f32(float(m))}, v{AL + i}")
                    A(f"v_mul_f32 v{t}, {f32(float(m))}, v{TH + i}")
                    A(f"v_exp_f32 v{a}, v{a}")
                    A(f"v_fract_f32 v{t}, v{t}")
            for i in range(2):
                a, t = tq + 4 * i, tq + 4 * i + 1
                A(f"v_cos_f32 v{tq + 4 * i + 2}, v{t}")
                A(f"v_sin_f32 v{tq + 4 * i + 3}, v{t}")
            for i in range(2):
                a = tq + 4 * i
                neg = " neg_hi:[1,0]" if conj else ""
                A(f"v_pk_mul_f32 v[{dst + 2 * i}:{dst + 2 * i + 1}], v[{a + 2}:{a + 3}], v[{a}:{a + 1}] op_sel_hi:[1,0]{neg}")
        wdirect(W1, 1, True)
        wdirect(W256, 256, True)
        wdirect(W8, 8, False)
        if o.get("upos", 2) == 1:
            u_issue("L_a_nu")
        self.stamp(2)
        self.scalar_cmul = o.get("scm", 0) >= 2
        XS = 64
        PKB = 8
        tm = 16
        st = {"pend": None}

        def pack(psrc, prow):
            b = PKB + 4 * ((prow >> 1) & 1) + 2 * (prow & 1)
            A(f"v_cvt_pk_bf16_f32 v{b}, v{psrc}, v{psrc + 1}")
            A(f"v_cvt_pk_bf16_f32 v{b + 1}, v{psrc + 2}, v{psrc + 3}")

        def wr(prow):
            if B64:
                b = PKB + 4 * ((prow >> 1) & 1) + 2 * (prow & 1)
                return f"ds_write_b64 v{aWT}, v[{b}:{b + 1}] offset:{prow * 544}"
            q = PKB + 4 * ((prow >> 1) & 1)
            return f"ds_write_b128 v{aSW}, v[{q}:{q + 3}] offset:{(prow >> 1) * SCR_P2}"

        def flush_val():
            if st["pend"] is None:
                return
            src, row = st["pend"]
            st["pend"] = None
            pack(src, row)
            A(wr(row))

        def emit_val(src, row):
            if st["pend"] is not None:
                psrc, prow = st["pend"]
                pack(psrc, prow)
                if (prow & 1) or B64:
                    A(wr(prow))
            st["pend"] = (src, row)

        def cm2(dst, src, w):
            f0 = self.cmul(dst, src, w, tm)
            f1 = self.cmul(dst + 2, src + 2, w + 2, tm + 2)
            w_ = None
            if st["pend"] is not None:
                psrc, prow = st["pend"]
                assert psrc != dst
                st["pend"] = None
                pack(psrc, prow)
                if (prow & 1) or B64:
                    w_ = wr(prow)
            A(f0)
            A(f1)
            if w_:
                A(w_)

        def frags(dst):
            flush_val()
            for k in range(8):
                if B64:
                    A(f"ds_read_b128 v[{dst + 4 * k}:{dst + 4 * k + 3}], v{aSR} offset:{64 * k}")
                else:
                    A(f"ds_read2_b64 v[{dst + 4 * k}:{dst + 4 * k + 3}], v{aSR} offset0:{16 * k} offset1:{16 * k + 2}")
        AF0, AF1, BF = 128, 160, 192
        ACC = 112
        slot = lambda k: XS + 4 * k
        emit_val(CC, 0)
        prev = CC
        for c in range(1, 8):
            cm2(slot(c), prev, W1)
            emit_val(slot(c), c)
            prev = slot(c)
        src_of = {8: CC, 9: slot(2), 10: slot(4), 11: slot(6)}
        loc = {}
        free = [slot(1), slot(3), slot(5), slot(0), slot(8), slot(9), slot(10), slot(7)]
        for c in range(8, 12):
            loc[c] = free.pop(0)
            cm2(loc[c], src_of[c], W256)
            emit_val(loc[c], c)
        for c, s_ in ((12, 8), (13, 10), (14, 12), (15, 13)):
            loc[c] = free.pop(0)
            cm2(loc[c], loc[s_], W256)
            emit_val(loc[c], c)
        frags(AF0)
        if o.get("upos", 2) == 2:
            u_issue("L_a_nu")
        prev = loc[14]
        pp = [slot(2), slot(4)]
        for c in range(16, 21):
            dst = pp[c & 1]
            cm2(dst, prev, W256)
            emit_val(dst, c - 16)
            prev = dst
        frags(AF1)
        tbr = [TBR[i // 4] + i % 4 for i in range(12)]
        A(f"s_mul_i32 s{s_t0}, s{s_nh}, 3072")
        A(f"s_add_u32 s{s_t0}, s{s_t0}, {L_TAB}")
        A(f"v_add_u32 v20, s{s_t0}, v2")
        self.spec_wait(F_NONCE, 4, 21, 22, [f"ds_read_b128 v[{TBR[i]}:{TBR[i] + 3}], v20 offset:{i * 1024}" for i in range(3)], "0")
        A("s_load_dword s33, s[26:27], 0")
        if o.get("upos", 2) == 3:
            u_issue("L_a_nu")
        A(f"v_mov_b32 v{PKB}, 0x3f80")
        A(f"v_mov_b32 v{PKB + 1}, 0x3f80")
        if B64:
            A(wr(0))
        emit_val(W8, 1)
        prev = W8
        pp = [slot(0), slot(1)]

        def mf(ct):
            for k in range(8):
                for rt, af in ((0, AF0), (1, AF1)):
                    acc = ACC + 8 * rt + 4 * ct
                    c = "0" if k == 0 else f"v[{acc}:{acc + 3}]"
                    yield f"v_mfma_f32_16x16x32_bf16 v[{acc}:{acc + 3}], v[{af + 4 * k}:{af + 4 * k + 3}], v[{BF + 4 * k}:{BF + 4 * k + 3}], {c}"
        for j in range(2, 16):
            dst = pp[j & 1]
            cm2(dst, prev, W8)
            emit_val(dst, j)
            prev = dst
        frags(BF)
        A("s_waitcnt lgkmcnt(0)")
        A(f"s_lshl_b32 s{s_t0}, s86, 5")
        A(f"s_lshl_b32 s{s_t1}, s{s_pair}, 11")
        A(f"s_add_u32 s{s_t0}, s{s_t0}, s{s_t1}")
        A(f"s_mul_i32 s{s_t0}, s{s_t0}, 0x10001")
        for i in range(12):
            A(f"v_add_u32 v{tbr[i]}, s{s_t0}, v{tbr[i]}")
        A("s_cmp_lg_u32 s33, 0")
        A("s_cbranch_scc1 L_a_gn")
        self.get_nonce(249, 7, first_loaded=False, vm=0)
        A.label("L_a_gn")
        A(f"s_cmp_eq_u32 s30, 0")
        A("s_cbranch_scc0 L_a_nl")
        self.census_write(WS, 21, 22, s_t0)
        A.label("L_a_nl")
        if o.get("upos", 2) == 4:
            u_issue("L_a_nu")
        if o.get("upos", 2) == 0 or o.get("pearly", 1):
            A("s_cmp_lt_u32 s30, 4")
            A("s_cbranch_scc0 L_a_np0")
            A(f"v_lshlrev_b32 v22, 7, v{VL}")
            A("s_waitcnt vmcnt(0)")
            publish_u("0", "", 72)
            if o.get("upos", 2) == 0 or o.get("tlate"):
                A("s_mov_b32 exec_hi, 0xff")
                A(f"buffer_load_dword v250, v22, {WS}, s88 offen sc1")
                A("s_mov_b32 exec_hi, -1")
            A.label("L_a_np0")
        if o.get("atouch", 1) and o.get("tb", 1) == 0:
            A("s_cmp_lt_u32 s30, 4")
            A("s_cbranch_scc1 L_a_ntb")
            self.touch_b(21, 90, WS)
            A.label("L_a_ntb")
        self.stamp(3)
        self.scalar_cmul = o.get("scm", 0) >= 1
        if o.get("pe3", 1):
            A("s_setprio 2")
        g0 = mf(0)
        for j in range(16, 32):
            dst = pp[j & 1]
            cm2(dst, prev, W8)
            emit_val(dst, j - 16)
            prev = dst
            A(next(g0))
        frags(BF)
        A(f"s_cmp_eq_u32 s{s_nh}, 0")
        A("s_cselect_b64 s[56:57], -1, 0")
        A(f"v_cmp_eq_u32 vcc, 0, v{VL}")
        A("s_and_b64 vcc, vcc, s[56:57]")
        A("v_mov_b32 v16, s51")
        A("v_cndmask_b32 v16, 0, v16, vcc")
        A(f"v_cmp_eq_u32 s[48:49], 16, v{VL}")
        A(f"s_lshl_b32 s58, s{s_pair}, 2")
        A(f"s_add_u32 s58, s58, s86")
        for k in range(8):
            A(f"s_waitcnt lgkmcnt({7 - k})")
            g = list(mf(1))
            A(g[2 * k])
            A(g[2 * k + 1])
        UD = 20
        self.stamp(4)
        if o.get("pexp", 3):
            A(f"s_setprio {o.get('pexp', 3)}")
        KP, GV = 64, 72
        for rt in range(2):
            for r in range(4):
                a0, a1 = ACC + 8 * rt + r, ACC + 8 * rt + 4 + r
                A(f"v_cndmask_b32 v{GV + 4 * rt + r}, v{a0}, v{a1}, s[56:57]")
        A(f"ds_write_b128 v{aSW}, v[{GV}:{GV + 3}]")
        A(f"ds_write_b128 v{aSW}, v[{GV + 4}:{GV + 7}] offset:1024")
        self.signal(F_AX0, 10, 11, "s58")
        for rt in range(2):
            for r in range(4):
                a0, a1 = ACC + 8 * rt + r, ACC + 8 * rt + 4 + r
                A(f"v_cndmask_b32 v{KP + 4 * rt + r}, v{a1}, v{a0}, s[56:57]")
        A(f"v_add_f32 v{KP}, v{KP}, v16")
        if o.get("upos", 2) != 0 and not o.get("pearly", 1):
            A("s_cmp_lt_u32 s30, 4")
            A("s_cbranch_scc0 L_a_np")
            A("s_waitcnt vmcnt(0)")
            publish_u("0", "", 192)
            A.label("L_a_np")
        GA = 128
        for i in range(12):
            A(f"v_and_b32 v{GA + 2 * i}, 0xffff, v{tbr[i]}")
            A(f"v_lshrrev_b32 v{GA + 2 * i + 1}, 16, v{tbr[i]}")
        self.spec_wait(F_AX0, 2, 10, 11, [f"ds_read_b128 v[{GV}:{GV + 3}], v{aPR}", f"ds_read_b128 v[{GV + 4}:{GV + 7}], v{aPR} offset:1024"], "s58")
        A("s_waitcnt lgkmcnt(0)")
        for i in range(4):
            A(f"v_pk_add_f32 v[{KP + 2 * i}:{KP + 2 * i + 1}], v[{KP + 2 * i}:{KP + 2 * i + 1}], v[{GV + 2 * i}:{GV + 2 * i + 1}]")
        A(f"v_cndmask_b32 v{KP + 7}, v{KP + 7}, 0, s[48:49]")
        for i in range(4):
            A(f"v_cvt_pk_bf16_f32 v{GV + i}, v{KP + 2 * i}, v{KP + 2 * i + 1}")
        A(f"ds_write_b64 v{aTW}, v[{GV}:{GV + 1}]")
        A("s_mov_b32 exec_hi, 0")
        A(f"ds_write_b64 v{aTW}, v[{GV + 2}:{GV + 3}] offset:32")
        A("s_mov_b32 exec_hi, -1")
        self.signal(F_AT0, 10, 11, "s58")
        P = 160
        A(f"buffer_load_dwordx4 v[{UD}:{UD + 3}], v{aUD}, {WS}, 0 offen sc1")
        A(f"buffer_load_dwordx4 v[{UD + 4}:{UD + 7}], v{aUD}, {WS}, 0 offen offset:64 sc1")
        A(f"buffer_load_dword v{UD + 8}, v{aUC}, {WS}, 0 offen offset:512 sc1")
        self.census_load(WS, 29, 5, s_t0, 1)
        for i in range(4):
            A(f"v_mov_b32 v{12 + i}, 0")
        self.spec_wait(F_AT0, 2, 10, 11, [f"ds_read_u16 v{P + m}, v{GA + m}" for m in range(11)], "s58")
        for m in range(4):
            A(f"ds_read_u16 v{P + 12 + m}, v{GA + 12 + m}")
        A("s_waitcnt lgkmcnt(8)")
        for m in range(4, 11):
            A(f"ds_read_u16 v{P + 12 + m}, v{GA + 12 + m}")
        QQ = 88
        for r in range(2):
            p = P + 12 * r
            A(f"s_waitcnt lgkmcnt({11 if r == 0 else 4})")
            for sc in range(4):
                q = QQ + 16 * r + 4 * sc
                for k in range(4):
                    m = 3 - sc + 2 * k
                    A(f"v_lshl_or_b32 v{q + k}, v{p + m + 1}, 16, v{p + m}")
                if r == 1:
                    A(f"ds_write_b128 v{aKW}, v[{q}:{q + 3}] offset:{r * 1024 + sc * KC_PITCH}")
            if r == 0:
                for sc in range(4):
                    q = QQ + 16 * r + 4 * sc
                    A(f"ds_write_b128 v{aKW}, v[{q}:{q + 3}] offset:{r * 1024 + sc * KC_PITCH}")
        A("s_mov_b64 exec, 0xffff")
        A(f"ds_write_b128 v{aZT}, v[12:15] offset:4096")
        A("s_mov_b64 exec, -1")
        A("s_waitcnt vmcnt(0)")
        self.census_eval(29, 95, s_t0)
        A("s_cmp_ge_u32 s30, 4")
        A("s_cselect_b32 s95, 1, s95")
        A("s_cmp_eq_u32 s95, 1")
        A("s_cbranch_scc1 L_a_nug")
        A(f"s_mov_b32 s94, {G_DELTA}")
        publish_u("s94", " sc1", 192)
        A.label("L_a_nug")
        A("s_mov_b32 s92, 0")
        A("s_mov_b32 s94, 0")
        A("s_branch L_a_uchk")
        A.label("L_a_upoll")
        self.poll_next(92, 94, G_DELTA, "L_a_udone")
        A(f"buffer_load_dwordx4 v[{UD}:{UD + 3}], v{aUD}, {WS}, s94 offen sc1")
        A(f"buffer_load_dwordx4 v[{UD + 4}:{UD + 7}], v{aUD}, {WS}, s94 offen offset:64 sc1")
        A(f"buffer_load_dword v{UD + 8}, v{aUC}, {WS}, s94 offen offset:512 sc1")
        A("s_waitcnt vmcnt(0)")
        A.label("L_a_uchk")
        A(f"v_bitop3_b32 v10, v{UD}, v{UD + 1}, v{UD + 2} bitop3:0x96")
        A(f"v_bitop3_b32 v10, v10, v{UD + 3}, v{UD + 4} bitop3:0x96")
        A(f"v_bitop3_b32 v10, v10, v{UD + 5}, v{UD + 6} bitop3:0x96")
        A(f"v_bitop3_b32 v10, v10, v{UD + 7}, v{UD + 8} bitop3:0x96")
        A("v_cmp_ne_u32 vcc, s33, v10")
        A("s_cbranch_vccnz L_a_upoll")
        A.label("L_a_udone")
        A("s_waitcnt vmcnt(0)")
        self.stamp(5)
        if o.get("atouch", 1) and o.get("tb", 1) == 1:
            A("s_cmp_lt_u32 s30, 4")
            A("s_cbranch_scc0 L_a_ntb")
            self.touch_b(10, 90, WS)
            A.label("L_a_ntb")
        self.census_load(WS, 251, 5, s_t0, 1)
        A(f"ds_write_b128 v{aUW}, v[{UD}:{UD + 3}]")
        A(f"ds_write_b128 v{aUW}, v[{UD + 4}:{UD + 7}] offset:16")
        A(f"ds_write2_b64 v{aUW}, v[{UD}:{UD + 1}], v[{UD + 2}:{UD + 3}] offset0:0 offset1:0" if False else f"v_add_u32 v10, {U_PITCH + 8}, v{aUW}")
        A(f"ds_write2_b64 v10, v[{UD}:{UD + 1}], v[{UD + 2}:{UD + 3}] offset0:0 offset1:1")
        A(f"ds_write2_b64 v10, v[{UD + 4}:{UD + 5}], v[{UD + 6}:{UD + 7}] offset0:2 offset1:3")
        self.signal(F_AK0, 10, 11)
        CA = 64
        for i in range(32 if o.get("psplit") else 20):
            A(f"v_mov_b32 v{CA + i}, 0")
        if o.get("psplit"):
            A(f"s_lshl_b32 s{s_t0}, s{s_nh}, 8")
            A(f"v_subrev_u32 v{aVA}, s{s_t0}, v{aVA}")
            A(f"v_subrev_u32 v{aVB}, s{s_t0}, v{aVB}")
        self.stamp(6)
        if o.get("pexp", 2):
            A(f"s_setprio {o.get('pcv', 1)}")
        regs = dict(aYS=aYS, aYR=aYR, aPD=aPD, aPC=aPC)
        A(f"s_cmp_eq_u32 s{s_nh}, 0")
        A("s_cbranch_scc0 L_a_conv1")
        if o.get("psplit"):
            self.conv("c0", list(range(8)), aVA, aVB, CA, regs, keep=[0, 1, 2, 3])
        else:
            self.conv("c0", [7, 6, 2], aVA, aVB, CA, regs)
        A("s_branch L_a_convd")
        A.label("L_a_conv1")
        if o.get("psplit"):
            self.conv("c1", list(range(8)), aVA, aVB, CA, regs, keep=[4, 5, 6, 7])
        else:
            self.conv("c1", [5, 4, 3, 1, 0], aVA, aVB, CA, regs)
        A.label("L_a_convd")
        self.stamp(8)
        A("s_setprio 0")
        self.signal(F_ACV, 10, 11)
        if o.get("wb1", 0):
            A("s_lshl_b32 s90, s3, 3")
            A("s_or_b32 s90, s90, s30")
            A(f"s_cmp_eq_u32 s90, {128 + o.get('wbw', 0)}")
            A("s_cbranch_scc0 L_a_nwb")
            A("buffer_wbl2 sc1")
            A.label("L_a_nwb")
        A(f"s_mov_b32 s{s_t0}, {8 * 1792}")
        self.wait_flag(F_ACV, 4, 10, 11)
        A("s_mov_b32 s92, 0")
        A("s_mov_b32 s94, 0")
        A.label("L_a_ypoll")
        self.poll_next(92, 94, YT_G, "L_a_ydone")
        A(f"s_add_u32 s95, s94, {8 * 20480}")
        A(f"buffer_load_dwordx4 v[20:23], v{aYD}, {WS}, s94 offen sc1")
        A(f"buffer_load_dwordx4 v[24:27], v{aYD}, {WS}, s95 offen sc1")
        A(f"buffer_load_dword v28, v{aYC}, {WS}, s94 offen offset:128 sc1")
        A(f"buffer_load_dword v30, v{aYC}, {WS}, s95 offen offset:128 sc1")
        A("s_waitcnt vmcnt(0)")
        A("v_bitop3_b32 v10, v20, v21, v22 bitop3:0x96")
        A("v_bitop3_b32 v11, v24, v25, v26 bitop3:0x96")
        A("v_bitop3_b32 v10, v10, v23, v28 bitop3:0x96")
        A("v_bitop3_b32 v11, v11, v27, v30 bitop3:0x96")
        A("v_xor_b32 v10, s89, v10")
        A("v_xor_b32 v11, s89, v11")
        A("v_or_b32 v10, v10, v11")
        A("v_cmp_ne_u32 vcc, 0, v10")
        A("s_cbranch_vccnz L_a_ypoll")
        A.label("L_a_ydone")
        A("s_waitcnt vmcnt(0)")
        self.stamp(9)
        A(f"ds_write_b128 v{aSW}, v[20:23]")
        A(f"ds_write_b128 v{aSW}, v[24:27] offset:1024")
        A(f"ds_read_b64_tr_b16 v[20:21], v{aFT}")
        A(f"ds_read_b64_tr_b16 v[22:23], v{aFT} offset:128")
        A(f"ds_read_b64_tr_b16 v[24:25], v{aFT} offset:1024")
        A(f"ds_read_b64_tr_b16 v[26:27], v{aFT} offset:1152")
        A("s_waitcnt lgkmcnt(2)")
        A(f"ds_write_b128 v{aGW}, v[20:23]")
        A("s_waitcnt lgkmcnt(1)")
        A(f"ds_write_b128 v{aGW}, v[24:27] offset:64")
        A(f"ds_read_b128 v[28:31], v{aGR}")
        A(f"ds_read_b128 v[32:35], v{aGR} offset:{8 * FP}")
        A("s_waitcnt lgkmcnt(1)")
        of = {0: "", 1: " sc1", 2: " nt", 3: " sc0 sc1"}[o.get("oa", 1)]
        A(f"buffer_store_dwordx4 v[28:31], v{aOUT}, s[96:99], 0 offen{of}")
        A("s_waitcnt lgkmcnt(0)")
        A(f"buffer_store_dwordx4 v[32:35], v{aOUT}, s[96:99], s{s_t0} offen{of}")
        if o.get("wb4", 0):
            A("s_lshl_b32 s90, s3, 3")
            A("s_or_b32 s90, s90, s30")
            A(f"s_cmp_eq_u32 s90, 128")
            A("s_cbranch_scc0 L_a_nw4")
            A("buffer_wbl2 sc1")
            A.label("L_a_nw4")
        self.stamp(10)
        self.dump_stamps(11)
        A("s_endpgm")

    def prefetch_late(self, va, vb, vc, sa, wp, xp, c0=4, with_q=True):
        A = self.A
        do_kv = self.o.get("pfe" if c0 == 0 else "pfl", 1)
        with_q = with_q and self.o.get("pfq", 1)
        if not do_kv and not with_q:
            return
        A(f"s_and_b32 s{sa}, s3, 15")
        A(f"s_and_b32 s{sa + 2}, s30, 3")
        A(f"s_add_u32 s{sa + 2}, s{sa + 2}, {c0}")
        A(f"s_min_u32 s{sa + 2}, s{sa + 2}, 6")
        A(f"v_mul_u32_u24 v{vc}, 37, v1")
        A(f"v_lshrrev_b32 v{vb}, 9, v{vc}")
        A(f"v_mad_u32_u24 v{va}, v{vb}, 7, v1")
        A(f"v_lshlrev_b32 v{va}, 7, v{va}")
        A(f"s_lshl_b32 s{sa + 1}, s{sa + 2}, 4")
        A(f"s_add_u32 s{sa + 1}, s{sa + 1}, s{sa}")
        A(f"s_mul_i32 s{sa + 1}, s{sa + 1}, {4 * 2688}")
        A(f"v_add_u32 v{va}, s{sa + 1}, v{va}")
        A("s_mov_b32 exec_hi, 0xffffff")
        if do_kv:
            A(f"global_load_dword v254, v{va}, {wp} offset:896")
        A("s_mov_b64 exec, -1")
        A(f"v_mul_u32_u24 v{vb}, 896, v1")
        A(f"s_lshl_b32 s{sa + 1}, s31, 4")
        A(f"s_add_u32 s{sa + 1}, s{sa + 1}, s{sa}")
        A(f"s_mul_i32 s{sa + 1}, s{sa + 1}, {16 * 896}")
        A(f"s_lshl_b32 s{sa + 2}, s{sa + 2}, 7")
        A(f"s_add_u32 s{sa + 1}, s{sa + 1}, s{sa + 2}")
        A(f"v_add_u32 v{vb}, s{sa + 1}, v{vb}")
        A("s_mov_b64 exec, 0xffff")
        if do_kv:
            A(f"global_load_dword v254, v{vb}, {xp}")
        A("s_mov_b64 exec, -1")
        if not with_q:
            return
        A(f"v_lshrrev_b32 v{vb}, 8, v{vc}")
        A(f"v_mad_u32_u24 v{va}, v{vb}, 14, v1")
        A(f"v_lshlrev_b32 v{va}, 7, v{va}")
        A(f"s_lshl_b32 s{sa}, s{sa}, 2")
        A(f"s_and_b32 s{sa + 2}, s30, 3")
        A(f"s_add_u32 s{sa}, s{sa}, s{sa + 2}")
        A(f"s_mul_i32 s{sa}, s{sa}, {7 * 2688}")
        A(f"v_add_u32 v{va}, s{sa}, v{va}")
        A("s_mov_b32 exec_hi, 0x1ffff")
        A(f"global_load_dword v254, v{va}, {wp}")
        A("s_mov_b64 exec, -1")

    def touch_b(self, va, sa, srd):
        A = self.A
        A(f"s_and_b32 s{sa}, s3, 15")
        A(f"s_lshl_b32 s{sa}, s{sa}, 2")
        A(f"s_and_b32 s{sa + 1}, s30, 3")
        A(f"s_add_u32 s{sa}, s{sa}, s{sa + 1}")
        A(f"v_lshlrev_b32 v{va}, 7, v1")
        A(f"s_lshl_b32 s{sa + 1}, s31, 6")
        A(f"s_add_u32 s{sa + 1}, s{sa + 1}, s{sa}")
        A(f"s_lshl_b32 s{sa + 2}, s{sa + 1}, 12")
        A(f"s_add_u32 s{sa + 2}, s{sa + 2}, {WS_PQ}")
        A("s_mov_b32 exec_hi, 0")
        if not self.o.get("pqs"):
            A(f"buffer_load_dword v254, v{va}, {srd}, s{sa + 2} offen sc1")
        A(f"s_lshl_b32 s{sa + 2}, s{sa + 1}, 9")
        A(f"s_add_u32 s{sa + 2}, s{sa + 2}, {WS_KV}")
        A("s_mov_b32 exec_lo, 15")
        A(f"buffer_load_dword v254, v{va}, {srd}, s{sa + 2} offen sc1")
        A(f"s_mul_i32 s{sa}, s{sa}, {56 * 128}")
        A(f"s_add_u32 s{sa}, s{sa}, {WS_WOP}")
        A("s_mov_b32 exec_lo, -1")
        A("s_mov_b32 exec_hi, 0xffffff")
        A(f"buffer_load_dword v254, v{va}, {srd}, s{sa} offen sc1")
        A("s_mov_b64 exec, -1")

    def packer(self):
        A = self.A
        VL = 1
        WS = "s[20:23]"
        A.label("L_pack")
        A("s_cmp_ge_u32 s30, 4")
        A("s_cbranch_scc0 L_p_p1")
        self.prefetch_late(12, 13, 14, 45, "s[20:21]", "s[18:19]")
        A.label("L_p_p1")
        self.srd(12, 22, 448 * 896)
        self.srd(20, 28, 0x10000000)
        A("s_and_b32 s45, s3, 15")
        A("s_lshl_b32 s45, s45, 3")
        A("s_add_u32 s45, s45, s30")
        A(f"v_lshlrev_b32 v2, 4, v{VL}")
        A(f"v_lshlrev_b32 v3, 2, v{VL}")
        A(f"v_and_b32 v4, 3, v{VL}")
        A(f"v_bfe_u32 v6, v{VL}, 2, 2")
        A(f"v_lshrrev_b32 v16, 5, v{VL}")
        A(f"v_bfe_u32 v17, v{VL}, 4, 1")
        A(f"v_lshl_add_u32 v20, v16, 2, v6")
        A(f"v_lshlrev_b32 v20, 6, v20")
        A(f"v_lshl_add_u32 v20, v17, 5, v20")
        A(f"v_lshl_add_u32 v20, v4, 3, v20")
        A(f"v_add_u32 v20, s101, v20")
        for rnd in range(2):
            A("s_mul_hi_u32 s58, s45, 0x12492493")
            A("s_mul_i32 s41, s58, 14")
            A("s_sub_u32 s41, s45, s41")
            A("s_lshl_b32 s41, s41, 2")
            A("s_lshl_b32 s58, s58, 6")
            A(f"s_mul_i32 s{46 + rnd}, s45, {WOP_U}")
            A(f"s_add_u32 s{46 + rnd}, s{46 + rnd}, {WS_WOP}")
            A("s_cmp_lt_u32 s45, 196")
            A("s_cselect_b32 s58, s58, 0x7f000000")
            A(f"s_cselect_b32 s{46 + rnd}, s{46 + rnd}, 0x7f000000")
            for f in range(2):
                A(f"v_add_u32 v24, s41, v16")
                if f:
                    A(f"v_add_u32 v24, 2, v24")
                A(f"v_mul_u32_u24 v25, 37, v24")
                A(f"v_lshrrev_b32 v25, 8, v25")
                A(f"v_mul_u32_u24 v26, 7, v25")
                A(f"v_sub_u32 v24, v24, v26")
                A(f"v_lshlrev_b32 v26, 2, v17")
                A(f"v_mul_u32_u24 v27, 28, v17")
                A(f"v_sub_u32 v28, 0, v26")
                A(f"v_cmp_eq_u32 vcc, 3, v24")
                A(f"v_cndmask_b32 v26, v26, v27, vcc")
                A(f"v_cmp_lt_u32 vcc, 3, v24")
                A(f"v_cndmask_b32 v26, v26, v28, vcc")
                A(f"v_lshl_add_u32 v26, v24, 3, v26")
                A(f"v_mad_u32_u24 v26, v25, 56, v26")
                A(f"v_add_u32 v26, v26, v6")
                A(f"v_mul_u32_u24 v26, 896, v26")
                A(f"v_lshl_add_u32 v26, v4, 4, v26")
                A(f"s_add_u32 m0, s101, {2048 * rnd + 1024 * f}")
                A(f"buffer_load_dwordx4 v26, s[12:15], s58 offen lds")
            A("s_add_u32 s45, s45, 128")
        A("s_waitcnt vmcnt(0)")
        self.get_nonce(24, 7, first_loaded=False, vm=0)
        for k in range(8):
            A(f"ds_read_b64_tr_b16 v[{32 + 2 * k}:{33 + 2 * k}], v20 offset:{k * 512}")
        A("s_waitcnt lgkmcnt(0)")
        for rnd in range(2):
            b = 32 + 8 * rnd
            A(f"buffer_store_dwordx4 v[{b}:{b + 3}], v2, {WS}, s{46 + rnd} offen sc1")
            A(f"buffer_store_dwordx4 v[{b + 4}:{b + 7}], v2, {WS}, s{46 + rnd} offen offset:1024 sc1")
            A(f"v_bitop3_b32 v{50 + rnd}, v{b}, v{b + 1}, s33 bitop3:0x96")
            for i in range(3):
                A(f"v_bitop3_b32 v{50 + rnd}, v{50 + rnd}, v{b + 2 + 2 * i}, v{b + 3 + 2 * i} bitop3:0x96")
            A(f"buffer_store_dword v{50 + rnd}, v3, {WS}, s{46 + rnd} offen offset:2048 sc1")
        if self.o.get("atouch", 1):
            A("s_cmp_ge_u32 s30, 4")
            A("s_cbranch_scc0 L_end")
            A("s_waitcnt vmcnt(0)")
            A("s_barrier")
            self.touch_b(12, 90, WS)
        A("s_endpgm")

    def get_nonce(self, vd, vzero, first_loaded, vm):
        A = self.A
        L, Lc, Ld = A.uid("Ln"), A.uid("Lnc"), A.uid("Lnd")
        A("s_mov_b32 s91, 0")
        if first_loaded:
            A(f"s_waitcnt vmcnt({vm})")
            A(f"s_branch {Lc}")
        A.label(L)
        A(f"global_load_dword v{vd}, v{vzero}, s[26:27] sc1")
        A("s_waitcnt vmcnt(0)")
        A.label(Lc)
        A(f"v_readfirstlane_b32 s33, v{vd}")
        A("s_add_u32 s91, s91, 1")
        A("s_cmp_gt_u32 s91, 0x4000")
        A(f"s_cbranch_scc1 {Ld}")
        A("s_cmp_eq_u32 s33, 0")
        A(f"s_cbranch_scc1 {L}")
        A.label(Ld)
        A("s_or_b32 s33, s33, 1")

    def conv(self, name, tiles, vA, vB, CA, R, keep=None):
        A = self.A
        VL = 1
        s_a, s_pair, s_nh = 36, 37, 38
        s_t0, s_t1 = 41, 42
        nmax = max(tiles) + 1
        FA, FB = 96, 160
        def loads(st):
            out = []
            for k in range(nmax):
                out.append(f"ds_read_b128 v[{FB + 32 * st + 4 * k}:{FB + 32 * st + 4 * k + 3}], v{vB} offset:{512 * k}")
                out.append(f"ds_read_b128 v[{FA + 32 * st + 4 * k}:{FA + 32 * st + 4 * k + 3}], v{vA} offset:{512 * (7 - k)}")
            return out
        def mfmas(st):
            out = []
            units = [(a, c - a, ti) for ti, c in enumerate(tiles) for a in range(c + 1)]
            units.sort(key=lambda u: (max(u[0], u[1]), u[2]))
            for a, cp, ti in units:
                acc = CA + 4 * ti
                fa = FA + 32 * st + 4 * a
                fb = FB + 32 * st + 4 * cp
                out.append(f"v_mfma_f32_16x16x32_bf16 v[{acc}:{acc + 3}], v[{fa}:{fa + 3}], v[{fb}:{fb + 3}], v[{acc}:{acc + 3}]")
            return out
        l0 = loads(0)
        self.spec_wait(F_AK0, 4, 10, 11, l0[:12])
        for l_ in l0[12:]:
            A(l_)
        A(f"v_subrev_u32 v{vA}, 64, v{vA}")
        A(f"v_subrev_u32 v{vB}, 64, v{vB}")
        A("s_mov_b32 s91, 0")
        A.label(f"L_{name}_loop")
        for st in range(2):
            ld = loads(1 - st)
            mf = mfmas(st)
            A("s_waitcnt lgkmcnt(0)")
            last = (st == 1)
            if last:
                A(f"s_cmp_eq_u32 s91, {1 if keep else 3}")
                A(f"s_cbranch_scc1 L_{name}_tail")
            for i, m_ in enumerate(mf):
                if keep:
                    if i % 2 == 0 and i // 2 < len(ld):
                        A(ld[i // 2])
                elif i < len(ld):
                    A(ld[i])
                A(m_)
            A(f"v_subrev_u32 v{vA}, 64, v{vA}")
            A(f"v_subrev_u32 v{vB}, 64, v{vB}")
        A("s_add_u32 s91, s91, 1")
        A(f"s_branch L_{name}_loop")
        A.label(f"L_{name}_tail")
        TS = 16 * 160
        own = keep if keep else list(range(len(tiles)))
        groups = [own[k:k + 2] for k in range(0, len(own), 2)]
        pre = []
        pre.append("s_xor_b32 s89, s33, 0x5a5a0000")
        pre.append("s_xor_b32 s92, s86, 128")
        pre.append(f"v_cmp_lt_u32 s[56:57], 31, v{VL}")
        pre.append(f"s_mov_b32 s94, {YT_G}")
        for gi, grp in enumerate(groups):
            D = 20 + 8 * gi
            pre.append(f"v_mov_b32 v9, {tiles[grp[0]] * TS}")
            pre.append(f"v_mov_b32 v10, {tiles[grp[-1]] * TS}")
            pre.append(f"v_cndmask_b32 v9, v9, v10, s[56:57]")
            pre.append(f"v_add_u32 v{D + 6}, v9, v{R['aPD']}")
            pre.append(f"v_add_u32 v{D + 7}, v9, v{R['aPC']}")
        for i, m_ in enumerate(mfmas(1)):
            A(m_)
            for p_ in pre[2 * i:2 * i + 2]:
                A(p_)
        self.stamp(7)
        A("s_waitcnt vmcnt(0)")
        self.census_eval(251, 93, s_t0)
        stores = []
        if keep:
            self.wait_flag(F_AK0, 4, 10, 11, "s92")
            A(f"v_add_u32 v12, s101, v2")
            A(f"v_xor_b32 v13, 4096, v12" if False else f"s_xor_b32 s{s_t0}, s30, 1")
            A(f"s_lshl_b32 s{s_t0}, s{s_t0}, 12")
            A(f"s_add_u32 s{s_t0}, s{s_t0}, {L_STG}")
            A(f"v_add_u32 v13, s{s_t0}, v2")
            give = [t for t in range(8) if t not in keep]
            for i, t in enumerate(give):
                A(f"ds_write_b128 v12, v[{CA + 4 * t}:{CA + 4 * t + 3}] offset:{1024 * i}")
            self.signal(F_AY0, 10, 11, "s58")
            self.spec_wait(F_AY0, 2, 10, 11, [f"ds_read_b128 v[{FA + 4 * i}:{FA + 4 * i + 3}], v13 offset:{1024 * i}" for i in range(4)], "s58")
            for i, t in enumerate(keep):
                A(f"s_waitcnt lgkmcnt({3 - i})")
                for h in range(2):
                    A(f"v_pk_add_f32 v[{CA + 4 * t + 2 * h}:{CA + 4 * t + 2 * h + 1}], v[{CA + 4 * t + 2 * h}:{CA + 4 * t + 2 * h + 1}], v[{FA + 4 * i + 2 * h}:{FA + 4 * i + 2 * h + 1}]")
        for gi, grp in enumerate(groups):
            for q, ti in enumerate(grp):
                acc = CA + 4 * ti
                A(f"v_cvt_pk_bf16_f32 v{44 + 2 * ti}, v{acc}, v{acc + 1}")
                A(f"v_cvt_pk_bf16_f32 v{45 + 2 * ti}, v{acc + 2}, v{acc + 3}")
                A(f"ds_write_b64 v{R['aYS']}, v[{44 + 2 * ti}:{45 + 2 * ti}] offset:{q * 512}")
            D = 20 + 8 * gi
            A(f"ds_read_b128 v[{D}:{D + 3}], v{R['aYR']}")
        if keep:
            A("s_waitcnt lgkmcnt(0)")
        else:
            self.wait_flag(F_AK0, 4, 10, 11, "s92")
        for gi, grp in enumerate(groups):
            D = 20 + 8 * gi
            if len(grp) == 1:
                A("s_mov_b32 exec_hi, 0")
            yf = " nt" if self.o.get("nty") else ""
            A(f"buffer_store_dwordx4 v[{D}:{D + 3}], v{D + 6}, s[20:23], 0 offen{yf}")
            A(f"v_bitop3_b32 v{D + 4}, v{D}, v{D + 1}, v{D + 2} bitop3:0x96")
            A(f"v_bitop3_b32 v{D + 4}, v{D + 4}, v{D + 3}, s89 bitop3:0x96")
            stores.append((D, len(grp) == 1))
            A(f"buffer_store_dword v{D + 4}, v{D + 7}, s[20:23], 0 offen offset:128{yf}")
            if len(grp) == 1:
                A("s_mov_b32 exec_hi, -1")
        A("s_cmp_eq_u32 s93, 1")
        A(f"s_cbranch_scc1 L_{name}_nog")
        for D, half in stores:
            if half:
                A("s_mov_b32 exec_hi, 0")
            A(f"buffer_store_dwordx4 v[{D}:{D + 3}], v{D + 6}, s[20:23], s94 offen sc1")
            A(f"buffer_store_dword v{D + 4}, v{D + 7}, s[20:23], s94 offen offset:128 sc1")
            if half:
                A("s_mov_b32 exec_hi, -1")
        A.label(f"L_{name}_nog")

    def build(self):
        A = self.A
        self.prologue()
        self.teamB()
        self.teamA()
        self.packer()
        A.label("L_end")
        A("s_endpgm")
        body = A.finalize(verbose=True)
        tab = gather_table().reshape(-1).view(np.uint32)
        tab = np.concatenate([tab, np.zeros(512 + 1024, np.uint32)])
        tabtxt = "\n".join(".long " + ", ".join("0x%08x" % x for x in tab[i:i + 8]) for i in range(0, len(tab), 8))
        hdr = open(os.path.join(os.path.dirname(os.path.abspath(__file__)), "header.txt")).read()
        txt = hdr + f"""; @launch grid=(256,1,1) block=(512,1,1) lds={LDS_TOTAL}
.amdgcn_target "amdgcn-amd-amdhsa--gfx950"
.text
.globl {KNAME}
.p2align 8
.type {KNAME},@function
{KNAME}:
{body}
L_code_end:
.p2align 8
.type gather_tab,@object
gather_tab:
{tabtxt}
.size gather_tab, {len(tab) * 4}
.section .rodata,"a"
.p2align 6
.amdhsa_kernel {KNAME}
  .amdhsa_next_free_vgpr 256
  .amdhsa_next_free_sgpr 102
  .amdhsa_accum_offset 256
  .amdhsa_group_segment_fixed_size 0
  .amdhsa_kernarg_size 104
  .amdhsa_user_sgpr_count 2
  .amdhsa_user_sgpr_kernarg_segment_ptr 1
  .amdhsa_system_sgpr_workgroup_id_x 1
.end_amdhsa_kernel
"""
        return txt


if __name__ == "__main__":
    import argparse
    ap = argparse.ArgumentParser()
    ap.add_argument("-o", default="concat_heads__ssm_conv_s4d__linear_attn_block__prompt.s")
    ap.add_argument("--stamps", action="store_true")
    ap.add_argument("--pf", type=int, default=6)
    ap.add_argument("--dumpA", action="store_true")
    ap.add_argument("--noA", action="store_true")
    ap.add_argument("--noB", action="store_true")
    ap.add_argument("--endstamp", action="store_true")
    ap.add_argument("--spin", type=int, default=0)
    ap.add_argument("--opt", action="append", default=[])
    a = ap.parse_args()
    g = Gen({"stamps": a.stamps, "pf_n": a.pf + (1 if a.stamps or a.dumpA else 0), "dumpA": a.dumpA, "noA": a.noA, "noB": a.noB, "endstamp": a.endstamp, "spin": a.spin})
    for kv in a.opt:
        k_, v_ = kv.split("=")
        g.o[k_] = int(v_)
    open(a.o, "w").write(g.build())
```

```python
import sys, os, struct
sys.path.insert(0, os.path.dirname(os.path.abspath(__file__)))
from asmdsl import Asm
import numpy as np

KNAME = "concat_heads__ssm_conv_s4d__linear_attn_block__prompt_kernel"

WS_PART = 0x000000
WS_KV = 0x080000
G_DELTA = 0x1000000
KV_G = G_DELTA
WS_PQ = 0x100000
WS_UT = 0x300000
WS_YT = 0x600000
YT_G = 2 * G_DELTA
T_PITCH = 56
POLL_LOCAL = 48
WS_CEN = 0x5C0000
WS_WOP = 0x540000
WOP_U = 2304
WS_DBG = 0x3000000

SCR_P2 = 1040
SCR_SZ = 8704
KC_PITCH = 4160
U_PITCH = 4576
L_FLAG = 0
L_T = 256
L_TEAM = 8448
TEAM_SZ = 53248
L_U = 34816
L_STG = L_TEAM + 2 * TEAM_SZ
L_TAB = L_STG + 4 * 4096
SLOT = 32768
L_EX = 4 * SLOT
LDS_TOTAL = 163840

F_W, F_WQ, F_RED, F_WO0, F_WO0R, F_WO1, F_OX, F_NONCE = 0, 1, 2, 3, 4, 5, 6, 7
F_AX0, F_AT0, F_AK0, F_ACV, F_AF = 8, 10, 12, 14, 15
F_WS = 16
F_AY0 = 24

TBR = (54, 58, 108)
LOG2E = 1.4426950408889634
INV2PI = 0.15915494309189535


def f32(x):
    return "0x%08x" % struct.unpack("<I", struct.pack("<f", x))[0]


ROWS = list(range(8)) + [256, 258, 260, 262, 512, 516, 768, 772, 1024, 1280, 1536, 1792, 2048]


def bf16_round_int(x):
    if x < 256:
        return x
    e = x.bit_length() - 8
    step = 1 << e
    lo = (x >> e) << e
    rem = x - lo
    if rem * 2 < step:
        return lo
    if rem * 2 > step:
        return lo + step
    return lo if ((lo >> e) & 1) == 0 else lo + step


def t_index(p):
    for c, r in enumerate(ROWS):
        if p >= r and (p - r) % 8 == 0 and (p - r) // 8 < 32:
            if p < 256 and c < 8:
                return c, (p - r) // 8
            if 256 <= p < 512 and 8 <= c < 12:
                return c, (p - r) // 8
            if 512 <= p < 1024 and 12 <= c < 16:
                return c, (p - r) // 8
            if 1024 <= p < 2048 and 16 <= c < 20:
                return c, (p - r) // 8
            if p == 2048 and c == 20:
                return c, 0
    raise ValueError(p)


def gather_table():
    tab = np.zeros((2, 3, 64, 8), np.uint16)
    for a in range(2):
        tb = L_T + 2048 * (a >> 1)
        zero_addr = tb + 23 * 2
        for r in range(2):
            rho = 2 * (a & 1) + r
            for l in range(64):
                y0 = 512 * rho + 8 * l
                for m in range(12):
                    idx = 2047 - y0 - m
                    if idx < 0:
                        ad = zero_addr
                    else:
                        c, j = t_index(bf16_round_int(idx))
                        ad = tb + j * T_PITCH + c * 2
                    k = r * 12 + m
                    tab[a, k // 8, l, k % 8] = ad
    return tab


class Gen:
    def __init__(self, opts):
        self.A = Asm()
        self.o = opts

    def signal(self, flag, vtmp_addr, vtmp_one, sbase="s86"):
        A = self.A
        A(f"v_mov_b32 v{vtmp_addr}, {sbase}")
        A(f"v_mov_b32 v{vtmp_one}, 1")
        A("s_mov_b64 exec, 1")
        A(f"ds_add_u32 v{vtmp_addr}, v{vtmp_one} offset:{4 * flag}")
        A("s_mov_b64 exec, -1")

    def wait_flag(self, flag, count, vtmp_addr, vtmp, sbase="s86", stmp=90):
        A = self.A
        L = A.uid("Lw")
        Ld = A.uid("Lwd")
        A(f"v_mov_b32 v{vtmp_addr}, {sbase}")
        A(f"s_mov_b32 s{stmp + 1}, 0")
        A.label(L)
        A(f"ds_read_b32 v{vtmp}, v{vtmp_addr} offset:{4 * flag}")
        A(f"s_add_u32 s{stmp + 1}, s{stmp + 1}, 1")
        A(f"s_cmp_gt_u32 s{stmp + 1}, 0x40000")
        A(f"s_cbranch_scc1 {Ld}")
        A("s_waitcnt lgkmcnt(0)")
        A(f"v_readfirstlane_b32 s{stmp}, v{vtmp}")
        A(f"s_cmp_ge_u32 s{stmp}, {count}")
        A(f"s_cbranch_scc1 {Ld}")
        if self.o.get("slp", 1):
            A(f"s_sleep {self.o.get('slp', 1)}")
        A(f"s_branch {L}")
        A.label(Ld)
        A("s_waitcnt lgkmcnt(0)")

    def spec_wait(self, flag, count, vtmp_addr, vtmp, reads, sbase="s86", stmp=90):
        A = self.A
        assert len(reads) <= 14
        L = A.uid("Ls")
        Ld = A.uid("Lsd")
        A(f"v_mov_b32 v{vtmp_addr}, {sbase}")
        A(f"s_mov_b32 s{stmp + 1}, 0")
        A.label(L)
        A(f"ds_read_b32 v{vtmp}, v{vtmp_addr} offset:{4 * flag}")
        for r in reads:
            A(r)
        A(f"s_add_u32 s{stmp + 1}, s{stmp + 1}, 1")
        A(f"s_cmp_gt_u32 s{stmp + 1}, 0x40000")
        A(f"s_cbranch_scc1 {Ld}")
        A(f"s_waitcnt lgkmcnt({len(reads)})")
        A(f"v_readfirstlane_b32 s{stmp}, v{vtmp}")
        A(f"s_cmp_lt_u32 s{stmp}, {count}")
        A(f"s_cbranch_scc1 {L}")
        A.label(Ld)

    def srd(self, sd, sptr, nbytes):
        A = self.A
        A(f"s_mov_b32 s{sd}, s{sptr}")
        A(f"s_and_b32 s{sd + 1}, s{sptr + 1}, 0xffff")
        A(f"s_mov_b32 s{sd + 2}, {nbytes}")
        A(f"s_mov_b32 s{sd + 3}, 0x00020000")

    def stamp(self, i, fine=False):
        if self.o.get("fine") and self.inB and not fine and i >= 3:
            return
        if fine and not self.o.get("fine"):
            return
        if self.o.get("stamps"):
            self.A(f"s_memtime s[{64 + 2 * i}:{65 + 2 * i}]")

    def dump_stamps(self, n):
        if self.o.get("endstamp"):
            A = self.A
            A("s_waitcnt vmcnt(0)")
            A("s_memrealtime s[90:91]")
            A("s_and_b32 s92, s30, 4")
            A("s_add_u32 s92, s92, 4")
            A("v_mov_b32 v2, s92")
            A("s_waitcnt lgkmcnt(0)")
            A("v_mov_b32 v3, s90")
            A("s_mov_b64 exec, 1")
            A("global_atomic_umax v2, v3, s[26:27]")
            A("s_mov_b64 exec, -1")
        if not self.o.get("stamps"):
            return
        A = self.A
        A("s_waitcnt lgkmcnt(0)")
        A("s_lshl_b32 s90, s2, 3")
        A("s_add_u32 s90, s90, s30")
        A("s_lshl_b32 s90, s90, 7")
        A(f"s_add_u32 s90, s90, {WS_DBG}")
        A("v_mov_b32 v2, s90")
        A("s_mov_b64 exec, 1")
        for i in range(n):
            A(f"s_sub_u32 s91, s{64 + 2 * i}, s62")
            A("v_mov_b32 v3, s91")
            A(f"global_store_dword v2, v3, s[28:29] offset:{4 * i}")
        A("v_mov_b32 v3, s60")
        A(f"global_store_dword v2, v3, s[28:29] offset:{4 * 15}")
        A("s_mov_b64 exec, -1")

    def census_write(self, srd, v0_, v1_, st):
        A = self.A
        A(f"s_getreg_b32 s{st}, hwreg(HW_REG_XCC_ID)")
        A(f"s_and_b32 s{st}, s{st}, 15")
        A(f"s_lshl_b32 s{st}, s{st}, 4")
        A(f"s_xor_b32 s{st}, s{st}, s33")
        A(f"v_mov_b32 v{v1_}, s{st}")
        A(f"s_lshl_b32 s{st}, s31, 5")
        A(f"s_add_u32 s{st}, s{st}, s3")
        A(f"s_lshl_b32 s{st}, s{st}, 3")
        A(f"s_add_u32 s{st}, s{st}, {WS_CEN}")
        A(f"v_mov_b32 v{v0_}, s{st}")
        A(f"v_mov_b32 v{v1_ + 1}, v{v1_}")
        A("s_mov_b64 exec, 1")
        A(f"buffer_store_dwordx2 v[{v1_}:{v1_ + 1}], v{v0_}, {srd}, 0 offen")
        A("s_mov_b64 exec, -1")

    def census_load(self, srd, vd, vt, st, half):
        A = self.A
        A(f"v_and_b32 v{vt}, 15, v1")
        A(f"v_lshlrev_b32 v{vt}, 3, v{vt}")
        A(f"s_lshl_b32 s{st}, s31, 8")
        A(f"s_add_u32 s{st}, s{st}, {WS_CEN + 128 * half}")
        A(f"buffer_load_dword v{vd}, v{vt}, {srd}, s{st} offen sc1")

    def census_eval(self, vd, sdst, st):
        A = self.A
        A(f"s_getreg_b32 s{st}, hwreg(HW_REG_XCC_ID)")
        A(f"s_and_b32 s{st}, s{st}, 15")
        A(f"s_lshl_b32 s{st}, s{st}, 4")
        A(f"s_xor_b32 s{st}, s{st}, s33")
        A(f"v_cmp_ne_u32 vcc, s{st}, v{vd}")
        A("s_cmp_eq_u64 vcc, 0")
        A(f"s_cselect_b32 s{sdst}, 1, 0")

    def poll_next(self, scnt, soff, delta, Ldone):
        A = self.A
        A(f"s_add_u32 s{scnt}, s{scnt}, 1")
        A(f"s_cmp_gt_u32 s{scnt}, 0x4000")
        A(f"s_cbranch_scc1 {Ldone}")
        A(f"s_cmp_gt_u32 s{scnt}, {POLL_LOCAL}")
        A(f"s_cselect_b32 s{scnt + 1}, {delta}, 0")
        A(f"s_xor_b32 s{soff}, s{soff}, s{scnt + 1}")
        if self.o.get("pslp", 2):
            A(f"s_sleep {self.o.get('pslp', 2)}")

    def cmul(self, d, z, w, t):
        A = self.A
        if self.scalar_cmul:
            A(f"v_mul_f32 v{t}, v{z}, v{w}")
            A(f"v_mul_f32 v{t + 1}, v{z}, v{w + 1}")
            return f"v_fma_f32 v{d}, -v{z + 1}, v{w + 1}, v{t}\nv_fma_f32 v{d + 1}, v{z + 1}, v{w}, v{t + 1}"
        A(f"v_pk_mul_f32 v[{t}:{t + 1}], v[{z}:{z + 1}], v[{w}:{w + 1}] op_sel:[0,0] op_sel_hi:[0,1]")
        return f"v_pk_fma_f32 v[{d}:{d + 1}], v[{z}:{z + 1}], v[{w}:{w + 1}], v[{t}:{t + 1}] op_sel:[1,1,0] op_sel_hi:[1,0,1] neg_lo:[0,1,0]"

    def prologue(self):
        A = self.A
        o = self.o
        VL = 1
        A("s_cmp_ge_u32 s2, 256")
        A("s_cbranch_scc1 L_end")
        if o.get("stamps"):
            A("s_memtime s[62:63]")
            A("s_memrealtime s[60:61]")
        if o.get("spin"):
            A("s_memtime s[36:37]")
            A("s_waitcnt lgkmcnt(0)")
            A.label("L_spin")
            A("s_memtime s[38:39]")
            A("s_waitcnt lgkmcnt(0)")
            A("s_sub_u32 s40, s38, s36")
            A(f"s_cmp_lt_u32 s40, {o['spin']}")
            A("s_cbranch_scc1 L_spin")
        A("s_load_dwordx16 s[4:19], s[0:1], 0")
        A("s_load_dwordx8 s[20:27], s[0:1], 64")
        A("s_load_dwordx2 s[28:29], s[0:1], 96")
        A("s_getpc_b64 s[34:35]")
        A("s_lshr_b32 s3, s2, 3")
        A("s_and_b32 s34, s34, 0xffffff00")
        A("s_and_b32 s33, s3, 3")
        A("s_lshl_b32 s33, s33, 13")
        A("v_lshlrev_b32 v2, 4, v0")
        A("v_add_u32 v2, s33, v2")
        A("global_load_dword v255, v2, s[34:35]")
        A("v_and_b32 v1, 63, v0")
        A("v_lshrrev_b32 v2, 6, v0")
        A("s_and_b32 s31, s2, 7")
        A("v_readfirstlane_b32 s30, v2")
        A("s_cmp_lt_u32 s3, 16")
        A("s_cbranch_scc1 L_teamB")
        s_a, s_pair, s_nh, s_scr, s_d = 36, 37, 38, 39, 40
        s_t0, s_t1, s_t2 = 41, 42, 43
        A(f"s_lshr_b32 s{s_t2}, s30, 2")
        A(f"s_and_b32 s32, s3, 15")
        A(f"s_lshl_b32 s32, s32, 1")
        A(f"s_add_u32 s32, s32, s{s_t2}")
        A(f"s_and_b32 s{s_a}, s30, 3")
        A(f"s_lshr_b32 s{s_pair}, s{s_a}, 1")
        A(f"s_and_b32 s{s_nh}, s{s_a}, 1")
        A(f"s_lshl_b32 s{s_d}, s31, 5")
        A(f"s_add_u32 s{s_d}, s{s_d}, s32")
        A(f"s_lshl_b32 s44, s{s_d}, 2")
        A(f"s_lshl_b32 s{s_d}, s{s_d}, 1")
        A(f"s_add_u32 s{s_d}, s{s_d}, s{s_pair}")
        A(f"s_lshl_b32 s{s_t0}, s{s_d}, 9")
        A(f"s_lshl_b32 s{s_t1}, s{s_nh}, 8")
        A(f"s_add_u32 s{s_t0}, s{s_t0}, s{s_t1}")
        A(f"v_lshlrev_b32 v5, 2, v{VL}")
        A(f"v_add_u32 v6, s{s_t0}, v5")
        A("v_mov_b32 v7, 0")
        A(f"s_lshl_b32 s86, s{s_t2}, 7")
        A(f"s_mul_i32 s87, s{s_t2}, {TEAM_SZ}")
        A(f"s_add_u32 s87, s87, {L_TEAM}")
        A(f"s_lshl_b32 s100, s{s_t2}, 12")
        A(f"s_add_u32 s100, s100, {L_T}")
        A(f"s_mul_i32 s{s_scr}, s{s_a}, {SCR_SZ}")
        A(f"s_add_u32 s{s_scr}, s{s_scr}, s87")
        A("ds_write_b32 v5, v7")
        A(f"v_lshrrev_b32 v62, 3, v{VL}")
        A(f"v_mul_u32_u24 v62, 896, v62")
        A(f"v_and_b32 v4, 7, v{VL}")
        A(f"v_lshl_add_u32 v62, v4, 4, v62")
        A(f"s_lshl_b32 s59, s32, 2")
        A(f"s_add_u32 s59, s59, s{s_a}")
        A(f"s_mul_i32 s56, s59, {16 * 896}")
        A(f"s_lshl_b32 s57, s31, 7")
        A(f"s_add_u32 s56, s56, s57")
        A(f"s_add_u32 s57, s56, {8 * 896}")
        A(f"s_lshl_b32 s101, s30, 12")
        A(f"s_add_u32 s101, s101, {L_STG}")
        A(f"s_add_u32 s46, s34, gather_tab-{KNAME}")
        A(f"s_addc_u32 s47, s35, 0")
        A(f"s_lshl_b32 s45, s{s_a}, 11")
        A(f"v_lshl_add_u32 v63, v{VL}, 4, s45")
        A("s_waitcnt lgkmcnt(0)")
        A("s_barrier")
        if o.get("pfirst", 1):
            A("s_cmp_eq_u32 s31, 7")
            A("s_cselect_b32 s90, s30, 0")
            A("s_cmp_ge_u32 s90, 4")
        else:
            A("s_cmp_ge_u32 s30, 4")
        A("s_cbranch_scc0 L_a_pf0")
        self.prefetch_late(12, 13, 14, 90, "s[20:21]", "s[18:19]", c0=0, with_q=False)
        A.label("L_a_pf0")
        A("s_cmp_eq_u32 s31, 7")
        A("s_cbranch_scc1 L_pack")
        if o.get("noA"):
            A("s_endpgm")
        A("global_load_dword v8, v6, s[6:7]")
        A("global_load_dword v9, v6, s[8:9]")
        A("global_load_dword v10, v6, s[10:11]")
        A("global_load_dword v11, v6, s[12:13]")
        A("s_load_dword s50, s[14:15], s44")
        A("s_load_dword s51, s[16:17], s44")
        self.srd(52, 4, 2048 * 896)
        A("s_cmp_lt_u32 s30, 4")
        A("s_cbranch_scc0 L_a_p0")
        A("s_setprio 1")
        A(f"s_add_u32 m0, s45, {L_TAB}")
        A("s_nop 0")
        A("global_load_lds_dwordx4 v63, s[46:47]")
        A("global_load_lds_dwordx4 v63, s[46:47] offset:1024")
        if o.get("upos", 2) == 0:
            for k in range(4):
                A(f"s_add_u32 m0, s101, {1024 * k}")
                A(f"s_add_u32 s57, s56, {(k & 1) * 8 * 896 + (k >> 1) * 64 * 896}")
                A(f"buffer_load_dwordx4 v62, s[52:55], s57 offen lds")
        A("s_branch L_a_p1")
        A.label("L_a_p0")
        if o.get("pfirst", 1):
            self.prefetch_late(12, 13, 14, 90, "s[20:21]", "s[18:19]", c0=0, with_q=False)
        self.prefetch_late(12, 13, 14, 90, "s[20:21]", "s[18:19]")
        A.label("L_a_p1")
        A("s_branch L_teamA")

    def teamB(self):
        A = self.A
        o = self.o
        VL = 1
        vW, vX, vXR, vTR = 2, 3, 7, 11
        XF, AK, AV, AQ, WF = 16, 128, 144, 160, 176
        T = 192
        TT = 240
        sX, sW = 36, 40
        s_rb, s_h, s_rot, s_xo, s_wo_, s_rg = 48, 49, 50, 51, 52, 53
        s_t0, s_t1, s_t2, s_hd = 54, 55, 56, 57
        A.label("L_teamB")
        self.inB = True
        if o.get("noB"):
            A("s_cmp_eq_u32 s2, 0")
            A("s_cbranch_scc0 L_end")
        vm = []

        def VM(text, tag):
            A(text)
            vm.append(tag)

        def wait_vm(tag):
            last = max(i for i, t in enumerate(vm) if t == tag)
            n = len(vm) - 1 - last
            assert n <= 63
            A(f"s_waitcnt vmcnt({n})")
        A("s_memrealtime s[44:45]")
        A(f"s_lshl_b32 s{s_rb}, s31, 1")
        A(f"s_and_b32 s{s_t0}, s3, 1")
        A(f"s_add_u32 s{s_rb}, s{s_rb}, s{s_t0}")
        A(f"s_and_b32 s{s_rg}, s30, 3")
        A(f"s_lshr_b32 s{s_hd}, s30, 2")
        A(f"s_and_b32 s{s_h}, s3, 14")
        A(f"s_mul_i32 s{s_wo_}, s{s_h}, 56")
        A(f"s_add_u32 s{s_h}, s{s_h}, s{s_hd}")
        A(f"s_add_u32 s{s_rot}, s3, s31")
        A(f"s_mul_hi_u32 s{s_t0}, s{s_rot}, 0x24924925")
        A(f"s_mul_i32 s{s_t0}, s{s_t0}, 7")
        A(f"s_sub_u32 s{s_rot}, s{s_rot}, s{s_t0}")
        if not o.get("rot", 0):
            A(f"s_mov_b32 s{s_rot}, 0")
        A(f"v_lshrrev_b32 v{TT}, 3, v{VL}")
        A(f"v_mul_u32_u24 v{vW}, 2688, v{TT}")
        A(f"v_and_b32 v{TT + 2}, 7, v{VL}")
        A(f"v_bfe_u32 v{TT + 1}, v{VL}, 4, 1")
        A(f"v_lshlrev_b32 v{TT + 1}, 2, v{TT + 1}")
        A(f"v_xor_b32 v{TT + 1}, v{TT + 1}, v{TT + 2}")
        A(f"v_min_u32 v{TT + 1}, 6, v{TT + 1}")
        A(f"v_lshl_add_u32 v{vW}, v{TT + 1}, 4, v{vW}")
        A(f"v_mul_u32_u24 v{TT}, 896, v{TT}")
        A(f"v_lshrrev_b32 v{TT + 1}, 4, v{VL}")
        A(f"v_xor_b32 v{TT + 1}, v{TT + 1}, v{TT + 2}")
        A(f"v_lshl_add_u32 v{vX}, v{TT + 1}, 4, v{TT}")
        A(f"v_xor_b32 v{TT + 1}, 4, v{TT + 1}")
        A(f"v_lshl_add_u32 v{vX + 1}, v{TT + 1}, 4, v{TT}")
        A(f"v_add_u32 v{vX + 1}, {8 * 896}, v{vX + 1}")
        s_xb, s_wb, s_lx, s_lw = 96, 59, 97, 58
        A(f"s_lshl_b32 s{s_t0}, s{s_rb}, 3")
        A(f"s_add_u32 s{s_t0}, s{s_t0}, s30")
        A(f"s_mul_i32 s{s_xb}, s{s_t0}, {16 * 896}")
        A(f"s_mul_i32 s{s_wb}, s{s_rg}, {16 * 2688}")
        A(f"s_add_u32 s{s_t0}, s{s_hd}, 1")
        A(f"s_mul_i32 s{s_t0}, s{s_t0}, 896")
        A(f"s_add_u32 s{s_wb}, s{s_wb}, s{s_t0}")
        A(f"s_add_u32 s{s_wb}, s{s_wb}, s{s_wo_}")
        A(f"s_lshl_b32 s{s_lx}, s30, 11")
        A(f"s_mov_b32 s{s_xo}, s{s_rot}")
        A("s_lshl_b32 s46, s2, 3")
        A("s_or_b32 s46, s46, s30")
        A("v_mov_b32 v6, 0")
        A(f"v_mul_u32_u24 v14, 37, v{VL}")
        A(f"v_lshrrev_b32 v14, 8, v14")
        A(f"v_mul_u32_u24 v15, {(64 * 2688 - 7 * 128) // 128}, v14")
        A(f"v_add_lshl_u32 v15, v15, v{VL}, 7")
        A(f"v_and_b32 v13, 1, v{VL}")
        A(f"v_mul_u32_u24 v13, {896 - 64}, v13")
        A(f"v_lshl_add_u32 v13, v{VL}, 6, v13")
        A("s_waitcnt lgkmcnt(0)")
        self.srd(sW, 20, 448 * 2688)
        self.srd(sX, 18, 2048 * 896)
        A("s_cmp_eq_u32 s46, 0")
        A("s_cbranch_scc0 L_b_nn")
        A("s_or_b32 s44, s44, 1")
        A("v_mov_b32 v5, s44")
        A("s_mov_b64 exec, 1")
        A("global_store_dword v6, v5, s[26:27] sc1")
        A("s_mov_b64 exec, -1")
        A.label("L_b_nn")
        if o.get("noB"):
            A("s_endpgm")

        def next_chunk():
            A(f"s_add_u32 s{s_xo}, s{s_xo}, 1")
            A(f"s_cmp_ge_u32 s{s_xo}, 7")
            A(f"s_cselect_b32 s{s_xo}, 0, s{s_xo}")

        def issue_stage(p):
            base = (p % 4) * SLOT
            A(f"s_mul_i32 s{s_t2}, s{s_xo}, {64 * 2688}")
            A(f"s_add_u32 s{s_t2}, s{s_t2}, s{s_wb}")
            A(f"s_add_u32 m0, s{s_lx}, {base + 16384}")
            A(f"s_lshl_b32 s{s_t1}, s{s_xo}, 7")
            VM(f"buffer_load_dwordx4 v{vW}, s[{sW}:{sW + 3}], s{s_t2} offen lds", f"s{p}")
            A(f"s_add_u32 m0, s{s_lx}, {base + 16384 + 1024}")
            A(f"s_add_u32 s{s_t2}, s{s_t2}, {8 * 2688}")
            VM(f"buffer_load_dwordx4 v{vW}, s[{sW}:{sW + 3}], s{s_t2} offen lds", f"s{p}")
            A(f"s_add_u32 m0, s{s_lx}, {base}")
            A(f"s_add_u32 s{s_t1}, s{s_t1}, s{s_xb}")
            VM(f"buffer_load_dwordx4 v{vX}, s[{sX}:{sX + 3}], s{s_t1} offen lds", f"s{p}")
            A(f"s_add_u32 m0, s{s_lx}, {base + 1024}")
            next_chunk()
            VM(f"buffer_load_dwordx4 v{vX + 1}, s[{sX}:{sX + 3}], s{s_t1} offen lds", f"s{p}")
        if o.get("bpf"):
            A("s_lshl_b32 s46, s3, 3")
            A("s_add_u32 s46, s46, s30")
            A("s_lshr_b32 s44, s46, 1")
            A("s_mul_i32 s44, s44, 2688")
            A("s_and_b32 s45, s46, 1")
            A("s_add_u32 s45, s45, 1")
            A("s_mul_i32 s45, s45, 896")
            A("s_add_u32 s45, s45, s44")
            A("s_mov_b64 exec, 0x1fffff")
            VM(f"buffer_load_dword v254, v15, s[{sW}:{sW + 3}], s45 offen", "pf")
            A("s_lshl_b32 s44, s31, 7")
            A("s_add_u32 s44, s44, s46")
            A(f"s_mul_i32 s44, s44, {2 * 896}")
            A("s_mov_b64 exec, 0x3f")
            VM(f"buffer_load_dword v254, v13, s[{sX}:{sX + 3}], s44 offen", "pf")
            A("s_mov_b64 exec, -1")
        D0 = o.get("d0", 2)
        for p in range(D0):
            issue_stage(p)
            if o.get("ibar") and p < D0 - 1:
                A("s_barrier")
        self.stamp(0)
        self.srd(4, 28, 0x10000000)
        self.srd(8, 24, 2048 * 1792)
        A(f"v_and_b32 v{TT}, 31, v{VL}")
        A(f"v_lshlrev_b32 v{TT + 1}, 7, v{TT}")
        A(f"s_lshl_b32 s{s_t0}, s{s_rg}, 12")
        A(f"v_add_u32 v{TT + 1}, s{s_t0}, v{TT + 1}")
        A(f"v_bfe_u32 v{TT + 2}, v{TT}, 1, 3")
        A(f"v_lshrrev_b32 v{TT + 3}, 5, v{VL}")
        A(f"v_xor_b32 v{TT + 2}, v{TT + 2}, v{TT + 3}")
        for t in range(4):
            A(f"v_xor_b32 v{TT + 4}, {2 * t}, v{TT + 2}")
            A(f"v_lshl_add_u32 v{vXR + t}, v{TT + 4}, 4, v{TT + 1}")
        A(f"v_bfe_u32 v{TT}, v{VL}, 2, 2")
        A(f"v_lshl_add_u32 v{TT + 1}, v{TT + 3}, 3, v{TT}")
        A(f"v_lshlrev_b32 v{TT + 1}, 7, v{TT + 1}")
        A(f"v_bfe_u32 v{TT + 2}, v{VL}, 4, 1")
        A(f"v_lshlrev_b32 v{TT + 2}, 5, v{TT + 2}")
        A(f"v_and_b32 v{TT + 4}, 3, v{VL}")
        A(f"v_lshl_add_u32 v{TT + 2}, v{TT + 4}, 3, v{TT + 2}")
        A(f"s_mul_i32 s{s_t0}, s{s_hd}, 56")
        A(f"v_add_u32 v{TT + 2}, s{s_t0}, v{TT + 2}")
        A(f"v_bfe_u32 v{TT + 4}, v{VL}, 3, 1")
        A(f"v_lshlrev_b32 v{TT + 4}, 6, v{TT + 4}")
        A(f"v_xor_b32 v{TT + 2}, v{TT + 2}, v{TT + 4}")
        A(f"v_add_u32 v{vTR}, v{TT + 1}, v{TT + 2}")
        A(f"v_add_u32 v12, {2 * SLOT}, v{vTR}")
        for t in range(4):
            A(f"v_add_u32 v{TT + 8 + t}, {2 * SLOT}, v{vXR + t}")
        A(f"v_lshlrev_b32 v14, 4, v{VL}")
        A(f"v_lshlrev_b32 v13, 2, v{VL}")
        A(f"s_mov_b32 s{s_t0}, {f32(1e-6)}")
        for i in range(16):
            A(f"v_mov_b32 v{AK + i}, s{s_t0}")
            A(f"v_mov_b32 v{AQ + i}, s{s_t0}")
        A(f"s_mul_i32 s{s_lw}, s30, {8 * 2688}")
        A(f"s_add_u32 s{s_lw}, s{s_lw}, s{s_wo_}")
        A(f"s_lshl_b32 s47, s30, 10")

        def wq_lds(p):
            return (3 * SLOT + p * 8192) if p < 4 else ((p - 4) * 8192)

        def issue_wq(lo, hi):
            for p in range(lo, hi):
                A(f"s_mul_i32 s{s_t2}, s{s_xo}, {64 * 2688}")
                A(f"s_add_u32 s{s_t2}, s{s_t2}, s{s_lw}")
                A(f"s_add_u32 m0, s47, {wq_lds(p)}")
                next_chunk()
                VM(f"buffer_load_dwordx4 v{vW}, s[{sW}:{sW + 3}], s{s_t2} offen lds", "wq")

        def lds_ref(addr, lo, hi):
            return (lo, addr) if addr < 2 * SLOT else (hi, addr - 2 * SLOT)

        def reads(j):
            out = []
            base = (j % 4) * SLOT
            for t in range(4):
                r = XF + 4 * (4 * j + t)
                v_, off = lds_ref(base, vXR + t, TT + 8 + t)
                out.append(f"ds_read_b128 v[{r}:{r + 3}], v{v_} offset:{off}")
                b = WF + 32 * (j & 1) + 8 * t
                v_, off = lds_ref(base + 16384 + t * 2048, vTR, 12)
                out.append(f"ds_read_b64_tr_b16 v[{b}:{b + 1}], v{v_} offset:{off}")
                out.append(f"ds_read_b64_tr_b16 v[{b + 2}:{b + 3}], v{v_} offset:{off + 512}")
                out.append(f"ds_read_b64_tr_b16 v[{b + 4}:{b + 5}], v{v_} offset:{off + 8192}")
                out.append(f"ds_read_b64_tr_b16 v[{b + 6}:{b + 7}], v{v_} offset:{off + 8192 + 512}")
            return out

        def mfmas(j):
            out = []
            for t in range(4):
                ks = 4 * j + t
                x = XF + 4 * ks
                b = WF + 32 * (j & 1) + 8 * t
                out.append(f"v_mfma_f32_32x32x16_bf16 v[{AK}:{AK + 15}], v[{x}:{x + 3}], v[{b}:{b + 3}], v[{AK}:{AK + 15}]")
                cv = "0" if ks == 0 else f"v[{AV}:{AV + 15}]"
                out.append(f"v_mfma_f32_32x32x16_bf16 v[{AV}:{AV + 15}], v[{x}:{x + 3}], v[{b + 4}:{b + 7}], {cv}")
            return out
        s_q4, s_rb2 = 92, 93
        nxt = [D0]
        for j in range(8):
            if j <= 6:
                wait_vm(f"s{j}")
                A("s_barrier")
                self.stamp(2 + j, fine=True)
            rd = reads(j) if j <= 6 else []
            mm = mfmas(j - 1) if j >= 1 else []
            if j == 7:
                mm = mm[0::2] + mm[1::2]
            if o.get("nolag"):
                if j == 7:
                    continue
                mm = mfmas(j)
                for r_ in rd[:15]:
                    A(r_)
                for t in range(4):
                    if t == 0:
                        A("s_waitcnt lgkmcnt(10)")
                        for r_ in rd[15:]:
                            A(r_)
                    else:
                        A(f"s_waitcnt lgkmcnt({15 - 5 * t})")
                    A(mm[2 * t])
                    A(mm[2 * t + 1])
                rd, mm = [], []
            if mm and rd:
                for i, m_ in enumerate(mm):
                    A(m_)
                    for r_ in (rd[o["rpm"] * i:o["rpm"] * (i + 1)] if o.get("rpm") else rd[(20 * i) // 8:(20 * (i + 1)) // 8]):
                        A(r_)
            else:
                for x_ in rd + mm:
                    A(x_)
            if rd:
                A("s_waitcnt lgkmcnt(0)")
            if j <= 6:
                if j == 1:
                    VM("global_load_dword v252, v6, s[26:27] sc1", "nonce")
                while nxt[0] <= min(j + 3, 6) and nxt[0] <= j + D0 + (1 if j >= o.get("dj", 1) else 0):
                    issue_stage(nxt[0])
                    nxt[0] += 1
                if j == 4:
                    issue_wq(0, 4)
                elif j == 5:
                    issue_wq(4, 7)
                    self.get_nonce(252, 6, first_loaded=True, vm=63)
                    A("s_cmp_eq_u32 s30, 0")
                    A("s_cbranch_scc0 L_b_nc")
                    self.census_write("s[4:7]", TT, TT + 2, s_t2)
                    A.label("L_b_nc")
                elif j == 6:
                    if o.get("atouch", 1):
                        A(f"s_lshl_b32 s88, s{s_rb}, 2")
                        A(f"s_add_u32 s88, s88, s{s_rg}")
                        A(f"s_lshl_b32 s88, s88, 4")
                        A(f"s_add_u32 s88, s88, s{s_h}")
                        A(f"s_lshl_b32 s88, s88, 11")
                        A(f"s_add_u32 s88, s88, {WS_PQ}")
                    else:
                        A(f"s_lshl_b32 s{s_t1}, s3, 3")
                        A(f"s_add_u32 s{s_t1}, s{s_t1}, s30")
                        A(f"s_mul_i32 s{s_t2}, s{s_t1}, {28 * 128}")
                        A(f"s_add_u32 s{s_t2}, s{s_t2}, {WS_WOP}")
                        A(f"v_lshlrev_b32 v{TT}, 7, v{VL}")
                        A("s_mov_b64 exec, 0xfffffff")
                        VM(f"buffer_load_dword v253, v{TT}, s[4:7], s{s_t2} offen sc1", "t")
                        A("s_mov_b64 exec, 3")
                        A(f"s_lshl_b32 s{s_t1}, s{s_t1}, 8")
                        A(f"s_lshl_b32 s{s_t2}, s31, 15")
                        A(f"s_add_u32 s{s_t1}, s{s_t1}, s{s_t2}")
                        A(f"s_add_u32 s{s_t1}, s{s_t1}, {WS_KV}")
                        VM(f"buffer_load_dword v253, v{TT}, s[4:7], s{s_t1} offen sc1", "t")
                        A("s_mov_b64 exec, 0xffff")
                        A(f"s_lshl_b32 s88, s{s_rb}, 2")
                        A(f"s_add_u32 s88, s88, s{s_rg}")
                        A(f"s_lshl_b32 s88, s88, 4")
                        A(f"s_add_u32 s88, s88, s{s_h}")
                        A(f"s_lshl_b32 s88, s88, 11")
                        A(f"s_add_u32 s88, s88, {WS_PQ}")
                        VM(f"buffer_load_dword v253, v{TT}, s[4:7], s88 offen sc1", "t")
                        A("s_mov_b64 exec, -1")
            if j == 0:
                self.stamp(1)
            if j == 2 and not o.get("fine"):
                self.stamp(2)
        self.stamp(3)
        self.stamp(9, fine=True)
        PK, PV = T, T + 8
        E = T + 16
        A(f"s_mov_b32 s{s_t0}, {f32(LOG2E)}")
        A(f"s_mov_b32 s{s_t1}, {f32(1e-6)}")

        def phi(acc, dst):
            for i in range(16):
                A(f"v_mul_f32 v{E + i}, s{s_t0}, v{acc + i}")
            for i in range(16):
                A(f"v_exp_f32 v{E + i}, v{E + i} clamp")
                A(f"v_max_f32 v{acc + i}, s{s_t1}, v{acc + i}")
            for i in range(8):
                A(f"v_pk_add_f32 v[{acc + 2 * i}:{acc + 2 * i + 1}], v[{acc + 2 * i}:{acc + 2 * i + 1}], v[{E + 2 * i}:{E + 2 * i + 1}]")
            for i in range(8):
                A(f"v_cvt_pk_bf16_f32 v{dst + i}, v{acc + 2 * i}, v{acc + 2 * i + 1}")
        A(f"v_and_b32 v{E}, 31, v{VL}")
        A(f"v_cmp_eq_u32 vcc, 28, v{E}")
        phi(AK, PK)
        A(f"v_mov_b32 v{E}, 0x3f803f80")
        for i in range(8):
            A(f"v_cvt_pk_bf16_f32 v{PV + i}, v{AV + 2 * i}, v{AV + 2 * i + 1}")
        for i in range(8):
            A(f"v_cndmask_b32 v{PV + i}, v{PV + i}, v{E}, vcc")
        A(f"v_mfma_f32_32x32x16_bf16 v[{AK}:{AK + 15}], v[{PK}:{PK + 3}], v[{PV}:{PV + 3}], 0")
        A(f"v_mfma_f32_32x32x16_bf16 v[{AK}:{AK + 15}], v[{PK + 4}:{PK + 7}], v[{PV + 4}:{PV + 7}], v[{AK}:{AK + 15}]")
        A(f"s_lshl_b32 s{s_t2}, s30, 12")
        A(f"s_add_u32 s{s_t2}, s{s_t2}, {L_EX}")
        A(f"v_add_u32 v{E}, s{s_t2}, v14")
        A(f"v_lshrrev_b32 v{E + 1}, 3, v{VL}")
        A(f"s_lshl_b32 s{s_t2}, s{s_rg}, 3")
        A(f"v_add_u32 v{E + 1}, s{s_t2}, v{E + 1}")
        A(f"v_bfe_u32 v{E + 2}, v{VL}, 2, 1")
        A(f"v_lshl_add_u32 v{E + 2}, v{E + 2}, 5, v{E + 1}")
        A(f"v_lshlrev_b32 v{E + 2}, 4, v{E + 2}")
        A(f"v_and_b32 v{E + 3}, 3, v{VL}")
        A(f"v_lshl_add_u32 v{E + 2}, v{E + 3}, 10, v{E + 2}")
        A(f"s_lshl_b32 s{s_t2}, s{s_hd}, 14")
        A(f"s_add_u32 s{s_t2}, s{s_t2}, {L_EX}")
        A(f"v_add_u32 v{E + 2}, s{s_t2}, v{E + 2}")
        for g in range(4):
            A(f"ds_write_b128 v{E}, v[{AK + 4 * g}:{AK + 4 * g + 3}] offset:{g * 1024}")
        A("s_waitcnt lgkmcnt(0)")
        self.stamp(10, fine=True)
        A("s_barrier")
        for w in range(4):
            A(f"ds_read_b128 v[{AV + 4 * w}:{AV + 4 * w + 3}], v{E + 2} offset:{w * 4096}")
        A(f"s_and_b32 s{s_q4}, s3, 3")
        A(f"s_lshl_b32 s{s_rb2}, s31, 3")
        A(f"s_lshr_b32 s{s_t2}, s3, 2")
        A(f"s_lshl_b32 s{s_t2}, s{s_t2}, 1")
        A(f"s_add_u32 s{s_rb2}, s{s_rb2}, s{s_t2}")
        A(f"s_lshl_b32 s94, s{s_q4}, 2")
        A(f"s_add_u32 s94, s94, s{s_rg}")
        A(f"s_mul_i32 s95, s94, {14 * WOP_U}")
        A(f"s_add_u32 s95, s95, {WS_WOP}")
        A(f"s_cmp_lt_u32 s94, 14")
        A(f"s_cselect_b32 s89, s{s_hd}, 1")
        A(f"s_cmp_eq_u32 s89, 0")
        A(f"s_cselect_b32 s94, s95, 0x7f000000")
        WC = 232

        def wop_load(ks):
            r = XF + 4 * ks
            if ks % 2 == 0:
                A(f"s_add_u32 s95, s94, {(ks // 2) * WOP_U}")
            fl = "" if o.get("wplain") else " sc1"
            A(f"buffer_load_dwordx4 v[{r}:{r + 3}], v14, s[4:7], s95 offen offset:{(ks % 2) * 1024}{fl}")
            if ks % 2 == 1:
                A(f"buffer_load_dword v{WC + ks // 2}, v13, s[4:7], s95 offen offset:2048{fl}")
        A("s_waitcnt lgkmcnt(0)")
        for k in range(2):
            A(f"v_pk_add_f32 v[{AV + 2 * k}:{AV + 2 * k + 1}], v[{AV + 2 * k}:{AV + 2 * k + 1}], v[{AV + 4 + 2 * k}:{AV + 5 + 2 * k}]")
            A(f"v_pk_add_f32 v[{AV + 8 + 2 * k}:{AV + 9 + 2 * k}], v[{AV + 8 + 2 * k}:{AV + 9 + 2 * k}], v[{AV + 12 + 2 * k}:{AV + 13 + 2 * k}]")
        for k in range(2):
            A(f"v_pk_add_f32 v[{AV + 2 * k}:{AV + 2 * k + 1}], v[{AV + 2 * k}:{AV + 2 * k + 1}], v[{AV + 8 + 2 * k}:{AV + 9 + 2 * k}]")
        A(f"v_and_b32 v{E + 4}, 7, v{VL}")
        A(f"v_cmp_eq_u32 vcc, 7, v{E + 4}")
        A(f"v_cvt_pk_bf16_f32 v{E + 6}, v{AV}, v{AV + 1}")
        A(f"v_cvt_pk_bf16_f32 v{E + 7}, v{AV + 2}, v{AV + 3}")
        A(f"v_cndmask_b32 v{E + 6}, v{E + 6}, 0, vcc")
        A(f"v_cndmask_b32 v{E + 7}, v{E + 7}, 0, vcc")
        A(f"v_xor_b32 v{E + 4}, v{E + 6}, v{E + 7}")
        A(f"v_xor_b32_dpp v{E + 4}, v{E + 4}, v{E + 4} quad_perm:[1,0,3,2] row_mask:0xf bank_mask:0xf")
        A(f"v_xor_b32_dpp v{E + 4}, v{E + 4}, v{E + 4} quad_perm:[2,3,0,1] row_mask:0xf bank_mask:0xf")
        A(f"v_xor_b32_dpp v{E + 4}, v{E + 4}, v{E + 4} row_half_mirror row_mask:0xf bank_mask:0xf")
        A(f"v_xor_b32 v{E + 4}, s33, v{E + 4}")
        A(f"v_cndmask_b32 v{E + 6}, v{E + 6}, v{E + 4}, vcc")
        A(f"s_lshl_b32 s{s_t2}, s{s_h}, 4")
        A(f"s_add_u32 s{s_t2}, s{s_t2}, s{s_rb}")
        A(f"s_lshl_b32 s{s_t2}, s{s_t2}, 2")
        A(f"s_add_u32 s{s_t2}, s{s_t2}, s{s_rg}")
        A(f"s_lshl_b32 s{s_t2}, s{s_t2}, 9")
        A(f"v_lshlrev_b32 v{E + 5}, 3, v{VL}")
        A(f"buffer_store_dwordx2 v[{E + 6}:{E + 7}], v{E + 5}, s[4:7], s{s_t2} offen sc1")
        self.stamp(4)
        self.stamp(11, fine=True)
        vm.append("part")
        wait_vm("wq")
        A("s_barrier")
        self.census_load("s[4:7]", 252, E, 91, 0)
        A(f"v_cmp_lt_u32 s[98:99], 31, v{VL}")
        A(f"s_cmp_eq_u32 s{s_hd}, 0")
        A("s_cbranch_scc1 L_b_lo")
        AQ2 = AK
        A(f"s_setprio {o.get('pq', 2)}")
        A(f"v_bfe_u32 v{E + 1}, v{VL}, 3, 1")
        A(f"v_lshlrev_b32 v{E + 1}, 6, v{E + 1}")
        A(f"v_xor_b32 v2, v{vTR}, v{E + 1}")
        A(f"v_subrev_u32 v2, 56, v2")
        A(f"v_xor_b32 v2, v2, v{E + 1}")
        A(f"v_add_u32 v3, {2 * SLOT}, v2")
        for i in range(16):
            A(f"v_mov_b32 v{AQ2 + i}, s{s_t1}")

        def rd_q(ks, buf):
            b = WF + 8 * buf
            ad = wq_lds(ks >> 2) + (ks & 3) * 2048
            v_, off = lds_ref(ad, vTR, 12)
            A(f"ds_read_b64_tr_b16 v[{b}:{b + 1}], v{v_} offset:{off}")
            A(f"ds_read_b64_tr_b16 v[{b + 2}:{b + 3}], v{v_} offset:{off + 512}")
            v_, off = lds_ref(ad, 2, 3)
            A(f"ds_read_b64_tr_b16 v[{b + 4}:{b + 5}], v{v_} offset:{off}")
            A(f"ds_read_b64_tr_b16 v[{b + 6}:{b + 7}], v{v_} offset:{off + 512}")
        for ks in range(2):
            rd_q(ks, ks)
        for ks in range(28):
            if ks + 2 < 28:
                rd_q(ks + 2, (ks + 2) % 3)
                A("s_waitcnt lgkmcnt(8)")
            else:
                A(f"s_waitcnt lgkmcnt({4 * (27 - ks)})")
            b = WF + 8 * (ks % 3)
            x = XF + 4 * ks
            A(f"v_mfma_f32_32x32x16_bf16 v[{AQ}:{AQ + 15}], v[{b}:{b + 3}], v[{x}:{x + 3}], v[{AQ}:{AQ + 15}]")
            A(f"v_mfma_f32_32x32x16_bf16 v[{AQ2}:{AQ2 + 15}], v[{b + 4}:{b + 7}], v[{x}:{x + 3}], v[{AQ2}:{AQ2 + 15}]")
        A("s_waitcnt vmcnt(0)")
        self.census_eval(252, 47, s_t2)

        def xor8(dst, src):
            A(f"v_bitop3_b32 v{dst}, v{src}, v{src + 1}, v{src + 2} bitop3:0x96")
            A(f"v_bitop3_b32 v{dst}, v{dst}, v{src + 3}, v{src + 4} bitop3:0x96")
            A(f"v_bitop3_b32 v{dst}, v{dst}, v{src + 5}, v{src + 6} bitop3:0x96")
            A(f"v_xor_b32 v{dst}, v{dst}, v{src + 7}")
        A(f"s_sub_u32 s88, s88, 2048")
        for (acc, pk, off) in ((AQ, PK, 2048), (AQ2, PV, 0)):
            phi(acc, pk)
            A(f"v_cndmask_b32 v{pk + 6}, v{pk + 6}, 0, s[98:99]")
            A(f"v_cndmask_b32 v{pk + 7}, v{pk + 7}, 0, s[98:99]")
            xor8(E, pk)
            A(f"v_mov_b32 v{E + 1}, v{E}")
            A(f"v_permlane32_swap_b32 v{E}, v{E + 1}")
            A(f"v_bitop3_b32 v{E}, v{E}, v{E + 1}, s33 bitop3:0x96")
            A(f"v_cndmask_b32 v{pk + 6}, v{pk + 6}, v{E}, s[98:99]")
            pf = " sc1" if o.get("pqs") else (" nt" if o.get("ntq") else "")
            A(f"buffer_store_dwordx4 v[{pk}:{pk + 3}], v14, s[4:7], s88 offen offset:{off}{pf}")
            A(f"buffer_store_dwordx4 v[{pk + 4}:{pk + 7}], v14, s[4:7], s88 offen offset:{off + 1024}{pf}")
        A("s_cmp_eq_u32 s47, 1" if not o.get("pqs") else "s_cmp_eq_u32 s47, s47")
        A("s_cbranch_scc1 L_b_npq")
        A(f"s_add_u32 s88, s88, {G_DELTA}")
        for (pk, off) in ((PK, 2048), (PV, 0)):
            A(f"buffer_store_dwordx4 v[{pk}:{pk + 3}], v14, s[4:7], s88 offen offset:{off} sc1")
            A(f"buffer_store_dwordx4 v[{pk + 4}:{pk + 7}], v14, s[4:7], s88 offen offset:{off + 1024} sc1")
        A.label("L_b_npq")
        self.stamp(5)
        A("s_waitcnt vmcnt(0)")
        A(f"s_setprio {o.get('ph', 2)}")
        PQ, KV, PQ1 = 128, 160, 64
        A(f"s_lshl_b32 s{s_t2}, s{s_rb2}, 4")
        A(f"s_lshl_b32 s{s_t1}, s{s_rg}, 2")
        A(f"s_add_u32 s{s_t2}, s{s_t2}, s{s_t1}")
        A(f"s_lshl_b32 s{s_t2}, s{s_t2}, 11")
        A(f"s_add_u32 s{s_t2}, s{s_t2}, {WS_PQ}")
        A(f"v_add_u32 v8, s{s_t2}, v14")
        A(f"v_add_u32 v9, 4096, v8")
        A(f"v_add_u32 v10, 32768, v8")
        A(f"v_add_u32 v11, 32768, v9")

        A(f"s_lshl_b32 s{s_t2}, s31, 15")
        A(f"s_lshl_b32 s{s_t1}, s{s_rg}, 13")
        A(f"s_add_u32 s{s_t2}, s{s_t2}, s{s_t1}")
        A(f"s_add_u32 s{s_t2}, s{s_t2}, {WS_KV}")
        A(f"v_add_u32 v2, s{s_t2}, v14")
        A(f"v_add_u32 v3, 4096, v2")
        A(f"v_xor_b32 v4, 64, v2")
        A(f"v_xor_b32 v7, 64, v3")

        def loads8(base, vs, soff):
            for hh in range(4):
                for st in range(2):
                    r = base + 8 * hh + 4 * st
                    A(f"buffer_load_dwordx4 v[{r}:{r + 3}], v{vs[hh]}, s[4:7], {soff} offen offset:{(hh & 1) * 2048 + st * 1024} sc1")

        def check8(base, younger):
            for hh in range(4):
                A(f"s_waitcnt vmcnt({younger + 6 - 2 * hh})")
                xor8(E + 2 * hh, base + 8 * hh)
                A(f"v_mov_b32 v{E + 2 * hh + 1}, v{E + 2 * hh}")
            for hh in range(4):
                A(f"v_permlane32_swap_b32 v{E + 2 * hh}, v{E + 2 * hh + 1}")
            for hh in range(4):
                A(f"v_bitop3_b32 v{E + 2 * hh}, v{E + 2 * hh}, v{E + 2 * hh + 1}, s33 bitop3:0x96")
            A(f"v_or3_b32 v{E}, v{E}, v{E + 2}, v{E + 4}")
            A(f"v_or_b32 v{E}, v{E}, v{E + 6}")
            A(f"v_cmp_ne_u32 vcc, 0, v{E}")

        def finish8(name, base, vs, younger, delta=G_DELTA):
            check8(base, younger)
            A(f"s_cbranch_vccz L_{name}_d")
            A("s_mov_b32 s90, 0")
            A("s_mov_b32 s58, 0")
            A.label(f"L_{name}")
            self.poll_next(90, 58, delta, f"L_{name}_t")
            loads8(base, vs, "s58")
            check8(base, 0)
            A(f"s_cbranch_vccnz L_{name}")
            A.label(f"L_{name}_t")
            A("s_waitcnt vmcnt(0)")
            A.label(f"L_{name}_d")
            for hh in range(4):
                A(f"v_cndmask_b32 v{base + 8 * hh + 6}, v{base + 8 * hh + 6}, 0, s[98:99]")
        loads8(PQ, (8, 8, 9, 9), "0")
        loads8(PQ1, (10, 10, 11, 11), "0")
        finish8("b_pq", PQ, (8, 8, 9, 9), 8, 0 if o.get("pqs") else G_DELTA)
        finish8("b_pq1", PQ1, (10, 10, 11, 11), 0, 0 if o.get("pqs") else G_DELTA)
        self.stamp(8)
        A(f"v_mov_b32 v5, {L_EX + 28672 + 32}")
        A("s_mov_b32 s91, 0")
        A.label("L_kf")
        A(f"ds_read_b128 v[{E}:{E + 3}], v5")
        A("s_add_u32 s91, s91, 1")
        A("s_cmp_gt_u32 s91, 0x100000")
        A("s_cbranch_scc1 L_kf_d")
        A("s_waitcnt lgkmcnt(0)")
        for i in range(4):
            A(f"v_xor_b32 v{E + i}, s33, v{E + i}")
        A(f"v_or3_b32 v{E}, v{E}, v{E + 1}, v{E + 2}")
        A(f"v_or_b32 v{E}, v{E}, v{E + 3}")
        A(f"v_cmp_ne_u32 vcc, 0, v{E}")
        A("s_cbranch_vccz L_kf_d")
        A("s_sleep 2")
        A("s_branch L_kf")
        A.label("L_kf_d")
        A("s_waitcnt lgkmcnt(0)")
        loads8(KV, (2, 4, 3, 7), "0")
        finish8("b_kv", KV, (2, 4, 3, 7), 0)
        self.stamp(9)
        NE, NO = 192, 208
        OP = 224
        A(f"s_mov_b32 s{s_t1}, {f32(1e-6)}")
        L_OX = SLOT
        A(f"s_mul_i32 s{s_t2}, s{s_rg}, 7168")
        A(f"s_add_u32 s{s_t2}, s{s_t2}, {L_OX}")
        A(f"v_add_u32 v5, s{s_t2}, v14")
        def M(u):
            rh, pp = u >> 1, u & 1
            NE = (192, 16)[u & 1]
            for (acc, hh) in ((NE, 2 * pp), (NE + 16, 2 * pp + 1)):
                a, b = KV + 8 * hh, (PQ, PQ1)[rh] + 8 * hh
                A(f"v_mfma_f32_32x32x16_bf16 v[{acc}:{acc + 15}], v[{a}:{a + 3}], v[{b}:{b + 3}], 0")
                A(f"v_mfma_f32_32x32x16_bf16 v[{acc}:{acc + 15}], v[{a + 4}:{a + 7}], v[{b + 4}:{b + 7}], v[{acc}:{acc + 15}]")

        def V(u):
            rh, pp = u >> 1, u & 1
            NE = (192, 16)[u & 1]
            NO = NE + 16
            OPr = (224, 96)[rh]
            A(f"v_cndmask_b32 v10, v{NO + 12}, v{NE + 12}, s[98:99]")
            A(f"v_add_f32 v10, s{s_t1}, v10")
            A("v_rcp_f32 v10, v10")
            for j in range(4):
                A(f"v_cndmask_b32 v{NE + 12 + j}, v{NE + 12 + j}, v{NO + 12 + j}, s[98:99]")
            A("v_mov_b32 v8, v10")
            A("v_permlane32_swap_b32 v10, v8")
            A("v_cndmask_b32 v6, v8, v10, s[98:99]")
            for i in range(12):
                A(f"v_mul_f32 v{NE + i}, v8, v{NE + i}")
            for i in range(12, 16):
                A(f"v_mul_f32 v{NE + i}, v6, v{NE + i}")
            for i in range(12):
                A(f"v_mul_f32 v{NO + i}, v10, v{NO + i}")
            for i in range(8):
                A(f"v_cvt_pk_bf16_f32 v{OPr + 14 * pp + i}, v{NE + 2 * i}, v{NE + 2 * i + 1}")
            for i in range(6):
                A(f"v_cvt_pk_bf16_f32 v{OPr + 14 * pp + 8 + i}, v{NO + 2 * i}, v{NO + 2 * i + 1}")
            lo, hi = (0, 3) if pp == 0 else (3, 7)
            for i in range(lo, hi):
                A(f"ds_write_b128 v5, v[{OPr + 4 * i}:{OPr + 4 * i + 3}] offset:{rh * 28672 + i * 1024}")

        def Vpk(u):
            rh, pp = u >> 1, u & 1
            NE = (192, 16)[u & 1]
            NO = NE + 16
            OPr = (224, 96)[rh]
            A(f"v_cndmask_b32 v10, v{NO + 12}, v{NE + 12}, s[98:99]")
            A(f"v_add_f32 v10, s{s_t1}, v10")
            A("v_rcp_f32 v10, v10")
            for j in range(4):
                A(f"v_cndmask_b32 v{NE + 12 + j}, v{NE + 12 + j}, v{NO + 12 + j}, s[98:99]")
            A("v_mov_b32 v8, v10")
            A("v_permlane32_swap_b32 v10, v8")
            A("v_cndmask_b32 v6, v8, v10, s[98:99]")
            for i in range(6):
                A(f"v_pk_mul_f32 v[{NE + 2 * i}:{NE + 2 * i + 1}], v[{NE + 2 * i}:{NE + 2 * i + 1}], v[8:9] op_sel_hi:[1,0]")
            for i in range(6, 8):
                A(f"v_pk_mul_f32 v[{NE + 2 * i}:{NE + 2 * i + 1}], v[{NE + 2 * i}:{NE + 2 * i + 1}], v[6:7] op_sel_hi:[1,0]")
            for i in range(6):
                A(f"v_pk_mul_f32 v[{NO + 2 * i}:{NO + 2 * i + 1}], v[{NO + 2 * i}:{NO + 2 * i + 1}], v[10:11] op_sel_hi:[1,0]")
            for i in range(8):
                A(f"v_cvt_pk_bf16_f32 v{OPr + 14 * pp + i}, v{NE + 2 * i}, v{NE + 2 * i + 1}")
            for i in range(6):
                A(f"v_cvt_pk_bf16_f32 v{OPr + 14 * pp + 8 + i}, v{NO + 2 * i}, v{NO + 2 * i + 1}")
            lo, hi = (0, 3) if pp == 0 else (3, 7)
            for i in range(lo, hi):
                A(f"ds_write_b128 v5, v[{OPr + 4 * i}:{OPr + 4 * i + 3}] offset:{rh * 28672 + i * 1024}")
        L_OF = L_EX + 28672
        A(f"s_lshl_b32 s{s_t2}, s{s_rg}, 2")
        A(f"s_add_u32 s{s_t2}, s{s_t2}, {L_OF}")
        A(f"v_mov_b32 v2, s{s_t2}")
        A("v_mov_b32 v3, s33")
        M(0)
        for u in range(4):
            if u + 1 < 4:
                M(u + 1)
            (V if o.get("nopk") else Vpk)(u)
            if u & 1:
                A(f"ds_write_b32 v2, v3 offset:{16 * (u >> 1)}")
            if o.get("wb5", -1) == u:
                A("s_lshl_b32 s90, s3, 3")
                A("s_or_b32 s90, s90, s30")
                A(f"s_cmp_eq_u32 s90, 4")
                A("s_cbranch_scc0 L_b_nw5")
                A("buffer_wbl2 sc1")
                A.label("L_b_nw5")
        A("s_waitcnt lgkmcnt(0)")
        self.stamp(10)
        if o.get("wb3", 1):
            A("s_lshl_b32 s90, s3, 3")
            A("s_or_b32 s90, s90, s30")
            A(f"s_cmp_eq_u32 s90, 4")
            A("s_cbranch_scc0 L_b_fin")
            A("buffer_wbl2 sc1")
        A("s_branch L_b_fin")
        A.label("L_b_lo")
        A(f"s_setprio {o.get('plo', 1)}")
        WIN = o.get("win", 4)
        WA = o.get("wa", 11)

        def chk(c):
            r = XF + 8 * c
            for i in range(4):
                A(f"v_bitop3_b32 v{WC + c}, v{WC + c}, v{r + 2 * i}, v{r + 2 * i + 1} bitop3:0x96")
            A(f"v_xor_b32 v{WC + c}, s33, v{WC + c}")

        def stream(u0, u1):
            for u in range(u0, u1 + WIN):
                if u < u1:
                    wop_load(2 * u)
                    wop_load(2 * u + 1)
                c = u - WIN
                if c >= u0:
                    A(f"s_waitcnt vmcnt({3 * (min(u, u1 - 1) - c)})")
                    chk(c)
        stream(0, WA)
        A("s_setprio 3")
        self.census_eval(252, 47, s_t2)
        self.stamp(5)
        R0 = 128
        S0 = 160
        A(f"v_lshrrev_b32 v{E}, 5, v{VL}")
        A(f"v_lshlrev_b32 v{E}, 11, v{E}")
        A(f"v_and_b32 v{E + 1}, 31, v{VL}")
        A(f"v_lshl_add_u32 v{E}, v{E + 1}, 4, v{E}")
        A(f"s_lshl_b32 s{s_t2}, s3, 15")
        A(f"s_lshl_b32 s{s_t1}, s{s_rg}, 9")
        A(f"s_add_u32 s{s_t2}, s{s_t2}, s{s_t1}")
        A(f"v_and_b32 v15, 1, v{VL}")
        A(f"v_lshlrev_b32 v15, 10, v15")
        A(f"v_bfe_u32 v{E + 1}, v{VL}, 1, 1")
        A(f"v_lshl_add_u32 v15, v{E + 1}, 9, v15")
        A(f"v_bfe_u32 v{E + 1}, v{VL}, 2, 3")
        A(f"v_lshl_add_u32 v15, v{E + 1}, 4, v15")
        A(f"v_lshrrev_b32 v{E + 1}, 5, v{VL}")
        A(f"v_lshl_add_u32 v15, v{E + 1}, 3, v15")
        A(f"s_lshl_b32 s58, s31, 15")
        A(f"s_lshl_b32 s{s_t1}, s3, 11")
        A(f"s_add_u32 s58, s58, s{s_t1}")
        A(f"s_lshl_b32 s{s_t1}, s{s_rg}, 7")
        A(f"s_add_u32 s58, s58, s{s_t1}")
        A(f"s_add_u32 s58, s58, {WS_KV}")
        A(f"v_mov_b32 v{E + 12}, 0x00003f80")
        A(f"v_mov_b32 v{E + 13}, 0x3f800000")
        A(f"v_and_b32 v{E + 1}, 0x23, v{VL}")
        A(f"v_cmp_eq_u32 s[44:45], 0x23, v{E + 1}" if False else f"v_cmp_eq_u32 vcc, 0x23, v{E + 1}")
        A("s_mov_b64 s[44:45], vcc")
        A("s_mov_b32 s91, 0")
        A.label("L_b_rpoll")
        for i in range(8):
            A(f"s_add_u32 s{s_t1}, s{s_t2}, {4096 * i}")
            A(f"buffer_load_dwordx4 v[{R0 + 4 * i}:{R0 + 4 * i + 3}], v{E}, s[4:7], s{s_t1} offen sc1")
        A("s_add_u32 s91, s91, 1")
        A("s_cmp_gt_u32 s91, 0x4000")
        A("s_cbranch_scc1 L_b_rdone")
        for k in range(8):
            A(f"s_waitcnt vmcnt({7 - k})")
            A(f"v_bitop3_b32 v{E + 2 + k}, v{R0 + 4 * k}, v{R0 + 4 * k + 1}, v{R0 + 4 * k + 2} bitop3:0x96")
            A(f"v_xor_b32 v{E + 2 + k}, v{E + 2 + k}, v{R0 + 4 * k + 3}")
            for i in range(4):
                c0 = "0" if k == 0 else f"v{S0 + 2 * i}"
                c1 = "0" if k == 0 else f"v{S0 + 2 * i + 1}"
                A(f"v_dot2_f32_bf16 v{S0 + 2 * i}, v{R0 + 4 * k + i}, v{E + 12}, {c0}")
                A(f"v_dot2_f32_bf16 v{S0 + 2 * i + 1}, v{R0 + 4 * k + i}, v{E + 13}, {c1}")
        for k in range(8):
            A(f"v_xor_b32_dpp v{E + 2 + k}, v{E + 2 + k}, v{E + 2 + k} quad_perm:[1,0,3,2] row_mask:0xf bank_mask:0xf")
        for k in range(8):
            A(f"v_xor_b32_dpp v{E + 2 + k}, v{E + 2 + k}, v{E + 2 + k} quad_perm:[2,3,0,1] row_mask:0xf bank_mask:0xf")
        for k in range(8):
            A(f"v_xor_b32 v{E + 2 + k}, s33, v{E + 2 + k}")
        A(f"v_or3_b32 v{E + 2}, v{E + 2}, v{E + 3}, v{E + 4}")
        A(f"v_or3_b32 v{E + 5}, v{E + 5}, v{E + 6}, v{E + 7}")
        A(f"v_or3_b32 v{E + 2}, v{E + 2}, v{E + 8}, v{E + 9}")
        A(f"v_or_b32 v{E + 2}, v{E + 2}, v{E + 5}")
        A(f"v_cmp_ne_u32 vcc, 0, v{E + 2}")
        A("s_cbranch_vccnz L_b_rpoll")
        A.label("L_b_rdone")
        A("s_waitcnt vmcnt(0)")
        self.stamp(6)
        for i in range(4):
            A(f"v_permlane32_swap_b32 v{S0 + i}, v{S0 + 4 + i}")
        for i in range(2):
            A(f"v_pk_add_f32 v[{S0 + 2 * i}:{S0 + 2 * i + 1}], v[{S0 + 2 * i}:{S0 + 2 * i + 1}], v[{S0 + 4 + 2 * i}:{S0 + 5 + 2 * i}]")
        A(f"v_cvt_pk_bf16_f32 v{S0 + 8}, v{S0}, v{S0 + 1}")
        A(f"v_cvt_pk_bf16_f32 v{S0 + 9}, v{S0 + 2}, v{S0 + 3}")
        A(f"v_cndmask_b32 v{S0 + 8}, v{S0 + 8}, 0, s[44:45]")
        A(f"v_cndmask_b32 v{S0 + 9}, v{S0 + 9}, 0, s[44:45]")
        A(f"v_xor_b32 v{S0 + 2}, v{S0 + 8}, v{S0 + 9}")
        A(f"v_xor_b32_dpp v{S0 + 2}, v{S0 + 2}, v{S0 + 2} quad_perm:[1,0,3,2] row_mask:0xf bank_mask:0xf")
        A(f"v_xor_b32_dpp v{S0 + 2}, v{S0 + 2}, v{S0 + 2} quad_perm:[2,3,0,1] row_mask:0xf bank_mask:0xf")
        A(f"v_mov_b32 v{S0 + 3}, v{S0 + 2}")
        A(f"v_permlane32_swap_b32 v{S0 + 2}, v{S0 + 3}")
        A(f"v_bitop3_b32 v{S0 + 2}, v{S0 + 2}, v{S0 + 3}, s33 bitop3:0x96")
        A(f"v_cndmask_b32 v{S0 + 8}, v{S0 + 8}, v{S0 + 2}, s[44:45]")
        A(f"buffer_store_dwordx2 v[{S0 + 8}:{S0 + 9}], v15, s[4:7], s58 offen")
        A("s_cmp_eq_u32 s47, 1")
        A("s_cbranch_scc1 L_b_nored")
        A(f"s_add_u32 s58, s58, {KV_G}")
        A(f"buffer_store_dwordx2 v[{S0 + 8}:{S0 + 9}], v15, s[4:7], s58 offen sc1")
        A.label("L_b_nored")
        A("s_waitcnt vmcnt(0)")
        A(f"s_lshl_b32 s{s_t2}, s{s_rg}, 2")
        A(f"s_add_u32 s{s_t2}, s{s_t2}, {L_EX + 28672 + 32}")
        A(f"v_mov_b32 v2, s{s_t2}")
        A("v_mov_b32 v3, s33")
        A("ds_write_b32 v2, v3")
        A("s_setprio 0")
        self.stamp(7)
        A("s_cmp_eq_u32 s89, 0")
        A("s_cbranch_scc0 L_b_fin")
        A("s_mov_b32 s90, 0")
        stream(WA, 14)
        A("s_branch L_b_wochk")
        A.label("L_b_wopoll")
        A("s_add_u32 s90, s90, 1")
        A("s_cmp_gt_u32 s90, 0x1000")
        A("s_cbranch_scc1 L_b_wod")
        stream(0, 14)
        A.label("L_b_wochk")
        A(f"v_or_b32 v2, v{WC}, v{WC + 1}")
        for u in range(1, 7):
            A(f"v_or3_b32 v2, v2, v{WC + 2 * u}, v{WC + 2 * u + 1}")
        A("v_cmp_ne_u32 vcc, 0, v2")
        A("s_cbranch_vccnz L_b_wopoll")
        A.label("L_b_wod")
        A("s_waitcnt vmcnt(0)")
        if o.get("wb2", 0):
            A("s_lshl_b32 s90, s3, 3")
            A("s_or_b32 s90, s90, s30")
            A(f"s_cmp_eq_u32 s90, 27")
            A("s_cbranch_scc0 L_b_nwb")
            A("buffer_wbl2 sc1")
            A.label("L_b_nwb")
        self.stamp(8)
        A(f"v_add_u32 v5, {L_OX}, v14")
        A(f"s_mul_i32 s{s_t2}, s30, 5120")
        A(f"s_add_u32 s{s_t2}, s{s_t2}, {L_EX}")
        A(f"v_and_b32 v6, 31, v{VL}")
        A(f"v_mul_u32_u24 v6, 80, v6")
        A(f"v_lshrrev_b32 v7, 5, v{VL}")
        A(f"v_lshl_add_u32 v6, v7, 3, v6")
        A(f"v_add_u32 v6, s{s_t2}, v6")
        A(f"v_lshrrev_b32 v7, 2, v{VL}")
        A(f"v_mul_u32_u24 v8, 80, v7")
        A(f"v_and_b32 v9, 3, v{VL}")
        A(f"v_lshl_add_u32 v8, v9, 4, v8")
        A(f"v_add_u32 v8, s{s_t2}, v8")
        A(f"v_mul_u32_u24 v7, 1792, v7")
        A(f"v_lshl_add_u32 v7, v9, 4, v7")
        A(f"s_mul_i32 s{s_t2}, s{s_rb2}, {32 * 1792}")
        A(f"s_lshl_b32 s{s_t1}, s{s_q4}, 2")
        A(f"s_add_u32 s{s_t1}, s{s_t1}, s30")
        A(f"s_lshl_b32 s{s_t0}, s{s_t1}, 6")
        A(f"s_add_u32 s{s_t2}, s{s_t2}, s{s_t0}")
        A(f"s_add_u32 s{s_t2}, s{s_t2}, 896")
        A(f"s_cmp_eq_u32 s89, 0")
        A(f"s_cselect_b32 s{s_t2}, s{s_t2}, 0x7f000000")
        OB = 128
        AO = 192
        NB = 8
        EB = 160

        def epi(rh):
            out = []
            for i in range(8):
                out.append(f"v_cvt_pk_bf16_f32 v{OP + i}, v{AO + 16 * rh + 2 * i}, v{AO + 16 * rh + 2 * i + 1}")
            out.append(f"ds_write2_b64 v6, v[{OP}:{OP + 1}], v[{OP + 2}:{OP + 3}] offset0:0 offset1:2")
            out.append(f"ds_write2_b64 v6, v[{OP + 4}:{OP + 5}], v[{OP + 6}:{OP + 7}] offset0:4 offset1:6")
            for q in range(2):
                out.append(f"ds_read_b128 v[{EB + 4 * q}:{EB + 4 * q + 3}], v8 offset:{q * 16 * 80}")
            return out

        def epi_store():
            for q in range(2):
                ob = {0: "", 1: " sc1", 2: " nt", 3: " sc0 sc1"}[o.get("ob", 1)]
                A(f"buffer_store_dwordx4 v[{EB + 4 * q}:{EB + 4 * q + 3}], v7, s[8:11], s{s_t2} offen{ob}")
                A(f"s_add_u32 s{s_t2}, s{s_t2}, {16 * 1792}")
        A(f"v_mov_b32 v2, {L_OF}")
        for rh in range(2):
            A("s_mov_b32 s91, 0")
            A.label(f"L_of{rh}")
            A(f"ds_read_b128 v[{EB + 8}:{EB + 11}], v2 offset:{16 * rh}")
            A("s_add_u32 s91, s91, 1")
            A("s_cmp_gt_u32 s91, 0x100000")
            A(f"s_cbranch_scc1 L_of{rh}_d")
            A("s_waitcnt lgkmcnt(0)")
            for i in range(4):
                A(f"v_xor_b32 v{EB + 8 + i}, s33, v{EB + 8 + i}")
            A(f"v_or3_b32 v{EB + 8}, v{EB + 8}, v{EB + 9}, v{EB + 10}")
            A(f"v_or_b32 v{EB + 8}, v{EB + 8}, v{EB + 11}")
            A(f"v_cmp_ne_u32 vcc, 0, v{EB + 8}")
            A(f"s_cbranch_vccz L_of{rh}_d")
            A("s_sleep 1")
            A(f"s_branch L_of{rh}")
            A.label(f"L_of{rh}_d")
            A("s_waitcnt lgkmcnt(0)")
            if rh == 0:
                self.stamp(10)
            for n in range(NB - 1):
                A(f"ds_read_b128 v[{OB + 4 * n}:{OB + 4 * n + 3}], v5 offset:{rh * 28672 + n * 1024}")
            extra = 0
            for ks in range(28):
                n = ks + NB - 1
                if n < 28:
                    r = OB + 4 * (n % NB)
                    A(f"ds_read_b128 v[{r}:{r + 3}], v5 offset:{rh * 28672 + n * 1024}")
                    A(f"s_waitcnt lgkmcnt({NB - 1})")
                else:
                    A(f"s_waitcnt lgkmcnt({27 - ks})")
                r = OB + 4 * (ks % NB)
                a = XF + 4 * ks
                acc = AO + 16 * rh
                c = "0" if ks == 0 else f"v[{acc}:{acc + 15}]"
                A(f"v_mfma_f32_32x32x16_bf16 v[{acc}:{acc + 15}], v[{a}:{a + 3}], v[{r}:{r + 3}], {c}")
                if o.get("wb6", -1) == rh * 28 + ks:
                    A("s_lshl_b32 s90, s3, 3")
                    A("s_or_b32 s90, s90, s30")
                    A(f"s_cmp_eq_u32 s90, 0")
                    A("s_cbranch_scc0 L_b_nw6")
                    A("buffer_wbl2 sc1")
                    A.label("L_b_nw6")
                if rh == 1 and ks == 3:
                    for e_ in epi(0):
                        A(e_)
                if rh == 1 and ks == 14:
                    epi_store()
        for e_ in epi(1):
            A(e_)
        A("s_waitcnt lgkmcnt(0)")
        epi_store()
        A.label("L_b_fin")
        self.stamp(11)
        self.dump_stamps(12)
        A("s_endpgm")

    def teamA(self):
        A = self.A
        o = self.o
        VL = 1
        A.label("L_teamA")
        self.inB = False
        s_a, s_pair, s_nh, s_scr, s_d = 36, 37, 38, 39, 40
        s_t0, s_t1, s_t2 = 41, 42, 43
        WS = "s[20:23]"
        FP = 144
        (aYD, aYC, aSW, aFT, aGW, aGR, aOUT, aUD, aUC, aUW, aTW, aVA, aVB, aYS, aYR, aPD, aPC, aSD, aSC, aUT, aKW, aPR, aZT,
         aSR, aWT) = range(224, 249)
        self.stamp(0)
        self.srd(100 - 4, 24, 2048 * 1792)
        A("s_mov_b64 s[12:13], s[20:21]")
        self.srd(20, 28, 0x10000000)
        A(f"v_lshlrev_b32 v2, 4, v{VL}")
        A(f"v_and_b32 v4, 3, v{VL}")
        A(f"v_lshrrev_b32 v5, 4, v{VL}")
        A(f"v_bfe_u32 v6, v{VL}, 2, 2")
        A(f"v_and_b32 v3, 7, v{VL}")
        A(f"v_lshrrev_b32 v12, 3, v{VL}")
        A(f"v_and_b32 v13, 15, v{VL}")
        A(f"v_and_b32 v14, 1, v{VL}")
        A(f"s_lshl_b32 s{s_t1}, s31, 7")
        A(f"v_mul_u32_u24 v{aOUT}, 1792, v12")
        A(f"v_lshl_add_u32 v{aOUT}, v3, 4, v{aOUT}")
        A(f"s_mul_i32 s{s_t0}, s59, {16 * 1792}")
        A(f"s_add_u32 s{s_t0}, s{s_t0}, s{s_t1}")
        A(f"v_add_u32 v{aOUT}, s{s_t0}, v{aOUT}")
        A(f"v_add_u32 v{aSW}, s{s_scr}, v2")
        A(f"v_bfe_u32 v15, v{VL}, 1, 3")
        B64 = o.get("b64", 1)
        if B64:
            A(f"v_mul_u32_u24 v{aSR}, 544, v13")
            A(f"v_lshl_add_u32 v{aSR}, v5, 4, v{aSR}")
            A(f"v_lshlrev_b32 v{aWT}, 3, v{VL}")
            A(f"v_add_u32 v{aWT}, s{s_scr}, v{aWT}")
        else:
            A(f"v_mul_u32_u24 v{aSR}, {SCR_P2}, v15")
            A(f"v_lshl_add_u32 v{aSR}, v14, 3, v{aSR}")
            A(f"v_lshl_add_u32 v{aSR}, v5, 5, v{aSR}")
        A(f"v_add_u32 v{aSR}, s{s_scr}, v{aSR}")
        A(f"v_lshlrev_b32 v{aUT}, 7, v6")
        A(f"v_lshl_add_u32 v{aUT}, v5, 5, v{aUT}")
        A(f"v_lshl_add_u32 v{aUT}, v4, 3, v{aUT}")
        A(f"v_add_u32 v{aUT}, s101, v{aUT}")
        A(f"v_lshrrev_b32 v18, 2, v{VL}")
        A(f"v_mul_u32_u24 v{aSD}, {32 * 640}, v18")
        A(f"s_lshl_b32 s{s_t0}, s31, 9")
        A(f"s_add_u32 s{s_t0}, s{s_t0}, s32")
        A(f"s_mul_i32 s{s_t0}, s{s_t0}, 640")
        A(f"s_add_u32 s{s_t0}, s{s_t0}, {WS_UT}")
        A(f"s_lshl_b32 s{s_t1}, s{s_a}, 5")
        A(f"s_add_u32 s{s_t1}, s{s_t1}, s{s_t0}")
        A(f"v_lshl_add_u32 v{aSC}, v4, 3, v{aSD}")
        A(f"v_add_u32 v{aSC}, s{s_t1}, v{aSC}")
        A(f"s_lshl_b32 s{s_t1}, s{s_a}, 7")
        A(f"s_add_u32 s{s_t1}, s{s_t1}, s{s_t0}")
        A(f"v_lshl_add_u32 v{aSD}, v4, 4, v{aSD}")
        A(f"v_add_u32 v{aSD}, s{s_t1}, v{aSD}")
        A(f"s_lshl_b32 s{s_t0}, s31, 4")
        A(f"s_lshr_b32 s{s_t1}, s32, 1")
        A(f"s_add_u32 s{s_t0}, s{s_t0}, s{s_t1}")
        A(f"s_lshl_b32 s{s_t0}, s{s_t0}, 2")
        A(f"s_add_u32 s{s_t0}, s{s_t0}, s{s_a}")
        A(f"s_mul_i32 s{s_t0}, s{s_t0}, {8 * 640}")
        A(f"s_add_u32 s88, s{s_t0}, {WS_UT}")
        A(f"v_mul_u32_u24 v{aUD}, 640, v12")
        A(f"v_add_u32 v{aUD}, s88, v{aUD}")
        A(f"s_and_b32 s{s_t1}, s32, 1")
        A(f"s_lshl_b32 s{s_t1}, s{s_t1}, 1")
        A(f"v_add_u32 v19, s{s_t1}, v14")
        A(f"v_bfe_u32 v20, v{VL}, 1, 2")
        A(f"v_lshl_add_u32 v21, v20, 2, v19")
        A(f"v_lshl_add_u32 v{aUC}, v21, 3, v{aUD}")
        A(f"v_lshl_add_u32 v21, v20, 3, v19")
        A(f"v_lshl_add_u32 v{aUD}, v21, 4, v{aUD}")
        A(f"v_mul_u32_u24 v{aUW}, {2 * U_PITCH}, v14")
        A(f"v_lshrrev_b32 v21, 1, v{VL}")
        A(f"v_lshl_add_u32 v{aUW}, v21, 5, v{aUW}")
        A(f"s_lshl_b32 s{s_t0}, s{s_a}, 10")
        A(f"s_add_u32 s{s_t1}, s{s_t0}, {L_U + 448}")
        A(f"s_add_u32 s{s_t1}, s{s_t1}, s87")
        A(f"v_add_u32 v{aUW}, s{s_t1}, v{aUW}")
        A(f"s_add_u32 s{s_t0}, s{s_t0}, s100")
        A(f"v_lshlrev_b32 v{aYS}, 6, v15")
        A(f"v_lshl_add_u32 v{aYS}, v14, 3, v{aYS}")
        A(f"v_lshl_add_u32 v{aYS}, v5, 4, v{aYS}")
        A(f"v_add_u32 v{aYS}, s{s_t0}, v{aYS}")
        A(f"v_add_u32 v{aYR}, s{s_t0}, v2")
        A(f"v_mul_u32_u24 v{aTW}, {T_PITCH}, v13")
        A(f"v_lshl_add_u32 v{aTW}, v5, 3, v{aTW}")
        A(f"s_lshl_b32 s{s_t0}, s{s_pair}, 11")
        A(f"s_mul_i32 s{s_t1}, s{s_nh}, {16 * T_PITCH}")
        A(f"s_add_u32 s{s_t0}, s{s_t0}, s{s_t1}")
        A(f"s_add_u32 s{s_t0}, s{s_t0}, s100")
        A(f"v_add_u32 v{aTW}, s{s_t0}, v{aTW}")
        A(f"s_xor_b32 s{s_t0}, s{s_a}, 1")
        A(f"s_mul_i32 s{s_t0}, s{s_t0}, {SCR_SZ}")
        A(f"s_add_u32 s{s_t0}, s{s_t0}, s87")
        A(f"v_add_u32 v{aPR}, s{s_t0}, v2")
        A(f"s_mul_i32 s{s_t0}, s{s_pair}, {2 * SCR_SZ}")
        A(f"s_add_u32 s{s_t0}, s{s_t0}, s87")
        A(f"s_lshl_b32 s{s_t1}, s{s_nh}, 11")
        A(f"s_add_u32 s{s_t1}, s{s_t1}, s{s_t0}")
        A(f"v_add_u32 v{aKW}, s{s_t1}, v2")
        A(f"v_mul_u32_u24 v{aZT}, {KC_PITCH}, v18")
        A(f"v_lshl_add_u32 v{aZT}, v4, 4, v{aZT}")
        A(f"v_add_u32 v{aZT}, s{s_t0}, v{aZT}")
        A(f"v_mul_u32_u24 v{aVA}, {KC_PITCH}, v4")
        A(f"v_sub_u32 v21, v5, v6")
        A(f"v_lshl_add_u32 v{aVA}, v21, 4, v{aVA}")
        A(f"s_add_u32 s{s_t0}, s{s_t0}, {2 * (2040 - 1792)}")
        A(f"v_add_u32 v{aVA}, s{s_t0}, v{aVA}")
        A(f"v_xor_b32 v21, 1, v14")
        A(f"v_mul_u32_u24 v{aVB}, {U_PITCH}, v21")
        A(f"v_lshl_add_u32 v{aVB}, v5, 4, v{aVB}")
        A(f"v_lshl_add_u32 v{aVB}, v15, 6, v{aVB}")
        A(f"s_mul_i32 s{s_t0}, s{s_pair}, {2 * U_PITCH}")
        A(f"s_add_u32 s{s_t0}, s{s_t0}, {L_U + 448}")
        A(f"s_add_u32 s{s_t0}, s{s_t0}, s87")
        A(f"v_add_u32 v{aVB}, s{s_t0}, v{aVB}")
        A(f"v_bfe_u32 v21, v{VL}, 1, 4")
        A(f"v_mul_u32_u24 v{aPD}, 160, v21")
        A(f"s_lshl_b32 s{s_t0}, s31, 4")
        A(f"s_lshr_b32 s{s_t1}, s32, 1")
        A(f"s_add_u32 s{s_t1}, s{s_t1}, s{s_t0}")
        A(f"s_mul_i32 s{s_t1}, s{s_t1}, 20480")
        A(f"s_add_u32 s{s_t1}, s{s_t1}, {WS_UT}")
        A(f"v_add_u32 v{aPD}, s{s_t1}, v{aPD}")
        A(f"s_and_b32 s{s_t1}, s32, 1")
        A(f"s_lshl_b32 s{s_t1}, s{s_t1}, 1")
        A(f"s_add_u32 s{s_t1}, s{s_t1}, s{s_pair}")
        A(f"s_lshl_b32 s{s_t1}, s{s_t1}, 1")
        A(f"v_add_u32 v21, s{s_t1}, v14")
        A(f"v_lshl_add_u32 v{aPC}, v21, 2, v{aPD}")
        A(f"v_lshl_add_u32 v{aPD}, v21, 4, v{aPD}")
        A(f"s_mul_i32 s{s_t0}, s{s_t0}, 20480")
        A(f"s_mul_i32 s{s_t1}, s59, 160")
        A(f"s_add_u32 s{s_t0}, s{s_t0}, s{s_t1}")
        A(f"s_add_u32 s{s_t0}, s{s_t0}, {WS_UT}")
        A(f"v_mul_u32_u24 v{aYD}, 20480, v12")
        A(f"v_add_u32 v{aYD}, s{s_t0}, v{aYD}")
        A(f"v_lshl_add_u32 v{aYC}, v3, 2, v{aYD}")
        A(f"v_lshl_add_u32 v{aYD}, v3, 4, v{aYD}")
        A(f"v_lshl_add_u32 v{aFT}, v5, 3, v6")
        A(f"v_lshlrev_b32 v{aFT}, 5, v{aFT}")
        A(f"v_lshl_add_u32 v{aFT}, v4, 3, v{aFT}")
        A(f"v_add_u32 v{aFT}, s{s_scr}, v{aFT}")
        A(f"s_add_u32 s{s_t0}, s{s_scr}, 2048")
        A(f"v_mul_u32_u24 v{aGW}, {FP}, v13")
        A(f"v_lshl_add_u32 v{aGW}, v5, 4, v{aGW}")
        A(f"v_add_u32 v{aGW}, s{s_t0}, v{aGW}")
        A(f"v_mul_u32_u24 v{aGR}, {FP}, v12")
        A(f"v_lshl_add_u32 v{aGR}, v3, 4, v{aGR}")
        A(f"v_add_u32 v{aGR}, s{s_t0}, v{aGR}")
        A(f"s_mul_i32 s{s_t0}, s{s_a}, {U_PITCH}")
        A(f"s_add_u32 s{s_t0}, s{s_t0}, {L_U}")
        A(f"s_add_u32 s{s_t0}, s{s_t0}, s87")
        A(f"v_add_u32 v21, s{s_t0}, v2")
        for i in range(4):
            A(f"v_mov_b32 v{24 + i}, 0")
        A("s_mov_b32 exec_lo, 0x0fffffff")
        A("s_mov_b32 exec_hi, 0")
        A("ds_write_b128 v21, v[24:27]")
        A(f"s_lshl_b32 s{s_t0}, s{s_nh}, 28")
        A(f"s_or_b32 exec_lo, s{s_t0}, 1")
        A("ds_write_b64 v21, v[24:25]")
        A("s_mov_b64 exec, -1")
        A("v_mov_b32 v7, 0")
        TB = 84

        def publish_u(soff, flag, UO):
            for t in range(2):
                for k in range(4):
                    A(f"ds_read_b64_tr_b16 v[{UO + 10 * t + 2 * k}:{UO + 10 * t + 2 * k + 1}], v{aUT} offset:{2048 * t + k * 512}")
            for t in range(2):
                U_ = UO + 10 * t
                A(f"s_waitcnt lgkmcnt({4 - 4 * t})")
                A(f"buffer_store_dwordx4 v[{U_}:{U_ + 3}], v{aSD}, {WS}, {soff} offen offset:{640 * t}{flag}")
                A(f"buffer_store_dwordx4 v[{U_ + 4}:{U_ + 7}], v{aSD}, {WS}, {soff} offen offset:{640 * t + 64}{flag}")
                A(f"v_bitop3_b32 v{U_ + 8}, v{U_}, v{U_ + 1}, s33 bitop3:0x96")
                for i in range(3):
                    A(f"v_bitop3_b32 v{U_ + 8}, v{U_ + 8}, v{U_ + 2 + 2 * i}, v{U_ + 3 + 2 * i} bitop3:0x96")
                A(f"v_mov_b32 v{U_ + 9}, v{U_ + 8}")
                A(f"buffer_store_dwordx2 v[{U_ + 8}:{U_ + 9}], v{aSC}, {WS}, {soff} offen offset:{640 * t + 512}{flag}")
        def u_issue(lab):
            A("s_cmp_lt_u32 s30, 4")
            A(f"s_cbranch_scc0 {lab}")
            for k in range(4):
                A(f"s_add_u32 m0, s101, {1024 * k}")
                A(f"s_add_u32 s{s_t0}, s44, {(k & 1) * 8 * 896 + (k >> 1) * 64 * 896}")
                A(f"buffer_load_dwordx4 v62, s[52:55], s{s_t0} offen lds")
            if not o.get("tlate"):
                A(f"v_lshlrev_b32 v22, 7, v{VL}")
                A("s_mov_b32 exec_hi, 0xff")
                A(f"buffer_load_dword v250, v22, {WS}, s88 offen sc1")
                A("s_mov_b32 exec_hi, -1")
            A.label(lab)
        A("s_cmp_lt_u32 s30, 4")
        A("s_cbranch_scc1 L_a_w0")
        A(f"s_waitcnt vmcnt({5 if o.get('pfirst', 1) else 3})")
        A.label("L_a_w0")
        A("s_waitcnt lgkmcnt(0)")
        A("s_mov_b32 s44, s56")
        A("s_cmp_lt_u32 s30, 4")
        A("s_cbranch_scc0 L_a_nl2")
        A(f"s_waitcnt vmcnt({4 if o.get('upos', 2) == 0 else 0})")
        self.signal(F_NONCE, 21, 22, "0")
        A.label("L_a_nl2")
        A("s_waitcnt lgkmcnt(0)")
        self.stamp(1)
        AL, TH = 26, 28
        CC = 30
        W1, W8, W256 = 34, 38, 42
        tq = 46
        A(f"s_lshl_b32 s{s_t0}, s{s_pair}, 4")
        A(f"s_lshr_b32 s50, s50, s{s_t0}")
        A(f"s_lshl_b32 s50, s50, 16")
        A(f"s_lshr_b32 s51, s51, s{s_t0}")
        A(f"s_lshl_b32 s51, s51, 16")
        A(f"s_mov_b32 s{s_t1}, {f32(LOG2E)}")
        A(f"s_mov_b32 s{s_t2}, 0xffff0000")
        A(f"v_mov_b32 v{tq}, s50")
        A(f"v_mul_f32 v{tq}, s{s_t1}, v{tq}")
        A(f"v_lshlrev_b32 v{tq + 2}, 16, v8")
        A(f"v_and_b32 v{tq + 3}, s{s_t2}, v8")
        A(f"v_exp_f32 v{tq}, v{tq}")
        A(f"v_mul_f32 v{tq + 2}, s{s_t1}, v{tq + 2}")
        A(f"v_mul_f32 v{tq + 3}, s{s_t1}, v{tq + 3}")
        A(f"v_exp_f32 v{tq + 2}, v{tq + 2}")
        A(f"v_exp_f32 v{tq + 3}, v{tq + 3}")
        A(f"v_cvt_pk_bf16_f32 v{tq}, v{tq}, v{tq}")
        A(f"v_and_b32 v{tq}, s{s_t2}, v{tq}")
        A(f"v_cvt_pk_bf16_f32 v{tq + 2}, v{tq + 2}, v{tq + 3}")
        A(f"v_lshlrev_b32 v{TH}, 16, v9")
        A(f"v_and_b32 v{TH + 1}, s{s_t2}, v9")
        A(f"v_lshlrev_b32 v{AL}, 16, v{tq + 2}")
        A(f"v_and_b32 v{AL + 1}, s{s_t2}, v{tq + 2}")
        A(f"v_pk_mul_f32 v[{TH}:{TH + 1}], v[{TH}:{TH + 1}], v[{tq}:{tq + 1}] op_sel_hi:[1,0]")
        A(f"v_pk_mul_f32 v[{AL}:{AL + 1}], v[{AL}:{AL + 1}], v[{tq}:{tq + 1}] op_sel_hi:[1,0]")
        for i in range(2):
            A(f"v_mul_f32 v{TH + i}, {f32(INV2PI)}, v{TH + i}")
            A(f"v_mul_f32 v{AL + i}, {f32(-LOG2E)}, v{AL + i}")
        A(f"v_add_f32 v{tq}, v{tq}, v{tq}")
        A(f"v_lshlrev_b32 v{CC}, 16, v10")
        A(f"v_and_b32 v{CC + 2}, s{s_t2}, v10")
        A(f"v_lshlrev_b32 v{CC + 1}, 16, v11")
        A(f"v_and_b32 v{CC + 3}, s{s_t2}, v11")
        for i in range(2):
            A(f"v_pk_mul_f32 v[{CC + 2 * i}:{CC + 2 * i + 1}], v[{CC + 2 * i}:{CC + 2 * i + 1}], v[{tq}:{tq + 1}] op_sel_hi:[1,0] neg_hi:[1,0]")

        def wdirect(dst, m, conj):
            for i in range(2):
                a, t = tq + 4 * i, tq + 4 * i + 1
                if m == 1:
                    A(f"v_exp_f32 v{a}, v{AL + i}")
                    A(f"v_fract_f32 v{t}, v{TH + i}")
                else:
                    A(f"v_mul_f32 v{a}, {f32(float(m))}, v{AL + i}")
                    A(f"v_mul_f32 v{t}, {f32(float(m))}, v{TH + i}")
                    A(f"v_exp_f32 v{a}, v{a}")
                    A(f"v_fract_f32 v{t}, v{t}")
            for i in range(2):
                a, t = tq + 4 * i, tq + 4 * i + 1
                A(f"v_cos_f32 v{tq + 4 * i + 2}, v{t}")
                A(f"v_sin_f32 v{tq + 4 * i + 3}, v{t}")
            for i in range(2):
                a = tq + 4 * i
                neg = " neg_hi:[1,0]" if conj else ""
                A(f"v_pk_mul_f32 v[{dst + 2 * i}:{dst + 2 * i + 1}], v[{a + 2}:{a + 3}], v[{a}:{a + 1}] op_sel_hi:[1,0]{neg}")
        wdirect(W1, 1, True)
        wdirect(W256, 256, True)
        wdirect(W8, 8, False)
        if o.get("upos", 2) == 1:
            u_issue("L_a_nu")
        self.stamp(2)
        self.scalar_cmul = o.get("scm", 0) >= 2
        XS = 64
        PKB = 8
        tm = 16
        st = {"pend": None}

        def pack(psrc, prow):
            b = PKB + 4 * ((prow >> 1) & 1) + 2 * (prow & 1)
            A(f"v_cvt_pk_bf16_f32 v{b}, v{psrc}, v{psrc + 1}")
            A(f"v_cvt_pk_bf16_f32 v{b + 1}, v{psrc + 2}, v{psrc + 3}")

        def wr(prow):
            if B64:
                b = PKB + 4 * ((prow >> 1) & 1) + 2 * (prow & 1)
                return f"ds_write_b64 v{aWT}, v[{b}:{b + 1}] offset:{prow * 544}"
            q = PKB + 4 * ((prow >> 1) & 1)
            return f"ds_write_b128 v{aSW}, v[{q}:{q + 3}] offset:{(prow >> 1) * SCR_P2}"

        def flush_val():
            if st["pend"] is None:
                return
            src, row = st["pend"]
            st["pend"] = None
            pack(src, row)
            A(wr(row))

        def emit_val(src, row):
            if st["pend"] is not None:
                psrc, prow = st["pend"]
                pack(psrc, prow)
                if (prow & 1) or B64:
                    A(wr(prow))
            st["pend"] = (src, row)

        def cm2(dst, src, w):
            f0 = self.cmul(dst, src, w, tm)
            f1 = self.cmul(dst + 2, src + 2, w + 2, tm + 2)
            w_ = None
            if st["pend"] is not None:
                psrc, prow = st["pend"]
                assert psrc != dst
                st["pend"] = None
                pack(psrc, prow)
                if (prow & 1) or B64:
                    w_ = wr(prow)
            A(f0)
            A(f1)
            if w_:
                A(w_)

        def frags(dst):
            flush_val()
            for k in range(8):
                if B64:
                    A(f"ds_read_b128 v[{dst + 4 * k}:{dst + 4 * k + 3}], v{aSR} offset:{64 * k}")
                else:
                    A(f"ds_read2_b64 v[{dst + 4 * k}:{dst + 4 * k + 3}], v{aSR} offset0:{16 * k} offset1:{16 * k + 2}")
        AF0, AF1, BF = 128, 160, 192
        ACC = 112
        slot = lambda k: XS + 4 * k
        emit_val(CC, 0)
        prev = CC
        for c in range(1, 8):
            cm2(slot(c), prev, W1)
            emit_val(slot(c), c)
            prev = slot(c)
        src_of = {8: CC, 9: slot(2), 10: slot(4), 11: slot(6)}
        loc = {}
        free = [slot(1), slot(3), slot(5), slot(0), slot(8), slot(9), slot(10), slot(7)]
        for c in range(8, 12):
            loc[c] = free.pop(0)
            cm2(loc[c], src_of[c], W256)
            emit_val(loc[c], c)
        for c, s_ in ((12, 8), (13, 10), (14, 12), (15, 13)):
            loc[c] = free.pop(0)
            cm2(loc[c], loc[s_], W256)
            emit_val(loc[c], c)
        frags(AF0)
        if o.get("upos", 2) == 2:
            u_issue("L_a_nu")
        prev = loc[14]
        pp = [slot(2), slot(4)]
        for c in range(16, 21):
            dst = pp[c & 1]
            cm2(dst, prev, W256)
            emit_val(dst, c - 16)
            prev = dst
        frags(AF1)
        tbr = [TBR[i // 4] + i % 4 for i in range(12)]
        A(f"s_mul_i32 s{s_t0}, s{s_nh}, 3072")
        A(f"s_add_u32 s{s_t0}, s{s_t0}, {L_TAB}")
        A(f"v_add_u32 v20, s{s_t0}, v2")
        self.spec_wait(F_NONCE, 4, 21, 22, [f"ds_read_b128 v[{TBR[i]}:{TBR[i] + 3}], v20 offset:{i * 1024}" for i in range(3)], "0")
        A("s_load_dword s33, s[26:27], 0")
        if o.get("upos", 2) == 3:
            u_issue("L_a_nu")
        A(f"v_mov_b32 v{PKB}, 0x3f80")
        A(f"v_mov_b32 v{PKB + 1}, 0x3f80")
        if B64:
            A(wr(0))
        emit_val(W8, 1)
        prev = W8
        pp = [slot(0), slot(1)]

        def mf(ct):
            for k in range(8):
                for rt, af in ((0, AF0), (1, AF1)):
                    acc = ACC + 8 * rt + 4 * ct
                    c = "0" if k == 0 else f"v[{acc}:{acc + 3}]"
                    yield f"v_mfma_f32_16x16x32_bf16 v[{acc}:{acc + 3}], v[{af + 4 * k}:{af + 4 * k + 3}], v[{BF + 4 * k}:{BF + 4 * k + 3}], {c}"
        for j in range(2, 16):
            dst = pp[j & 1]
            cm2(dst, prev, W8)
            emit_val(dst, j)
            prev = dst
        frags(BF)
        A("s_waitcnt lgkmcnt(0)")
        A(f"s_lshl_b32 s{s_t0}, s86, 5")
        A(f"s_lshl_b32 s{s_t1}, s{s_pair}, 11")
        A(f"s_add_u32 s{s_t0}, s{s_t0}, s{s_t1}")
        A(f"s_mul_i32 s{s_t0}, s{s_t0}, 0x10001")
        for i in range(12):
            A(f"v_add_u32 v{tbr[i]}, s{s_t0}, v{tbr[i]}")
        A("s_cmp_lg_u32 s33, 0")
        A("s_cbranch_scc1 L_a_gn")
        self.get_nonce(249, 7, first_loaded=False, vm=0)
        A.label("L_a_gn")
        A(f"s_cmp_eq_u32 s30, 0")
        A("s_cbranch_scc0 L_a_nl")
        self.census_write(WS, 21, 22, s_t0)
        A.label("L_a_nl")
        if o.get("upos", 2) == 4:
            u_issue("L_a_nu")
        if o.get("upos", 2) == 0 or o.get("pearly", 1):
            A("s_cmp_lt_u32 s30, 4")
            A("s_cbranch_scc0 L_a_np0")
            A(f"v_lshlrev_b32 v22, 7, v{VL}")
            A("s_waitcnt vmcnt(0)")
            publish_u("0", "", 72)
            if o.get("upos", 2) == 0 or o.get("tlate"):
                A("s_mov_b32 exec_hi, 0xff")
                A(f"buffer_load_dword v250, v22, {WS}, s88 offen sc1")
                A("s_mov_b32 exec_hi, -1")
            A.label("L_a_np0")
        if o.get("atouch", 1) and o.get("tb", 1) == 0:
            A("s_cmp_lt_u32 s30, 4")
            A("s_cbranch_scc1 L_a_ntb")
            self.touch_b(21, 90, WS)
            A.label("L_a_ntb")
        self.stamp(3)
        self.scalar_cmul = o.get("scm", 0) >= 1
        if o.get("pe3", 1):
            A("s_setprio 2")
        g0 = mf(0)
        for j in range(16, 32):
            dst = pp[j & 1]
            cm2(dst, prev, W8)
            emit_val(dst, j - 16)
            prev = dst
            A(next(g0))
        frags(BF)
        A(f"s_cmp_eq_u32 s{s_nh}, 0")
        A("s_cselect_b64 s[56:57], -1, 0")
        A(f"v_cmp_eq_u32 vcc, 0, v{VL}")
        A("s_and_b64 vcc, vcc, s[56:57]")
        A("v_mov_b32 v16, s51")
        A("v_cndmask_b32 v16, 0, v16, vcc")
        A(f"v_cmp_eq_u32 s[48:49], 16, v{VL}")
        A(f"s_lshl_b32 s58, s{s_pair}, 2")
        A(f"s_add_u32 s58, s58, s86")
        for k in range(8):
            A(f"s_waitcnt lgkmcnt({7 - k})")
            g = list(mf(1))
            A(g[2 * k])
            A(g[2 * k + 1])
        UD = 20
        self.stamp(4)
        if o.get("pexp", 3):
            A(f"s_setprio {o.get('pexp', 3)}")
        KP, GV = 64, 72
        for rt in range(2):
            for r in range(4):
                a0, a1 = ACC + 8 * rt + r, ACC + 8 * rt + 4 + r
                A(f"v_cndmask_b32 v{GV + 4 * rt + r}, v{a0}, v{a1}, s[56:57]")
        A(f"ds_write_b128 v{aSW}, v[{GV}:{GV + 3}]")
        A(f"ds_write_b128 v{aSW}, v[{GV + 4}:{GV + 7}] offset:1024")
        self.signal(F_AX0, 10, 11, "s58")
        for rt in range(2):
            for r in range(4):
                a0, a1 = ACC + 8 * rt + r, ACC + 8 * rt + 4 + r
                A(f"v_cndmask_b32 v{KP + 4 * rt + r}, v{a1}, v{a0}, s[56:57]")
        A(f"v_add_f32 v{KP}, v{KP}, v16")
        if o.get("upos", 2) != 0 and not o.get("pearly", 1):
            A("s_cmp_lt_u32 s30, 4")
            A("s_cbranch_scc0 L_a_np")
            A("s_waitcnt vmcnt(0)")
            publish_u("0", "", 192)
            A.label("L_a_np")
        GA = 128
        for i in range(12):
            A(f"v_and_b32 v{GA + 2 * i}, 0xffff, v{tbr[i]}")
            A(f"v_lshrrev_b32 v{GA + 2 * i + 1}, 16, v{tbr[i]}")
        self.spec_wait(F_AX0, 2, 10, 11, [f"ds_read_b128 v[{GV}:{GV + 3}], v{aPR}", f"ds_read_b128 v[{GV + 4}:{GV + 7}], v{aPR} offset:1024"], "s58")
        A("s_waitcnt lgkmcnt(0)")
        for i in range(4):
            A(f"v_pk_add_f32 v[{KP + 2 * i}:{KP + 2 * i + 1}], v[{KP + 2 * i}:{KP + 2 * i + 1}], v[{GV + 2 * i}:{GV + 2 * i + 1}]")
        A(f"v_cndmask_b32 v{KP + 7}, v{KP + 7}, 0, s[48:49]")
        for i in range(4):
            A(f"v_cvt_pk_bf16_f32 v{GV + i}, v{KP + 2 * i}, v{KP + 2 * i + 1}")
        A(f"ds_write_b64 v{aTW}, v[{GV}:{GV + 1}]")
        A("s_mov_b32 exec_hi, 0")
        A(f"ds_write_b64 v{aTW}, v[{GV + 2}:{GV + 3}] offset:32")
        A("s_mov_b32 exec_hi, -1")
        self.signal(F_AT0, 10, 11, "s58")
        P = 160
        A(f"buffer_load_dwordx4 v[{UD}:{UD + 3}], v{aUD}, {WS}, 0 offen sc1")
        A(f"buffer_load_dwordx4 v[{UD + 4}:{UD + 7}], v{aUD}, {WS}, 0 offen offset:64 sc1")
        A(f"buffer_load_dword v{UD + 8}, v{aUC}, {WS}, 0 offen offset:512 sc1")
        self.census_load(WS, 29, 5, s_t0, 1)
        for i in range(4):
            A(f"v_mov_b32 v{12 + i}, 0")
        self.spec_wait(F_AT0, 2, 10, 11, [f"ds_read_u16 v{P + m}, v{GA + m}" for m in range(11)], "s58")
        for m in range(4):
            A(f"ds_read_u16 v{P + 12 + m}, v{GA + 12 + m}")
        A("s_waitcnt lgkmcnt(8)")
        for m in range(4, 11):
            A(f"ds_read_u16 v{P + 12 + m}, v{GA + 12 + m}")
        QQ = 88
        for r in range(2):
            p = P + 12 * r
            A(f"s_waitcnt lgkmcnt({11 if r == 0 else 4})")
            for sc in range(4):
                q = QQ + 16 * r + 4 * sc
                for k in range(4):
                    m = 3 - sc + 2 * k
                    A(f"v_lshl_or_b32 v{q + k}, v{p + m + 1}, 16, v{p + m}")
                if r == 1:
                    A(f"ds_write_b128 v{aKW}, v[{q}:{q + 3}] offset:{r * 1024 + sc * KC_PITCH}")
            if r == 0:
                for sc in range(4):
                    q = QQ + 16 * r + 4 * sc
                    A(f"ds_write_b128 v{aKW}, v[{q}:{q + 3}] offset:{r * 1024 + sc * KC_PITCH}")
        A("s_mov_b64 exec, 0xffff")
        A(f"ds_write_b128 v{aZT}, v[12:15] offset:4096")
        A("s_mov_b64 exec, -1")
        A("s_waitcnt vmcnt(0)")
        self.census_eval(29, 95, s_t0)
        A("s_cmp_ge_u32 s30, 4")
        A("s_cselect_b32 s95, 1, s95")
        A("s_cmp_eq_u32 s95, 1")
        A("s_cbranch_scc1 L_a_nug")
        A(f"s_mov_b32 s94, {G_DELTA}")
        publish_u("s94", " sc1", 192)
        A.label("L_a_nug")
        A("s_mov_b32 s92, 0")
        A("s_mov_b32 s94, 0")
        A("s_branch L_a_uchk")
        A.label("L_a_upoll")
        self.poll_next(92, 94, G_DELTA, "L_a_udone")
        A(f"buffer_load_dwordx4 v[{UD}:{UD + 3}], v{aUD}, {WS}, s94 offen sc1")
        A(f"buffer_load_dwordx4 v[{UD + 4}:{UD + 7}], v{aUD}, {WS}, s94 offen offset:64 sc1")
        A(f"buffer_load_dword v{UD + 8}, v{aUC}, {WS}, s94 offen offset:512 sc1")
        A("s_waitcnt vmcnt(0)")
        A.label("L_a_uchk")
        A(f"v_bitop3_b32 v10, v{UD}, v{UD + 1}, v{UD + 2} bitop3:0x96")
        A(f"v_bitop3_b32 v10, v10, v{UD + 3}, v{UD + 4} bitop3:0x96")
        A(f"v_bitop3_b32 v10, v10, v{UD + 5}, v{UD + 6} bitop3:0x96")
        A(f"v_bitop3_b32 v10, v10, v{UD + 7}, v{UD + 8} bitop3:0x96")
        A("v_cmp_ne_u32 vcc, s33, v10")
        A("s_cbranch_vccnz L_a_upoll")
        A.label("L_a_udone")
        A("s_waitcnt vmcnt(0)")
        self.stamp(5)
        if o.get("atouch", 1) and o.get("tb", 1) == 1:
            A("s_cmp_lt_u32 s30, 4")
            A("s_cbranch_scc0 L_a_ntb")
            self.touch_b(10, 90, WS)
            A.label("L_a_ntb")
        self.census_load(WS, 251, 5, s_t0, 1)
        A(f"ds_write_b128 v{aUW}, v[{UD}:{UD + 3}]")
        A(f"ds_write_b128 v{aUW}, v[{UD + 4}:{UD + 7}] offset:16")
        A(f"ds_write2_b64 v{aUW}, v[{UD}:{UD + 1}], v[{UD + 2}:{UD + 3}] offset0:0 offset1:0" if False else f"v_add_u32 v10, {U_PITCH + 8}, v{aUW}")
        A(f"ds_write2_b64 v10, v[{UD}:{UD + 1}], v[{UD + 2}:{UD + 3}] offset0:0 offset1:1")
        A(f"ds_write2_b64 v10, v[{UD + 4}:{UD + 5}], v[{UD + 6}:{UD + 7}] offset0:2 offset1:3")
        self.signal(F_AK0, 10, 11)
        CA = 64
        for i in range(32 if o.get("psplit") else 20):
            A(f"v_mov_b32 v{CA + i}, 0")
        if o.get("psplit"):
            A(f"s_lshl_b32 s{s_t0}, s{s_nh}, 8")
            A(f"v_subrev_u32 v{aVA}, s{s_t0}, v{aVA}")
            A(f"v_subrev_u32 v{aVB}, s{s_t0}, v{aVB}")
        self.stamp(6)
        if o.get("pexp", 2):
            A(f"s_setprio {o.get('pcv', 1)}")
        regs = dict(aYS=aYS, aYR=aYR, aPD=aPD, aPC=aPC)
        A(f"s_cmp_eq_u32 s{s_nh}, 0")
        A("s_cbranch_scc0 L_a_conv1")
        if o.get("psplit"):
            self.conv("c0", list(range(8)), aVA, aVB, CA, regs, keep=[0, 1, 2, 3])
        else:
            self.conv("c0", [7, 6, 2], aVA, aVB, CA, regs)
        A("s_branch L_a_convd")
        A.label("L_a_conv1")
        if o.get("psplit"):
            self.conv("c1", list(range(8)), aVA, aVB, CA, regs, keep=[4, 5, 6, 7])
        else:
            self.conv("c1", [5, 4, 3, 1, 0], aVA, aVB, CA, regs)
        A.label("L_a_convd")
        self.stamp(8)
        A("s_setprio 0")
        self.signal(F_ACV, 10, 11)
        if o.get("wb1", 0):
            A("s_lshl_b32 s90, s3, 3")
            A("s_or_b32 s90, s90, s30")
            A(f"s_cmp_eq_u32 s90, {128 + o.get('wbw', 0)}")
            A("s_cbranch_scc0 L_a_nwb")
            A("buffer_wbl2 sc1")
            A.label("L_a_nwb")
        A(f"s_mov_b32 s{s_t0}, {8 * 1792}")
        self.wait_flag(F_ACV, 4, 10, 11)
        A("s_mov_b32 s92, 0")
        A("s_mov_b32 s94, 0")
        A.label("L_a_ypoll")
        self.poll_next(92, 94, YT_G, "L_a_ydone")
        A(f"s_add_u32 s95, s94, {8 * 20480}")
        A(f"buffer_load_dwordx4 v[20:23], v{aYD}, {WS}, s94 offen sc1")
        A(f"buffer_load_dwordx4 v[24:27], v{aYD}, {WS}, s95 offen sc1")
        A(f"buffer_load_dword v28, v{aYC}, {WS}, s94 offen offset:128 sc1")
        A(f"buffer_load_dword v30, v{aYC}, {WS}, s95 offen offset:128 sc1")
        A("s_waitcnt vmcnt(0)")
        A("v_bitop3_b32 v10, v20, v21, v22 bitop3:0x96")
        A("v_bitop3_b32 v11, v24, v25, v26 bitop3:0x96")
        A("v_bitop3_b32 v10, v10, v23, v28 bitop3:0x96")
        A("v_bitop3_b32 v11, v11, v27, v30 bitop3:0x96")
        A("v_xor_b32 v10, s89, v10")
        A("v_xor_b32 v11, s89, v11")
        A("v_or_b32 v10, v10, v11")
        A("v_cmp_ne_u32 vcc, 0, v10")
        A("s_cbranch_vccnz L_a_ypoll")
        A.label("L_a_ydone")
        A("s_waitcnt vmcnt(0)")
        self.stamp(9)
        A(f"ds_write_b128 v{aSW}, v[20:23]")
        A(f"ds_write_b128 v{aSW}, v[24:27] offset:1024")
        A(f"ds_read_b64_tr_b16 v[20:21], v{aFT}")
        A(f"ds_read_b64_tr_b16 v[22:23], v{aFT} offset:128")
        A(f"ds_read_b64_tr_b16 v[24:25], v{aFT} offset:1024")
        A(f"ds_read_b64_tr_b16 v[26:27], v{aFT} offset:1152")
        A("s_waitcnt lgkmcnt(2)")
        A(f"ds_write_b128 v{aGW}, v[20:23]")
        A("s_waitcnt lgkmcnt(1)")
        A(f"ds_write_b128 v{aGW}, v[24:27] offset:64")
        A(f"ds_read_b128 v[28:31], v{aGR}")
        A(f"ds_read_b128 v[32:35], v{aGR} offset:{8 * FP}")
        A("s_waitcnt lgkmcnt(1)")
        of = {0: "", 1: " sc1", 2: " nt", 3: " sc0 sc1"}[o.get("oa", 1)]
        A(f"buffer_store_dwordx4 v[28:31], v{aOUT}, s[96:99], 0 offen{of}")
        A("s_waitcnt lgkmcnt(0)")
        A(f"buffer_store_dwordx4 v[32:35], v{aOUT}, s[96:99], s{s_t0} offen{of}")
        if o.get("wb4", 0):
            A("s_lshl_b32 s90, s3, 3")
            A("s_or_b32 s90, s90, s30")
            A(f"s_cmp_eq_u32 s90, 128")
            A("s_cbranch_scc0 L_a_nw4")
            A("buffer_wbl2 sc1")
            A.label("L_a_nw4")
        self.stamp(10)
        self.dump_stamps(11)
        A("s_endpgm")

    def prefetch_late(self, va, vb, vc, sa, wp, xp, c0=4, with_q=True):
        A = self.A
        do_kv = self.o.get("pfe" if c0 == 0 else "pfl", 1)
        with_q = with_q and self.o.get("pfq", 1)
        if not do_kv and not with_q:
            return
        A(f"s_and_b32 s{sa}, s3, 15")
        A(f"s_and_b32 s{sa + 2}, s30, 3")
        A(f"s_add_u32 s{sa + 2}, s{sa + 2}, {c0}")
        A(f"s_min_u32 s{sa + 2}, s{sa + 2}, 6")
        A(f"v_mul_u32_u24 v{vc}, 37, v1")
        A(f"v_lshrrev_b32 v{vb}, 9, v{vc}")
        A(f"v_mad_u32_u24 v{va}, v{vb}, 7, v1")
        A(f"v_lshlrev_b32 v{va}, 7, v{va}")
        A(f"s_lshl_b32 s{sa + 1}, s{sa + 2}, 4")
        A(f"s_add_u32 s{sa + 1}, s{sa + 1}, s{sa}")
        A(f"s_mul_i32 s{sa + 1}, s{sa + 1}, {4 * 2688}")
        A(f"v_add_u32 v{va}, s{sa + 1}, v{va}")
        A("s_mov_b32 exec_hi, 0xffffff")
        if do_kv:
            A(f"global_load_dword v254, v{va}, {wp} offset:896")
        A("s_mov_b64 exec, -1")
        A(f"v_mul_u32_u24 v{vb}, 896, v1")
        A(f"s_lshl_b32 s{sa + 1}, s31, 4")
        A(f"s_add_u32 s{sa + 1}, s{sa + 1}, s{sa}")
        A(f"s_mul_i32 s{sa + 1}, s{sa + 1}, {16 * 896}")
        A(f"s_lshl_b32 s{sa + 2}, s{sa + 2}, 7")
        A(f"s_add_u32 s{sa + 1}, s{sa + 1}, s{sa + 2}")
        A(f"v_add_u32 v{vb}, s{sa + 1}, v{vb}")
        A("s_mov_b64 exec, 0xffff")
        if do_kv:
            A(f"global_load_dword v254, v{vb}, {xp}")
        A("s_mov_b64 exec, -1")
        if not with_q:
            return
        A(f"v_lshrrev_b32 v{vb}, 8, v{vc}")
        A(f"v_mad_u32_u24 v{va}, v{vb}, 14, v1")
        A(f"v_lshlrev_b32 v{va}, 7, v{va}")
        A(f"s_lshl_b32 s{sa}, s{sa}, 2")
        A(f"s_and_b32 s{sa + 2}, s30, 3")
        A(f"s_add_u32 s{sa}, s{sa}, s{sa + 2}")
        A(f"s_mul_i32 s{sa}, s{sa}, {7 * 2688}")
        A(f"v_add_u32 v{va}, s{sa}, v{va}")
        A("s_mov_b32 exec_hi, 0x1ffff")
        A(f"global_load_dword v254, v{va}, {wp}")
        A("s_mov_b64 exec, -1")

    def touch_b(self, va, sa, srd):
        A = self.A
        A(f"s_and_b32 s{sa}, s3, 15")
        A(f"s_lshl_b32 s{sa}, s{sa}, 2")
        A(f"s_and_b32 s{sa + 1}, s30, 3")
        A(f"s_add_u32 s{sa}, s{sa}, s{sa + 1}")
        A(f"v_lshlrev_b32 v{va}, 7, v1")
        A(f"s_lshl_b32 s{sa + 1}, s31, 6")
        A(f"s_add_u32 s{sa + 1}, s{sa + 1}, s{sa}")
        A(f"s_lshl_b32 s{sa + 2}, s{sa + 1}, 12")
        A(f"s_add_u32 s{sa + 2}, s{sa + 2}, {WS_PQ}")
        A("s_mov_b32 exec_hi, 0")
        if not self.o.get("pqs"):
            A(f"buffer_load_dword v254, v{va}, {srd}, s{sa + 2} offen sc1")
        A(f"s_lshl_b32 s{sa + 2}, s{sa + 1}, 9")
        A(f"s_add_u32 s{sa + 2}, s{sa + 2}, {WS_KV}")
        A("s_mov_b32 exec_lo, 15")
        A(f"buffer_load_dword v254, v{va}, {srd}, s{sa + 2} offen sc1")
        A(f"s_mul_i32 s{sa}, s{sa}, {56 * 128}")
        A(f"s_add_u32 s{sa}, s{sa}, {WS_WOP}")
        A("s_mov_b32 exec_lo, -1")
        A("s_mov_b32 exec_hi, 0xffffff")
        A(f"buffer_load_dword v254, v{va}, {srd}, s{sa} offen sc1")
        A("s_mov_b64 exec, -1")

    def packer(self):
        A = self.A
        VL = 1
        WS = "s[20:23]"
        A.label("L_pack")
        A("s_cmp_ge_u32 s30, 4")
        A("s_cbranch_scc0 L_p_p1")
        self.prefetch_late(12, 13, 14, 45, "s[20:21]", "s[18:19]")
        A.label("L_p_p1")
        self.srd(12, 22, 448 * 896)
        self.srd(20, 28, 0x10000000)
        A("s_and_b32 s45, s3, 15")
        A("s_lshl_b32 s45, s45, 3")
        A("s_add_u32 s45, s45, s30")
        A(f"v_lshlrev_b32 v2, 4, v{VL}")
        A(f"v_lshlrev_b32 v3, 2, v{VL}")
        A(f"v_and_b32 v4, 3, v{VL}")
        A(f"v_bfe_u32 v6, v{VL}, 2, 2")
        A(f"v_lshrrev_b32 v16, 5, v{VL}")
        A(f"v_bfe_u32 v17, v{VL}, 4, 1")
        A(f"v_lshl_add_u32 v20, v16, 2, v6")
        A(f"v_lshlrev_b32 v20, 6, v20")
        A(f"v_lshl_add_u32 v20, v17, 5, v20")
        A(f"v_lshl_add_u32 v20, v4, 3, v20")
        A(f"v_add_u32 v20, s101, v20")
        for rnd in range(2):
            A("s_mul_hi_u32 s58, s45, 0x12492493")
            A("s_mul_i32 s41, s58, 14")
            A("s_sub_u32 s41, s45, s41")
            A("s_lshl_b32 s41, s41, 2")
            A("s_lshl_b32 s58, s58, 6")
            A(f"s_mul_i32 s{46 + rnd}, s45, {WOP_U}")
            A(f"s_add_u32 s{46 + rnd}, s{46 + rnd}, {WS_WOP}")
            A("s_cmp_lt_u32 s45, 196")
            A("s_cselect_b32 s58, s58, 0x7f000000")
            A(f"s_cselect_b32 s{46 + rnd}, s{46 + rnd}, 0x7f000000")
            for f in range(2):
                A(f"v_add_u32 v24, s41, v16")
                if f:
                    A(f"v_add_u32 v24, 2, v24")
                A(f"v_mul_u32_u24 v25, 37, v24")
                A(f"v_lshrrev_b32 v25, 8, v25")
                A(f"v_mul_u32_u24 v26, 7, v25")
                A(f"v_sub_u32 v24, v24, v26")
                A(f"v_lshlrev_b32 v26, 2, v17")
                A(f"v_mul_u32_u24 v27, 28, v17")
                A(f"v_sub_u32 v28, 0, v26")
                A(f"v_cmp_eq_u32 vcc, 3, v24")
                A(f"v_cndmask_b32 v26, v26, v27, vcc")
                A(f"v_cmp_lt_u32 vcc, 3, v24")
                A(f"v_cndmask_b32 v26, v26, v28, vcc")
                A(f"v_lshl_add_u32 v26, v24, 3, v26")
                A(f"v_mad_u32_u24 v26, v25, 56, v26")
                A(f"v_add_u32 v26, v26, v6")
                A(f"v_mul_u32_u24 v26, 896, v26")
                A(f"v_lshl_add_u32 v26, v4, 4, v26")
                A(f"s_add_u32 m0, s101, {2048 * rnd + 1024 * f}")
                A(f"buffer_load_dwordx4 v26, s[12:15], s58 offen lds")
            A("s_add_u32 s45, s45, 128")
        A("s_waitcnt vmcnt(0)")
        self.get_nonce(24, 7, first_loaded=False, vm=0)
        for k in range(8):
            A(f"ds_read_b64_tr_b16 v[{32 + 2 * k}:{33 + 2 * k}], v20 offset:{k * 512}")
        A("s_waitcnt lgkmcnt(0)")
        for rnd in range(2):
            b = 32 + 8 * rnd
            A(f"buffer_store_dwordx4 v[{b}:{b + 3}], v2, {WS}, s{46 + rnd} offen sc1")
            A(f"buffer_store_dwordx4 v[{b + 4}:{b + 7}], v2, {WS}, s{46 + rnd} offen offset:1024 sc1")
            A(f"v_bitop3_b32 v{50 + rnd}, v{b}, v{b + 1}, s33 bitop3:0x96")
            for i in range(3):
                A(f"v_bitop3_b32 v{50 + rnd}, v{50 + rnd}, v{b + 2 + 2 * i}, v{b + 3 + 2 * i} bitop3:0x96")
            A(f"buffer_store_dword v{50 + rnd}, v3, {WS}, s{46 + rnd} offen offset:2048 sc1")
        if self.o.get("atouch", 1):
            A("s_cmp_ge_u32 s30, 4")
            A("s_cbranch_scc0 L_end")
            A("s_waitcnt vmcnt(0)")
            A("s_barrier")
            self.touch_b(12, 90, WS)
        A("s_endpgm")

    def get_nonce(self, vd, vzero, first_loaded, vm):
        A = self.A
        L, Lc, Ld = A.uid("Ln"), A.uid("Lnc"), A.uid("Lnd")
        A("s_mov_b32 s91, 0")
        if first_loaded:
            A(f"s_waitcnt vmcnt({vm})")
            A(f"s_branch {Lc}")
        A.label(L)
        A(f"global_load_dword v{vd}, v{vzero}, s[26:27] sc1")
        A("s_waitcnt vmcnt(0)")
        A.label(Lc)
        A(f"v_readfirstlane_b32 s33, v{vd}")
        A("s_add_u32 s91, s91, 1")
        A("s_cmp_gt_u32 s91, 0x4000")
        A(f"s_cbranch_scc1 {Ld}")
        A("s_cmp_eq_u32 s33, 0")
        A(f"s_cbranch_scc1 {L}")
        A.label(Ld)
        A("s_or_b32 s33, s33, 1")

    def conv(self, name, tiles, vA, vB, CA, R, keep=None):
        A = self.A
        VL = 1
        s_a, s_pair, s_nh = 36, 37, 38
        s_t0, s_t1 = 41, 42
        nmax = max(tiles) + 1
        FA, FB = 96, 160
        def loads(st):
            out = []
            for k in range(nmax):
                out.append(f"ds_read_b128 v[{FB + 32 * st + 4 * k}:{FB + 32 * st + 4 * k + 3}], v{vB} offset:{512 * k}")
                out.append(f"ds_read_b128 v[{FA + 32 * st + 4 * k}:{FA + 32 * st + 4 * k + 3}], v{vA} offset:{512 * (7 - k)}")
            return out
        def mfmas(st):
            out = []
            units = [(a, c - a, ti) for ti, c in enumerate(tiles) for a in range(c + 1)]
            units.sort(key=lambda u: (max(u[0], u[1]), u[2]))
            for a, cp, ti in units:
                acc = CA + 4 * ti
                fa = FA + 32 * st + 4 * a
                fb = FB + 32 * st + 4 * cp
                out.append(f"v_mfma_f32_16x16x32_bf16 v[{acc}:{acc + 3}], v[{fa}:{fa + 3}], v[{fb}:{fb + 3}], v[{acc}:{acc + 3}]")
            return out
        l0 = loads(0)
        self.spec_wait(F_AK0, 4, 10, 11, l0[:12])
        for l_ in l0[12:]:
            A(l_)
        A(f"v_subrev_u32 v{vA}, 64, v{vA}")
        A(f"v_subrev_u32 v{vB}, 64, v{vB}")
        A("s_mov_b32 s91, 0")
        A.label(f"L_{name}_loop")
        for st in range(2):
            ld = loads(1 - st)
            mf = mfmas(st)
            A("s_waitcnt lgkmcnt(0)")
            last = (st == 1)
            if last:
                A(f"s_cmp_eq_u32 s91, {1 if keep else 3}")
                A(f"s_cbranch_scc1 L_{name}_tail")
            for i, m_ in enumerate(mf):
                if keep:
                    if i % 2 == 0 and i // 2 < len(ld):
                        A(ld[i // 2])
                elif i < len(ld):
                    A(ld[i])
                A(m_)
            A(f"v_subrev_u32 v{vA}, 64, v{vA}")
            A(f"v_subrev_u32 v{vB}, 64, v{vB}")
        A("s_add_u32 s91, s91, 1")
        A(f"s_branch L_{name}_loop")
        A.label(f"L_{name}_tail")
        TS = 16 * 160
        own = keep if keep else list(range(len(tiles)))
        groups = [own[k:k + 2] for k in range(0, len(own), 2)]
        pre = []
        pre.append("s_xor_b32 s89, s33, 0x5a5a0000")
        pre.append("s_xor_b32 s92, s86, 128")
        pre.append(f"v_cmp_lt_u32 s[56:57], 31, v{VL}")
        pre.append(f"s_mov_b32 s94, {YT_G}")
        for gi, grp in enumerate(groups):
            D = 20 + 8 * gi
            pre.append(f"v_mov_b32 v9, {tiles[grp[0]] * TS}")
            pre.append(f"v_mov_b32 v10, {tiles[grp[-1]] * TS}")
            pre.append(f"v_cndmask_b32 v9, v9, v10, s[56:57]")
            pre.append(f"v_add_u32 v{D + 6}, v9, v{R['aPD']}")
            pre.append(f"v_add_u32 v{D + 7}, v9, v{R['aPC']}")
        for i, m_ in enumerate(mfmas(1)):
            A(m_)
            for p_ in pre[2 * i:2 * i + 2]:
                A(p_)
        self.stamp(7)
        A("s_waitcnt vmcnt(0)")
        self.census_eval(251, 93, s_t0)
        stores = []
        if keep:
            self.wait_flag(F_AK0, 4, 10, 11, "s92")
            A(f"v_add_u32 v12, s101, v2")
            A(f"v_xor_b32 v13, 4096, v12" if False else f"s_xor_b32 s{s_t0}, s30, 1")
            A(f"s_lshl_b32 s{s_t0}, s{s_t0}, 12")
            A(f"s_add_u32 s{s_t0}, s{s_t0}, {L_STG}")
            A(f"v_add_u32 v13, s{s_t0}, v2")
            give = [t for t in range(8) if t not in keep]
            for i, t in enumerate(give):
                A(f"ds_write_b128 v12, v[{CA + 4 * t}:{CA + 4 * t + 3}] offset:{1024 * i}")
            self.signal(F_AY0, 10, 11, "s58")
            self.spec_wait(F_AY0, 2, 10, 11, [f"ds_read_b128 v[{FA + 4 * i}:{FA + 4 * i + 3}], v13 offset:{1024 * i}" for i in range(4)], "s58")
            for i, t in enumerate(keep):
                A(f"s_waitcnt lgkmcnt({3 - i})")
                for h in range(2):
                    A(f"v_pk_add_f32 v[{CA + 4 * t + 2 * h}:{CA + 4 * t + 2 * h + 1}], v[{CA + 4 * t + 2 * h}:{CA + 4 * t + 2 * h + 1}], v[{FA + 4 * i + 2 * h}:{FA + 4 * i + 2 * h + 1}]")
        for gi, grp in enumerate(groups):
            for q, ti in enumerate(grp):
                acc = CA + 4 * ti
                A(f"v_cvt_pk_bf16_f32 v{44 + 2 * ti}, v{acc}, v{acc + 1}")
                A(f"v_cvt_pk_bf16_f32 v{45 + 2 * ti}, v{acc + 2}, v{acc + 3}")
                A(f"ds_write_b64 v{R['aYS']}, v[{44 + 2 * ti}:{45 + 2 * ti}] offset:{q * 512}")
            D = 20 + 8 * gi
            A(f"ds_read_b128 v[{D}:{D + 3}], v{R['aYR']}")
        if keep:
            A("s_waitcnt lgkmcnt(0)")
        else:
            self.wait_flag(F_AK0, 4, 10, 11, "s92")
        for gi, grp in enumerate(groups):
            D = 20 + 8 * gi
            if len(grp) == 1:
                A("s_mov_b32 exec_hi, 0")
            yf = " nt" if self.o.get("nty") else ""
            A(f"buffer_store_dwordx4 v[{D}:{D + 3}], v{D + 6}, s[20:23], 0 offen{yf}")
            A(f"v_bitop3_b32 v{D + 4}, v{D}, v{D + 1}, v{D + 2} bitop3:0x96")
            A(f"v_bitop3_b32 v{D + 4}, v{D + 4}, v{D + 3}, s89 bitop3:0x96")
            stores.append((D, len(grp) == 1))
            A(f"buffer_store_dword v{D + 4}, v{D + 7}, s[20:23], 0 offen offset:128{yf}")
            if len(grp) == 1:
                A("s_mov_b32 exec_hi, -1")
        A("s_cmp_eq_u32 s93, 1")
        A(f"s_cbranch_scc1 L_{name}_nog")
        for D, half in stores:
            if half:
                A("s_mov_b32 exec_hi, 0")
            A(f"buffer_store_dwordx4 v[{D}:{D + 3}], v{D + 6}, s[20:23], s94 offen sc1")
            A(f"buffer_store_dword v{D + 4}, v{D + 7}, s[20:23], s94 offen offset:128 sc1")
            if half:
                A("s_mov_b32 exec_hi, -1")
        A.label(f"L_{name}_nog")

    def build(self):
        A = self.A
        self.prologue()
        self.teamB()
        self.teamA()
        self.packer()
        A.label("L_end")
        A("s_endpgm")
        body = A.finalize(verbose=True)
        tab = gather_table().reshape(-1).view(np.uint32)
        tab = np.concatenate([tab, np.zeros(512 + 1024, np.uint32)])
        tabtxt = "\n".join(".long " + ", ".join("0x%08x" % x for x in tab[i:i + 8]) for i in range(0, len(tab), 8))
        hdr = open(os.path.join(os.path.dirname(os.path.abspath(__file__)), "header.txt")).read()
        txt = hdr + f"""; @launch grid=(256,1,1) block=(512,1,1) lds={LDS_TOTAL}
.amdgcn_target "amdgcn-amd-amdhsa--gfx950"
.text
.globl {KNAME}
.p2align 8
.type {KNAME},@function
{KNAME}:
{body}
L_code_end:
.p2align 8
.type gather_tab,@object
gather_tab:
{tabtxt}
.size gather_tab, {len(tab) * 4}
.section .rodata,"a"
.p2align 6
.amdhsa_kernel {KNAME}
  .amdhsa_next_free_vgpr 256
  .amdhsa_next_free_sgpr 102
  .amdhsa_accum_offset 256
  .amdhsa_group_segment_fixed_size 0
  .amdhsa_kernarg_size 104
  .amdhsa_user_sgpr_count 2
  .amdhsa_user_sgpr_kernarg_segment_ptr 1
  .amdhsa_system_sgpr_workgroup_id_x 1
.end_amdhsa_kernel
"""
        return txt


if __name__ == "__main__":
    import argparse
    ap = argparse.ArgumentParser()
    ap.add_argument("-o", default="concat_heads__ssm_conv_s4d__linear_attn_block__prompt.s")
    ap.add_argument("--stamps", action="store_true")
    ap.add_argument("--pf", type=int, default=6)
    ap.add_argument("--dumpA", action="store_true")
    ap.add_argument("--noA", action="store_true")
    ap.add_argument("--noB", action="store_true")
    ap.add_argument("--endstamp", action="store_true")
    ap.add_argument("--spin", type=int, default=0)
    ap.add_argument("--opt", action="append", default=[])
    a = ap.parse_args()
    g = Gen({"stamps": a.stamps, "pf_n": a.pf + (1 if a.stamps or a.dumpA else 0), "dumpA": a.dumpA, "noA": a.noA, "noB": a.noB, "endstamp": a.endstamp, "spin": a.spin})
    for kv in a.opt:
        k_, v_ = kv.split("=")
        g.o[k_] = int(v_)
    open(a.o, "w").write(g.build())
```
